```python
import torch

def _softmax(x, axis=-1):
    return torch.softmax(x, dim=axis)
def _gelu(x):
    return torch.nn.functional.gelu(x, approximate="tanh")
def _silu(x):
    return torch.nn.functional.silu(x)
def _sigmoid(x):
    return torch.sigmoid(x)
def _layernorm(x, axis=-1, eps=1e-5):
    m = x.mean(dim=axis, keepdim=True)
    v = x.var(dim=axis, keepdim=True, unbiased=False)
    return (x - m) / torch.sqrt(v + eps)
def _scatter_add(tgt, idx, src, axis=0):
    return tgt.clone().index_add_(axis, idx, src)
def _segment_sum(src, seg, n):
    out = torch.zeros((n,) + src.shape[1:], dtype=src.dtype)
    return out.index_add_(0, seg, src)
def _pad(x, pw):
    flat = tuple(v for pair in reversed(pw) for v in pair)
    return torch.nn.functional.pad(x, flat)

kernel_name = 'standalone__gqa_block_cached__near_ridge'

def setup_inputs():

    _w = (lambda a: (lambda t: t.to(torch.bfloat16) if t.is_floating_point() else t)(torch.as_tensor(a)))
    B, Sq, D = 16, 64, 512
    Hq, Hkv, Sk, Dh = 32, 32, 64, 128
    assert Hq % Hkv == 0, (Hq, Hkv)
    return {
        "x": _w((lambda *s: torch.randn(*s, dtype=torch.bfloat16) * 0.8)(B, Sq, D)),
        "k_cache": _w((lambda *s: torch.randn(*s, dtype=torch.bfloat16) * 0.8)(B, Hkv, Sk, Dh)),
        "v_cache": _w((lambda *s: torch.randn(*s, dtype=torch.bfloat16) * 0.05)(B, Hkv, Sk, Dh)),
        "wq": _w((lambda *s: torch.randn(*s, dtype=torch.bfloat16) * 0.8)(D, Hq * Dh) * (D ** -0.5)),
        "wo": _w((lambda *s: torch.randn(*s, dtype=torch.bfloat16) * 0.05)(Hq * Dh, D) * ((Hq * Dh) ** -0.5)),
    }

def reference(x, k_cache, v_cache, wq, wo):
    B, Sq, D = x.shape
    Hq, Dh = 32, 128
    Hkv = k_cache.shape[1]
    rep = Hq // Hkv
    q = (lambda x, *d: x.permute(*d))((x @ wq).reshape(B, Sq, Hq, Dh), 0, 2, 1, 3)
    k = (lambda x, n, axis: torch.repeat_interleave(x, n, dim=axis))(k_cache, rep, axis=1)
    v = (lambda x, n, axis: torch.repeat_interleave(x, n, dim=axis))(v_cache, rep, axis=1)
    scores = torch.einsum("bhqd,bhkd->bhqk", q, k) * (Dh ** -0.5)
    p = _softmax(scores, axis=-1)
    o = torch.einsum("bhqk,bhkd->bhqd", p, v)
    return (lambda x, *d: x.permute(*d))(o, 0, 2, 1, 3).reshape(B, Sq, Hq * Dh) @ wo
```

```python
import sys

HEADER = """; Kernarg layout for this problem (64 bytes, ptrs only, base s[0:1]):
"""

L = []
def e(s=""):
    L.append("    " + s if s and not s.endswith(":") else s)

def kd(name, vgpr, sgpr=96):
    acc = (vgpr + 3) // 4 * 4
    return f""".section .rodata,"a"
.p2align 6
.amdhsa_kernel {name}
  .amdhsa_next_free_vgpr {vgpr}
  .amdhsa_next_free_sgpr {sgpr}
  .amdhsa_accum_offset {acc}
  .amdhsa_group_segment_fixed_size 0
  .amdhsa_kernarg_size 64
  .amdhsa_user_sgpr_count 2
  .amdhsa_user_sgpr_kernarg_segment_ptr 1
  .amdhsa_system_sgpr_workgroup_id_x 1
.end_amdhsa_kernel
.text
"""

def start(name):
    e(".text")
    e(f".globl {name}")
    e(".p2align 8")
    e(f".type {name},@function")
    e(f"{name}:")

def srd(d, b, nbytes, extra_off=None):
    if extra_off:
        e(f"s_add_u32 s{d}, s{b}, {extra_off}")
        e(f"s_addc_u32 s{d+1}, s{b+1}, 0")
    else:
        e(f"s_mov_b32 s{d}, s{b}")
        e(f"s_mov_b32 s{d+1}, s{b+1}")
    e(f"s_mov_b32 s{d+2}, {nbytes}")
    e(f"s_mov_b32 s{d+3}, 0x00020000")

O_OFF = 0
P_OFF = 8 << 20

SLOT = 32768

V_TID = 0
V_LANE = 1
V_T0, V_T1, V_T2, V_T3 = 2, 3, 4, 5
V_XO = 8
V_WO = 12
V_KO = 16
V_VO = 20
V_ST = 21
V_AX = 24
V_AW = 36
V_AK = 48
V_AV = 56
V_FX = 64
V_FW = 72
V_ACC = 104
V_S = 168
V_QB = 200
V_KF = 64
V_KF = 232
V_PB = 200
V_VF = 64
V_M = 248
V_M2 = 249
V_SUM = 250
V_SUM2 = 251

S_X, S_W, S_K, S_V, S_O = 20, 24, 28, 32, 36
S_H, S_RB, S_WV = 40, 41, 42
S_XS, S_WS = 44, 45
S_TMP = 46
S_M0X, S_M0W = 48, 49
S_KS = 50
S_CB = 51


def common_lane_setup(xpitch_log2, wpitch_log2):
    e(f"v_and_b32 v{V_LANE}, 63, v0")
    e(f"v_lshrrev_b32 v{V_T0}, 6, v0")
    e("s_nop 0")
    e(f"v_readfirstlane_b32 s{S_WV}, v{V_T0}")
    e(f"v_lshrrev_b32 v{V_T1}, 3, v{V_LANE}")
    e(f"v_lshl_add_u32 v{V_T1}, v{V_T0}, 5, v{V_T1}")
    e(f"v_and_b32 v{V_T2}, 7, v{V_LANE}")
    for j in range(4):
        e(f"v_add_u32 v{V_T3}, {8*j}, v{V_T1}")
        e(f"v_lshrrev_b32 v{V_XO+j}, 1, v{V_T3}")
        e(f"v_and_b32 v{V_XO+j}, 7, v{V_XO+j}")
        e(f"v_xor_b32 v{V_XO+j}, v{V_XO+j}, v{V_T2}")
        e(f"v_lshlrev_b32 v{V_XO+j}, 4, v{V_XO+j}")
        e(f"v_lshl_add_u32 v{V_XO+j}, v{V_T3}, {xpitch_log2}, v{V_XO+j}")
        if j:
            e(f"v_subrev_u32 v{V_XO+j}, {1024*j}, v{V_XO+j}")
    e(f"v_lshrrev_b32 v{V_T1}, 4, v{V_LANE}")
    e(f"v_and_b32 v{V_T2}, 15, v{V_LANE}")
    e(f"v_lshlrev_b32 v{V_T3}, 2, v{V_T1}")
    e(f"v_xor_b32 v{V_T2}, v{V_T2}, v{V_T3}")
    e(f"v_lshlrev_b32 v{V_T2}, 4, v{V_T2}")
    e(f"v_lshl_add_u32 v{V_T1}, v{V_T0}, 4, v{V_T1}")
    for j in range(4):
        e(f"v_add_u32 v{V_T3}, {4*j}, v{V_T1}")
        e(f"v_lshl_add_u32 v{V_WO+j}, v{V_T3}, {wpitch_log2}, v{V_T2}")
        if j:
            e(f"v_subrev_u32 v{V_WO+j}, {1024*j}, v{V_WO+j}")
    e(f"v_and_b32 v{V_T1}, 31, v{V_LANE}")
    e(f"v_lshrrev_b32 v{V_T2}, 1, v{V_T1}")
    e(f"v_and_b32 v{V_T2}, 7, v{V_T2}")
    e(f"v_lshrrev_b32 v{V_T3}, 5, v{V_LANE}")
    e(f"v_xor_b32 v{V_T2}, v{V_T2}, v{V_T3}")
    e(f"v_lshlrev_b32 v{V_T2}, 4, v{V_T2}")
    e(f"v_lshl_add_u32 v{V_T1}, v{V_T0}, 5, v{V_T1}")
    e(f"v_lshl_add_u32 v{V_T1}, v{V_T1}, 7, v{V_T2}")
    for s in range(4):
        e(f"v_xor_b32 v{V_AX+s}, {32*s}, v{V_T1}")
        e(f"v_add_u32 v{V_AX+4+s}, 0x10000, v{V_AX+s}")
        e(f"v_add_u32 v{V_AX+8+s}, 0x20000, v{V_AX+s}")
    e(f"v_bfe_u32 v{V_T1}, v{V_LANE}, 2, 2")
    e(f"v_bfe_u32 v{V_T2}, v{V_LANE}, 4, 1")
    e(f"v_lshlrev_b32 v{V_T2}, 2, v{V_T2}")
    e(f"v_and_b32 v{V_T3}, 1, v{V_LANE}")
    e(f"v_lshl_or_b32 v{V_T2}, v{V_T3}, 1, v{V_T2}")
    e(f"v_bfe_u32 v{V_T3}, v{V_LANE}, 1, 1")
    e(f"v_or_b32 v{V_T2}, v{V_T2}, v{V_T3}")
    e(f"v_lshlrev_b32 v{V_T2}, 3, v{V_T2}")
    e(f"v_lshl_add_u32 v{V_T2}, v{V_T1}, 8, v{V_T2}")
    e(f"v_lshl_add_u32 v{V_T2}, v{V_T1}, 6, v{V_T2}")
    e(f"v_lshrrev_b32 v{V_T3}, 5, v{V_LANE}")
    for T in range(4):
        e(f"v_xor_b32 v{V_AV+T}, {64*T}, v{V_T2}")
        e(f"v_lshl_add_u32 v{V_AW+T}, v{V_T3}, 11, v{V_AV+T}")
        e(f"v_add_u32 v{V_AW+T}, 0x4000, v{V_AW+T}")
        e(f"v_add_u32 v{V_AW+4+T}, 0x10000, v{V_AW+T}")
        e(f"v_add_u32 v{V_AW+8+T}, 0x20000, v{V_AW+T}")
    e(f"s_lshl_b32 s{S_M0X}, s{S_WV}, 12")
    e(f"s_add_u32 s{S_M0W}, s{S_M0X}, 0x4000")


def dma_chunk(c, xstep, wstep):
    slot = (c % 5) * SLOT
    e(f"s_add_u32 m0, s{S_M0X}, {slot}")
    e(f"s_add_u32 s{S_TMP}, s{S_XS}, {c*xstep}")
    for j in range(4):
        e(f"buffer_load_dwordx4 v{V_XO+j}, s[{S_X}:{S_X+3}], s{S_TMP} offen offset:{1024*j} lds")
    e(f"s_add_u32 m0, s{S_M0W}, {slot}")
    e(f"s_add_u32 s{S_TMP+1}, s{S_WS}, {c*wstep}")
    for j in range(4):
        e(f"buffer_load_dwordx4 v{V_WO+j}, s[{S_W}:{S_W+3}], s{S_TMP+1} offen offset:{1024*j} lds")


def rd_x(g, buf):
    c, s = g // 4, g % 4
    slot = c % 5
    aset, off = slot // 2, (slot % 2) * SLOT
    e(f"ds_read_b128 v[{V_FX+4*buf}:{V_FX+4*buf+3}], v{V_AX+4*aset+s} offset:{off}")

def rd_w(g, buf, T):
    c, s = g // 4, g % 4
    slot = c % 5
    aset, off = slot // 2, (slot % 2) * SLOT
    r = V_FW + 16 * buf + 4 * T
    e(f"ds_read_b64_tr_b16 v[{r}:{r+1}], v{V_AW+4*aset+T} offset:{off + s*4096}")
    e(f"ds_read_b64_tr_b16 v[{r+2}:{r+3}], v{V_AW+4*aset+T} offset:{off + s*4096 + 1024}")


def gemm_core(xstep, wstep, extra_chunks, tail_hook=None):
    nchunks_total = 8 + len(extra_chunks)
    def issue(c):
        if c < 8:
            dma_chunk(c, xstep, wstep)
        else:
            extra_chunks[c]()
    for c in range(5):
        issue(c)
    issued = 5
    e(f"s_waitcnt vmcnt({8*(issued-1)})")
    e("s_barrier")
    rd_x(0, 0)
    for T in range(4):
        rd_w(0, 0, T)
    NG = 32
    for g in range(NG):
        buf = g & 1
        nb = buf ^ 1
        c, s = g // 4, g % 4
        last = (g == NG - 1)
        if s == 2:
            if c + 1 < nchunks_total:
                e(f"s_waitcnt vmcnt({8*(issued-1-(c+1))})")
                e("s_barrier")
                if c >= 1 and c + 4 < nchunks_total:
                    issue(c + 4)
                    issued += 1
                    assert issued == c + 5
        for T in range(4):
            if last:
                e(f"s_waitcnt lgkmcnt({2*(3-T)})")
            else:
                nxt = 0 if T == 0 else 1 + 2 * T
                e(f"s_waitcnt lgkmcnt({2*(3-T) + nxt})")
            a = V_FW + 16 * buf + 4 * T
            b = V_FX + 4 * buf
            acc = V_ACC + 16 * T
            cc = "0" if g == 0 else f"v[{acc}:{acc+15}]"
            e(f"v_mfma_f32_32x32x16_bf16 v[{acc}:{acc+15}], v[{a}:{a+3}], v[{b}:{b+3}], {cc}")
            if not last:
                if T == 0:
                    rd_x(g + 1, nb)
                rd_w(g + 1, nb, T)
            elif tail_hook:
                tail_hook(T)


def k1():
    name = "k1_kernel"
    start(name)
    e("s_cmp_ge_u32 s2, 256")
    e("s_cbranch_scc1 K1_DONE")
    e("s_load_dwordx16 s[4:19], s[0:1], 0")
    e(f"s_and_b32 s{S_H}, s2, 7")
    e(f"s_lshl_b32 s{S_H}, s{S_H}, 2")
    e(f"s_lshr_b32 s{S_TMP}, s2, 3")
    e(f"s_and_b32 s{S_TMP}, s{S_TMP}, 3")
    e(f"s_add_u32 s{S_H}, s{S_H}, s{S_TMP}")
    e(f"s_lshr_b32 s{S_RB}, s2, 5")
    common_lane_setup(10, 13)
    e(f"v_lshrrev_b32 v{V_T0}, 6, v0")
    e(f"v_and_b32 v{V_T0}, 1, v{V_T0}")
    e(f"v_lshrrev_b32 v{V_T1}, 4, v{V_LANE}")
    e(f"v_lshl_add_u32 v{V_T0}, v{V_T0}, 5, v{V_T1}")
    e(f"v_lshlrev_b32 v{V_T0}, 8, v{V_T0}")
    e(f"v_and_b32 v{V_T2}, 15, v{V_LANE}")
    for j in range(4):
        e(f"v_add_u32 v{V_T3}, {4*j}, v{V_T1}")
        e(f"v_xor_b32 v{V_T3}, v{V_T3}, v{V_T2}")
        e(f"v_lshl_add_u32 v{V_KO+j}, v{V_T3}, 4, v{V_T0}")
    e(f"v_lshlrev_b32 v{V_T3}, 2, v{V_T1}")
    e(f"v_xor_b32 v{V_T3}, v{V_T3}, v{V_T2}")
    e(f"v_lshl_add_u32 v{V_VO}, v{V_T3}, 4, v{V_T0}")
    e(f"v_lshrrev_b32 v{V_T0}, 7, v0")
    e(f"v_and_b32 v{V_T1}, 31, v{V_LANE}")
    e(f"v_and_b32 v{V_T2}, 15, v{V_LANE}")
    e(f"v_lshrrev_b32 v{V_T3}, 5, v{V_LANE}")
    e(f"v_xor_b32 v{V_T2}, v{V_T2}, v{V_T3}")
    e(f"v_lshlrev_b32 v{V_T2}, 4, v{V_T2}")
    e(f"v_lshl_add_u32 v{V_T2}, v{V_T1}, 8, v{V_T2}")
    e(f"v_lshl_add_u32 v{V_T2}, v{V_T0}, 14, v{V_T2}")
    e(f"v_add_u32 v{V_T2}, {3*SLOT}, v{V_T2}")
    for s in range(8):
        e(f"v_xor_b32 v{V_AK+s}, {32*s}, v{V_T2}")
    e(f"v_lshlrev_b32 v{V_T0}, 14, v{V_T0}")
    e(f"v_lshl_add_u32 v{V_T0}, v{V_T3}, 10, v{V_T0}")
    e(f"v_add_u32 v{V_T0}, {4*SLOT}, v{V_T0}")
    for T in range(4):
        e(f"v_add_u32 v{V_AV+T}, v{V_AV+T}, v{V_T0}")
    e(f"v_lshrrev_b32 v{V_T0}, 6, v0")
    e(f"v_lshl_add_u32 v{V_T0}, v{V_T0}, 5, v{V_T1}")
    e(f"v_lshlrev_b32 v{V_T0}, 13, v{V_T0}")
    e(f"v_lshl_add_u32 v{V_ST}, v{V_T3}, 4, v{V_T0}")
    e("s_waitcnt lgkmcnt(0)")
    srd(S_X, 4, 1 << 20)
    srd(S_K, 6, 8 << 20)
    srd(S_V, 8, 8 << 20)
    srd(S_W, 10, 4 << 20)
    srd(S_O, 18, 8 << 20)
    e(f"s_lshl_b32 s{S_XS}, s{S_RB}, 17")
    e(f"s_lshl_b32 s{S_WS}, s{S_H}, 8")
    e(f"s_lshr_b32 s{S_KS}, s{S_WV}, 1")
    e(f"s_lshl_b32 s{S_TMP}, s{S_RB}, 1")
    e(f"s_add_u32 s{S_KS}, s{S_KS}, s{S_TMP}")
    e(f"s_lshl_b32 s{S_KS}, s{S_KS}, 5")
    e(f"s_add_u32 s{S_KS}, s{S_KS}, s{S_H}")
    e(f"s_lshl_b32 s{S_KS}, s{S_KS}, 14")

    def k_chunk():
        e(f"s_lshl_b32 s{S_TMP}, s{S_WV}, 13")
        e(f"s_add_u32 m0, s{S_TMP}, {3*SLOT}")
        e(f"s_add_u32 s{S_TMP+1}, s{S_KS}, 4096")
        for j in range(4):
            e(f"buffer_load_dwordx4 v{V_KO+j}, s[{S_K}:{S_K+3}], s{S_KS} offen offset:{1024*j} lds")
        e(f"s_add_u32 m0, s{S_TMP}, {3*SLOT+4096}")
        e("s_nop 0")
        for j in range(4):
            e(f"buffer_load_dwordx4 v{V_KO+j}, s[{S_K}:{S_K+3}], s{S_TMP+1} offen offset:{1024*j} lds")

    def v_chunk():
        e(f"s_lshl_b32 s{S_TMP}, s{S_WV}, 13")
        e(f"s_add_u32 m0, s{S_TMP}, {4*SLOT}")
        e(f"s_add_u32 s{S_TMP+1}, s{S_KS}, 4096")
        for j in range(4):
            e(f"buffer_load_dwordx4 v{V_VO}, s[{S_V}:{S_V+3}], s{S_KS} offen offset:{1024*j} lds")
        e(f"s_add_u32 m0, s{S_TMP}, {4*SLOT+4096}")
        e("s_nop 0")
        for j in range(4):
            e(f"buffer_load_dwordx4 v{V_VO}, s[{S_V}:{S_V+3}], s{S_TMP+1} offen offset:{1024*j} lds")

    gemm_core(128, 64 * 8192, {8: k_chunk, 9: v_chunk})

    def rd_k(i):
        s, t = i // 2, i % 2
        r = V_KF + 4 * (i % 4)
        e(f"ds_read_b128 v[{r}:{r+3}], v{V_AK+s} offset:{8192*t}")
    for i in range(4):
        rd_k(i)
    e("s_nop 7")
    e("s_nop 7")
    for T in range(4):
        for q in range(8):
            a = V_ACC + 16 * T + 2 * q
            e(f"v_cvt_pk_bf16_f32 v{V_QB + 8*T + q}, v{a}, v{a+1}")
    e("s_nop 1")
    for i in range(16):
        s, t = i // 2, i % 2
        r = V_KF + 4 * (i % 4)
        rem = min(3, 15 - i)
        e(f"s_waitcnt lgkmcnt({rem})")
        acc = V_S + 16 * t
        cc = "0" if s == 0 else f"v[{acc}:{acc+15}]"
        b = V_QB + 4 * s
        e(f"v_mfma_f32_32x32x16_bf16 v[{acc}:{acc+15}], v[{r}:{r+3}], v[{b}:{b+3}], {cc}")
        if i + 4 < 16:
            rd_k(i + 4)
    e("s_waitcnt vmcnt(0)")
    e("s_barrier")
    def rd_v(u, buf):
        for T in range(4):
            r = V_VF + 16 * buf + 4 * T
            e(f"ds_read_b64_tr_b16 v[{r}:{r+1}], v{V_AV+T} offset:{u*4096}")
            e(f"ds_read_b64_tr_b16 v[{r+2}:{r+3}], v{V_AV+T} offset:{u*4096+2048}")
    rd_v(0, 0)
    e("s_nop 7")
    e("s_nop 7")
    e(f"v_max3_f32 v{V_M}, v{V_S}, v{V_S+1}, v{V_S+2}")
    for i in range(3, 31, 2):
        e(f"v_max3_f32 v{V_M}, v{V_M}, v{V_S+i}, v{V_S+i+1}")
    e(f"v_max_f32 v{V_M}, v{V_M}, v{V_S+31}")
    e(f"v_mov_b32 v{V_M2}, v{V_M}")
    e("s_nop 1")
    e(f"v_permlane32_swap_b32 v{V_M}, v{V_M2}")
    e("s_nop 1")
    e(f"v_max_f32 v{V_M}, v{V_M}, v{V_M2}")
    e(f"s_mov_b32 s{S_TMP}, 0x3e0293ee")
    e(f"v_mul_f32 v{V_M}, s{S_TMP}, v{V_M}")
    for i in range(32):
        e(f"v_fma_f32 v{V_S+i}, v{V_S+i}, s{S_TMP}, -v{V_M}")
    for i in range(32):
        e(f"v_exp_f32 v{V_S+i}, v{V_S+i}")
    e("s_nop 0")
    e(f"v_add_f32 v{V_SUM}, v{V_S}, v{V_S+1}")
    e(f"v_add_f32 v{V_SUM2}, v{V_S+2}, v{V_S+3}")
    for i in range(4, 32, 2):
        e(f"v_add_f32 v{V_SUM}, v{V_SUM}, v{V_S+i}")
        e(f"v_add_f32 v{V_SUM2}, v{V_SUM2}, v{V_S+i+1}")
    e(f"v_add_f32 v{V_SUM}, v{V_SUM}, v{V_SUM2}")
    e(f"v_mov_b32 v{V_SUM2}, v{V_SUM}")
    e("s_nop 1")
    e(f"v_permlane32_swap_b32 v{V_SUM}, v{V_SUM2}")
    e("s_nop 1")
    e(f"v_add_f32 v{V_SUM}, v{V_SUM}, v{V_SUM2}")
    e(f"v_rcp_f32 v{V_SUM}, v{V_SUM}")
    e("s_nop 0")
    for i in range(32):
        e(f"v_mul_f32 v{V_S+i}, v{V_S+i}, v{V_SUM}")
    for i in range(16):
        e(f"v_cvt_pk_bf16_f32 v{V_PB+i}, v{V_S+2*i}, v{V_S+2*i+1}")
    e("s_nop 1")
    for u in range(4):
        buf = u & 1
        e("s_waitcnt lgkmcnt(0)")
        if u + 1 < 4:
            rd_v(u + 1, buf ^ 1)
        for T in range(4):
            a = V_VF + 16 * buf + 4 * T
            b = V_PB + 4 * u
            acc = V_ACC + 16 * T
            cc = "0" if u == 0 else f"v[{acc}:{acc+15}]"
            e(f"v_mfma_f32_32x32x16_bf16 v[{acc}:{acc+15}], v[{a}:{a+3}], v[{b}:{b+3}], {cc}")
    e("s_nop 7")
    e("s_nop 7")
    e(f"s_lshl_b32 s{S_TMP}, s{S_RB}, 20")
    e(f"s_add_u32 s{S_TMP}, s{S_TMP}, s{S_WS}")
    for T in range(4):
        for q in range(2):
            a = V_ACC + 16 * T + 8 * q
            d = V_S + 8 * T + 4 * q
            for i in range(4):
                e(f"v_cvt_pk_bf16_f32 v{d+i}, v{a+2*i}, v{a+2*i+1}")
            e(f"buffer_store_dwordx4 v[{d}:{d+3}], v{V_ST}, s[{S_O}:{S_O+3}], s{S_TMP} offen offset:{64*T+32*q}")
    e("K1_DONE:")
    e("s_endpgm")
    L.append(kd(name, 256))


def k2():
    name = "k2_kernel"
    start(name)
    e("s_cmp_ge_u32 s2, 256")
    e("s_cbranch_scc1 K2_DONE")
    e("s_load_dwordx16 s[4:19], s[0:1], 0")
    e(f"s_and_b32 s{S_KS}, s2, 7")
    e(f"s_lshr_b32 s{S_CB}, s2, 3")
    e(f"s_and_b32 s{S_CB}, s{S_CB}, 3")
    e(f"s_lshr_b32 s{S_RB}, s2, 5")
    common_lane_setup(13, 10)
    e(f"v_lshlrev_b32 v{V_ST}, 4, v{V_LANE}")
    e("s_waitcnt lgkmcnt(0)")
    srd(S_X, 18, 8 << 20)
    srd(S_W, 12, 4 << 20)
    srd(S_O, 18, 16 << 20, extra_off=P_OFF)
    e(f"s_lshl_b32 s{S_XS}, s{S_RB}, 20")
    e(f"s_lshl_b32 s{S_TMP}, s{S_KS}, 10")
    e(f"s_add_u32 s{S_XS}, s{S_XS}, s{S_TMP}")
    e(f"s_lshl_b32 s{S_WS}, s{S_KS}, 19")
    e(f"s_lshl_b32 s{S_TMP}, s{S_CB}, 8")
    e(f"s_add_u32 s{S_WS}, s{S_WS}, s{S_TMP}")
    gemm_core(128, 64 * 1024, {})
    e("s_nop 7")
    e("s_nop 7")
    e(f"s_lshl_b32 s{S_TMP}, s{S_KS}, 3")
    e(f"s_add_u32 s{S_TMP}, s{S_TMP}, s{S_RB}")
    e(f"s_lshl_b32 s{S_TMP}, s{S_TMP}, 2")
    e(f"s_add_u32 s{S_TMP}, s{S_TMP}, s{S_CB}")
    e(f"s_lshl_b32 s{S_TMP}, s{S_TMP}, 2")
    e(f"s_add_u32 s{S_TMP}, s{S_TMP}, s{S_WV}")
    e(f"s_lshl_b32 s{S_TMP}, s{S_TMP}, 14")
    for T in range(4):
        if T:
            e(f"s_add_u32 s{S_TMP}, s{S_TMP}, 4096")
        for q4 in range(4):
            a = V_ACC + 16 * T + 4 * q4
            e(f"buffer_store_dwordx4 v[{a}:{a+3}], v{V_ST}, s[{S_O}:{S_O+3}], s{S_TMP} offen offset:{1024*q4}")
    e("K2_DONE:")
    e("s_endpgm")
    L.append(kd(name, 256))


def k3():
    name = "k3_kernel"
    start(name)
    e("s_cmp_ge_u32 s2, 256")
    e("s_cbranch_scc1 K3_DONE")
    e("s_load_dwordx16 s[4:19], s[0:1], 0")
    e("v_and_b32 v1, 63, v0")
    e("v_lshrrev_b32 v2, 6, v0")
    e("s_lshl_b32 s3, s2, 2")
    e("v_add_u32 v2, s3, v2")
    e("v_lshlrev_b32 v3, 11, v2")
    e("v_lshl_add_u32 v3, v1, 4, v3")
    e("v_and_b32 v4, 1, v2")
    e("v_bfe_u32 v5, v2, 1, 2")
    e("v_bfe_u32 v6, v2, 3, 2")
    e("v_bfe_u32 v7, v2, 5, 2")
    e("v_lshrrev_b32 v8, 7, v2")
    e("v_and_b32 v9, 31, v1")
    e("v_lshl_add_u32 v9, v6, 5, v9")
    e("v_lshl_add_u32 v9, v8, 7, v9")
    e("v_lshrrev_b32 v10, 5, v1")
    e("v_lshlrev_b32 v10, 3, v10")
    e("v_lshl_add_u32 v10, v4, 4, v10")
    e("v_lshl_add_u32 v10, v5, 5, v10")
    e("v_lshl_add_u32 v10, v7, 7, v10")
    e("v_lshlrev_b32 v10, 1, v10")
    e("v_lshl_add_u32 v9, v9, 10, v10")
    e("s_waitcnt lgkmcnt(0)")
    srd(20, 18, 16 << 20, extra_off=P_OFF)
    srd(24, 14, 1 << 20)
    for ks in range(8):
        e(f"s_mov_b32 s30, {ks << 21}")
        e(f"buffer_load_dwordx4 v[{16+8*ks}:{16+8*ks+3}], v3, s[20:23], s30 offen")
        e(f"buffer_load_dwordx4 v[{16+8*ks+4}:{16+8*ks+7}], v3, s[20:23], s30 offen offset:1024")
    for ks in range(1, 8):
        e(f"s_waitcnt vmcnt({2*(7-ks)})")
        for i in range(8):
            e(f"v_add_f32 v{16+i}, v{16+i}, v{16+8*ks+i}")
    for i in range(4):
        e(f"v_cvt_pk_bf16_f32 v{12+i}, v{16+2*i}, v{16+2*i+1}")
    e("buffer_store_dwordx4 v[12:15], v9, s[24:27], 0 offen")
    e("K3_DONE:")
    e("s_endpgm")
    L.append(kd(name, 80))


def main():
    out = sys.argv[1]
    hdr = HEADER
    hdr += "; @launch kernel=k1_kernel grid=(256,1,1) block=(256,1,1) lds=163840\n"
    hdr += "; @launch kernel=k2_kernel grid=(256,1,1) block=(256,1,1) lds=163840\n"
    hdr += "; @launch kernel=k3_kernel grid=(256,1,1) block=(256,1,1) lds=0\n"
    hdr += '.amdgcn_target "amdgcn-amd-amdhsa--gfx950"\n'
    k1(); k2(); k3()
    open(out, "w").write(hdr + "\n".join(L) + "\n")

main()
```

```python
import sys, re
src, outp, a, b = sys.argv[1], sys.argv[2], int(sys.argv[3]), int(sys.argv[4])
s = open(src).read()
names = re.findall(r"; @launch kernel=(\w+)", s)
for i, n in enumerate(names):
    code = f"""{n}:
    s_cmp_lg_u32 s2, 0
    s_cbranch_scc1 DG_SKIP{i}
    s_memrealtime s[90:91]
    s_load_dwordx2 s[92:93], s[0:1], 56
    s_waitcnt lgkmcnt(0)
    s_add_u32 s92, s92, {(100<<20) + 8*i}
    s_addc_u32 s93, s93, 0
    v_mov_b32 v250, s90
    v_mov_b32 v251, s91
    v_mov_b32 v252, 0
    global_store_dwordx2 v252, v[250:251], s[92:93]
DG_SKIP{i}:
"""
    s = s.replace(f"{n}:\n", code, 1)
n = len(names)
last = [m for m in re.finditer(r"; @launch kernel=[^\n]*\n", s)][-1]
s = s[:last.end()] + "; @launch kernel=dg_kernel grid=(1,1,1) block=(64,1,1) lds=0\n" + s[last.end():]
s = re.sub(r"\.amdhsa_next_free_vgpr \d+", ".amdhsa_next_free_vgpr 256", s)
s = re.sub(r"\.amdhsa_accum_offset \d+", ".amdhsa_accum_offset 256", s)
s = re.sub(r"\.amdhsa_next_free_sgpr \d+", ".amdhsa_next_free_sgpr 100", s)
s += f"""
.text
.globl dg_kernel
.p2align 8
.type dg_kernel,@function
dg_kernel:
    s_cmp_lg_u32 s2, 0
    s_cbranch_scc1 DG_END
    s_memrealtime s[10:11]
    s_load_dwordx2 s[4:5], s[0:1], 56
    s_waitcnt lgkmcnt(0)
    s_add_u32 s4, s4, {100<<20}
    s_addc_u32 s5, s5, 0
    v_mov_b32 v2, 0
    global_load_dwordx2 v[4:5], v2, s[4:5] offset:{8*a} sc0 sc1
    global_load_dwordx2 v[6:7], v2, s[4:5] offset:{8*min(b,n-1)} sc0 sc1
    s_waitcnt vmcnt(0)
    v_readfirstlane_b32 s12, v4
    v_readfirstlane_b32 s13, v6
    s_nop 4
"""
if b >= n:
    s += "    s_mov_b32 s13, s10\n"
s += f"""
    s_sub_u32 s14, s13, s12
    s_min_u32 s14, s14, 20000
    s_mul_i32 s14, s14, 10
    s_add_u32 s14, s14, s10
DG_LOOP:
    s_memrealtime s[16:17]
    s_waitcnt lgkmcnt(0)
    s_sub_u32 s18, s14, s16
    s_cmp_gt_i32 s18, 0
    s_cbranch_scc1 DG_LOOP
DG_END:
    s_endpgm
.section .rodata,"a"
.p2align 6
.amdhsa_kernel dg_kernel
  .amdhsa_next_free_vgpr 16
  .amdhsa_next_free_sgpr 32
  .amdhsa_accum_offset 16
  .amdhsa_group_segment_fixed_size 0
  .amdhsa_kernarg_size 64
  .amdhsa_user_sgpr_count 2
  .amdhsa_user_sgpr_kernarg_segment_ptr 1
  .amdhsa_system_sgpr_workgroup_id_x 1
.end_amdhsa_kernel
"""
open(outp, "w").write(s)
```

```python
import sys

HEADER = """; Kernarg layout for this problem (64 bytes, ptrs only, base s[0:1]):
"""
ARGS = sys.argv[2:]
def opt(name, default):
    for a in ARGS:
        if a.startswith(name + "="):
            return a.split("=", 1)[1]
    return default

L = []
def e(s=""):
    L.append("    " + s if s and not s.endswith(":") else s)

def kd(name, vgpr, sgpr=100):
    acc = (vgpr + 3) // 4 * 4
    return f""".section .rodata,"a"
.p2align 6
.amdhsa_kernel {name}
  .amdhsa_next_free_vgpr {vgpr}
  .amdhsa_next_free_sgpr {sgpr}
  .amdhsa_accum_offset {acc}
  .amdhsa_group_segment_fixed_size 0
  .amdhsa_kernarg_size 64
  .amdhsa_user_sgpr_count 2
  .amdhsa_user_sgpr_kernarg_segment_ptr 1
  .amdhsa_system_sgpr_workgroup_id_x 1
.end_amdhsa_kernel
.text
"""

def start(name):
    e(".text")
    e(f".globl {name}")
    e(".p2align 8")
    e(f".type {name},@function")
    e(f"{name}:")

def srd(d, b, nbytes, extra_off=None):
    if extra_off:
        e(f"s_add_u32 s{d}, s{b}, {extra_off}")
        e(f"s_addc_u32 s{d+1}, s{b+1}, 0")
    else:
        e(f"s_mov_b32 s{d}, s{b}")
        e(f"s_mov_b32 s{d+1}, s{b+1}")
    e(f"s_mov_b32 s{d+2}, {nbytes}")
    e(f"s_mov_b32 s{d+3}, 0x00020000")

STAMPS = "--stamps" in ARGS
NST = [0]
S_WV = 42
def stamp(real=False):
    if not STAMPS: return
    i = NST[0]; NST[0] += 1
    assert i < 22
    e(f"{'s_memrealtime' if real else 's_memtime'} s[{56+2*i}:{57+2*i}]")

def stamp_flush(kidx):
    if not STAMPS: return
    e("s_waitcnt vmcnt(0) lgkmcnt(0)")
    stamp(False)
    stamp(True)
    n = NST[0]
    e("s_waitcnt lgkmcnt(0)")
    srd(20, 18, 1 << 20, extra_off=(64 << 20) + (kidx << 20))
    e(f"s_lshl_b32 s3, s2, 3")
    e(f"s_add_u32 s3, s3, s{S_WV}")
    e(f"s_lshl_b32 s3, s3, 8")
    e("v_mov_b32 v2, 0")
    e("s_mov_b64 exec, 1")
    for i in range(n):
        e(f"v_mov_b32 v4, s{56+2*i}")
        e(f"v_mov_b32 v5, s{57+2*i}")
        e(f"buffer_store_dwordx2 v[4:5], v2, s[20:23], s3 offen offset:{8*i}")
        e("s_nop 1")

P_OFF = 8 << 20

V_LANE = 1
V_T0, V_T1, V_T2, V_T3 = 2, 3, 4, 5
V_ST = 6
V_AX = 8
V_AW = 12
V_AK = 16
V_AV = 24
V_FX = 32
V_FW = 40
V_ACC = 72
V_S = 136
V_QB = 168
V_KF = 200
V_PB = 168
V_VF = 32
V_M, V_M2, V_SUM, V_SUM2 = 216, 217, 218, 219
NVGPR = 224

S_A, S_B = 20, 24
S_H, S_RB = 40, 41
S_TMP = 46
S_ROT = 48
S_BASE = 49
S_KS = 50
S_CB = 51


def lbar(idx):
    if STAMPS and (idx % 2 == 1 or idx == -1):
        stamp()
    e("s_barrier")

def lend(kidx):
    stamp_flush(kidx)
    NST[0] = 2
    e("s_endpgm")

class VMQ:
    def __init__(self): self.q = []
    def push(self, tag): self.q.append(tag)
    def wait(self, tags):
        last = -1
        for i, t in enumerate(self.q):
            if t in tags: last = i
        if last < 0: return
        n = len(self.q) - 1 - last
        assert n <= 63
        e(f"s_waitcnt vmcnt({n})")
        self.q = self.q[last + 1:]


def w_frag_addr_setup(base):
    e(f"v_bfe_u32 v{V_T1}, v{V_LANE}, 2, 2")
    e(f"v_bfe_u32 v{V_T2}, v{V_LANE}, 4, 1")
    e(f"v_lshlrev_b32 v{V_T2}, 2, v{V_T2}")
    e(f"v_and_b32 v{V_T3}, 1, v{V_LANE}")
    e(f"v_lshl_or_b32 v{V_T2}, v{V_T3}, 1, v{V_T2}")
    e(f"v_bfe_u32 v{V_T3}, v{V_LANE}, 1, 1")
    e(f"v_or_b32 v{V_T2}, v{V_T2}, v{V_T3}")
    e(f"v_lshlrev_b32 v{V_T2}, 3, v{V_T2}")
    e(f"v_lshl_add_u32 v{V_T2}, v{V_T1}, 8, v{V_T2}")
    e(f"v_lshl_add_u32 v{V_T2}, v{V_T1}, 6, v{V_T2}")
    e(f"v_lshrrev_b32 v{V_T3}, 5, v{V_LANE}")
    for T in range(4):
        e(f"v_xor_b32 v{V_AV+T}, {64*T}, v{V_T2}")
        e(f"v_lshl_add_u32 v{V_AW+T}, v{V_T3}, 11, v{V_AV+T}")
        if base:
            e(f"v_add_u32 v{V_AW+T}, {base}, v{V_AW+T}")


def gemm_compute(rd_x, rd_w, nbar_last, tail_rounds_hook=None):
    stamp()
    e("s_barrier")
    rd_x(0, 0)
    for T in range(4):
        rd_w(0, 0, T)
    NG = 32
    for g in range(NG):
        buf = g & 1
        nb = buf ^ 1
        last = (g == NG - 1)
        if g & 1 and (g >> 1) <= nbar_last:
            if (g >> 1) % 2 == 1: stamp()
            e("s_barrier")
        for T in range(4):
            if last:
                e(f"s_waitcnt lgkmcnt({2*(3-T)})")
            else:
                nxt = 0 if T == 0 else 1 + 2 * T
                e(f"s_waitcnt lgkmcnt({2*(3-T) + nxt})")
            a = V_FW + 16 * buf + 4 * T
            b = V_FX + 4 * buf
            acc = V_ACC + 16 * T
            cc = "0" if g == 0 else f"v[{acc}:{acc+15}]"
            e(f"v_mfma_f32_32x32x16_bf16 v[{acc}:{acc+15}], v[{a}:{a+3}], v[{b}:{b+3}], {cc}")
            if not last:
                if T == 0:
                    rd_x(g + 1, nb)
                rd_w(g + 1, nb, T)


def w_loader(srd_reg, pitch_log2, nslots, lds_base, flags, nbar_last, kidx):
    e(f"v_lshrrev_b32 v{V_T1}, 4, v{V_LANE}")
    e(f"v_and_b32 v{V_T2}, 15, v{V_LANE}")
    e(f"v_lshlrev_b32 v{V_T3}, 2, v{V_T1}")
    e(f"v_xor_b32 v{V_T2}, v{V_T2}, v{V_T3}")
    e(f"v_lshlrev_b32 v{V_T2}, 4, v{V_T2}")
    e(f"v_lshl_add_u32 v8, v{V_T1}, {pitch_log2}, v{V_T2}")
    for j in range(1, 8):
        e(f"v_add_u32 v{8+j}, {(4*j << pitch_log2) - 1024*(j & 3)}, v8")
    q = VMQ()
    def issue(c):
        slot = c % nslots
        e(f"s_add_u32 s{S_TMP}, s{S_ROT}, {c}")
        e(f"s_and_b32 s{S_TMP}, s{S_TMP}, 15")
        e(f"s_lshl_b32 s{S_TMP}, s{S_TMP}, {pitch_log2 + 5}")
        e(f"s_add_u32 s{S_TMP}, s{S_TMP}, s{S_BASE}")
        for j in range(8):
            if j % 4 == 0:
                e(f"s_mov_b32 m0, {lds_base + slot * 8192 + j * 1024}")
                e("s_nop 0")
            e(f"buffer_load_dwordx4 v{8+j}, s[{srd_reg}:{srd_reg+3}], s{S_TMP} offen offset:{1024*(j&3)} {flags} lds")
            q.push(c)
    DW = int(opt("dw", str(nslots)))
    for c in range(DW):
        issue(c)
    nxt = DW
    q.wait({0})
    lbar(-1)
    if nxt < nslots:
        issue(nxt); nxt += 1
    for r in range(0, 15):
        q.wait({r + 1})
        lbar(r)
        if nxt <= r + nslots - 1 and nxt < 16:
            issue(nxt); nxt += 1
    assert nxt == 16
    lend(kidx)


def k1():
    name = "k1_kernel"
    NST[0] = 0
    WQ_BASE, X_BASE, K_BASE, V_BASE = 0, 49152, 98304, 131072
    start(name)
    e("s_cmp_ge_u32 s2, 256")
    e("s_cbranch_scc1 K1_DONE")
    stamp(True)
    stamp()
    e("s_load_dwordx16 s[4:19], s[0:1], 0")
    e(f"v_and_b32 v{V_LANE}, 63, v0")
    e(f"v_lshrrev_b32 v{V_T0}, 6, v0")
    e(f"s_and_b32 s{S_H}, s2, 7")
    e(f"v_readfirstlane_b32 s{S_WV}, v{V_T0}")
    e(f"s_lshl_b32 s{S_H}, s{S_H}, 2")
    e(f"s_lshr_b32 s{S_TMP}, s2, 3")
    e(f"s_and_b32 s{S_TMP}, s{S_TMP}, 3")
    e(f"s_add_u32 s{S_H}, s{S_H}, s{S_TMP}")
    e(f"s_lshr_b32 s{S_RB}, s2, 5")
    e(f"s_lshl_b32 s{S_ROT}, s{S_TMP}, 1")
    e(f"s_add_u32 s{S_ROT}, s{S_ROT}, s{S_RB}")
    e(f"s_and_b32 s{S_ROT}, s{S_ROT}, 7")
    if opt("rot", "1") == "0":
        e(f"s_mov_b32 s{S_ROT}, 0")
    e(f"s_cmp_lt_u32 s{S_WV}, 4")
    e("s_cbranch_scc1 K1_COMPUTE")
    e(f"s_cmp_eq_u32 s{S_WV}, 4")
    e("s_cbranch_scc1 K1_LW")
    e(f"s_cmp_eq_u32 s{S_WV}, 5")
    e("s_cbranch_scc1 K1_LX")

    e(f"v_lshrrev_b32 v{V_T1}, 4, v{V_LANE}")
    e(f"v_and_b32 v{V_T2}, 15, v{V_LANE}")
    e(f"v_lshlrev_b32 v{V_T0}, 8, v{V_T1}")
    e(f"s_lshl_b32 s{S_BASE}, s{S_RB}, 6")
    e(f"s_add_u32 s{S_BASE}, s{S_BASE}, s{S_H}")
    e(f"s_lshl_b32 s{S_BASE}, s{S_BASE}, 14")
    e(f"s_cmp_eq_u32 s{S_WV}, 7")
    e("s_cbranch_scc1 K1_LV")
    kvf = opt("kvflags", "nt")
    KPRO = int(opt("kpro", "4")); KPER = int(opt("kper", "4"))
    VSTART = int(opt("vstart", "6")); VPER = int(opt("vper", "4"))
    def kv_issue(p, srd_reg, lds_base, voff):
        if p % 4 == 0:
            e(f"s_mov_b32 m0, {lds_base + p * 1024}")
            e(f"s_add_u32 s{S_TMP}, s{S_BASE}, {(p >> 4) * 32 * 16384 + (p & 15) * 1024}")
        e(f"buffer_load_dwordx4 v{voff}, s[{srd_reg}:{srd_reg+3}], s{S_TMP} offen offset:{1024*(p&3)} {kvf} lds")
    for j in range(4):
        e(f"v_add_u32 v{V_T3}, {4*j}, v{V_T1}")
        e(f"v_xor_b32 v{V_T3}, v{V_T3}, v{V_T2}")
        e(f"v_lshl_add_u32 v{8+j}, v{V_T3}, 4, v{V_T0}")
    e("s_waitcnt lgkmcnt(0)")
    srd(S_A, 6, 8 << 20)
    p = 0
    for _ in range(KPRO):
        kv_issue(p, S_A, K_BASE, 8 + (p & 3)); p += 1
    lbar(-1)
    for r in range(16):
        if r == 15:
            assert p == 32
            e("s_waitcnt vmcnt(0)")
        lbar(r)
        for _ in range(KPER):
            if p < 32:
                kv_issue(p, S_A, K_BASE, 8 + (p & 3)); p += 1
    lend(0)
    e("K1_LV:")
    e(f"v_lshlrev_b32 v{V_T3}, 2, v{V_T1}")
    e(f"v_xor_b32 v{V_T3}, v{V_T3}, v{V_T2}")
    e(f"v_lshl_add_u32 v8, v{V_T3}, 4, v{V_T0}")
    e("s_waitcnt lgkmcnt(0)")
    srd(S_A, 8, 8 << 20)
    p = 0
    for _ in range(int(opt("vpro", "0"))):
        kv_issue(p, S_A, V_BASE, 8); p += 1
    lbar(-1)
    for r in range(16):
        lbar(r)
        if r >= VSTART:
            for _ in range(VPER):
                if p < 32:
                    kv_issue(p, S_A, V_BASE, 8); p += 1
    assert p == 32
    e("s_waitcnt vmcnt(0)")
    lbar(17)
    lend(0)

    e("K1_LW:")
    e(f"s_lshl_b32 s{S_BASE}, s{S_H}, 8")
    e(f"s_lshl_b32 s{S_ROT}, s{S_ROT}, 1")
    e("s_waitcnt lgkmcnt(0)")
    srd(S_A, 10, 4 << 20)
    w_loader(S_A, 13, 6, WQ_BASE, opt("wqflags", "nt"), 15, 0)

    e("K1_LX:")
    e(f"v_lshrrev_b32 v{V_T1}, 3, v{V_LANE}")
    e(f"v_and_b32 v{V_T2}, 7, v{V_LANE}")
    for i in range(8):
        e(f"v_add_u32 v{V_T3}, {8*i}, v{V_T1}")
        e(f"v_bfe_u32 v{8+i}, v{V_T3}, 1, 3")
        e(f"v_xor_b32 v{8+i}, v{8+i}, v{V_T2}")
        e(f"v_lshlrev_b32 v{8+i}, 4, v{8+i}")
        e(f"v_lshl_add_u32 v{8+i}, v{V_T3}, 10, v{8+i}")
        if i & 3:
            e(f"v_subrev_u32 v{8+i}, {1024*(i&3)}, v{8+i}")
    e(f"s_lshl_b32 s{S_BASE}, s{S_RB}, 17")
    e("s_waitcnt lgkmcnt(0)")
    srd(S_A, 4, 1 << 20)
    q = VMQ()
    xf = opt("xflags", "")
    def x_issue(n):
        j, half = n >> 1, n & 1
        e(f"s_add_u32 s{S_TMP}, s{S_ROT}, {j}")
        e(f"s_and_b32 s{S_TMP}, s{S_TMP}, 7")
        e(f"s_lshl_b32 s{S_TMP}, s{S_TMP}, 7")
        e(f"s_add_u32 s{S_TMP}, s{S_TMP}, s{S_BASE}")
        if half:
            e(f"s_add_u32 s{S_TMP}, s{S_TMP}, 65536")
        for i in range(8):
            if i % 4 == 0:
                e(f"s_mov_b32 m0, {X_BASE + (n % 6) * 8192 + i * 1024}")
                e("s_nop 0")
            e(f"buffer_load_dwordx4 v{8+i}, s[{S_A}:{S_A+3}], s{S_TMP} offen offset:{1024*(i&3)} {xf} lds")
            q.push(j)
    DX = int(opt("dx", "6"))
    for n in range(DX):
        x_issue(n)
    nxt = DX
    q.wait({0})
    lbar(-1)
    if nxt < 6:
        x_issue(nxt); nxt += 1
    for r in range(15):
        q.wait({(r + 1) >> 1})
        lbar(r)
        if nxt < 16:
            jfree = (r - 2) >> 1 if r >= 2 else -1
            if (nxt >> 1) - 3 <= jfree:
                x_issue(nxt); nxt += 1
    assert nxt == 16
    lend(0)

    e("K1_COMPUTE:")
    e(f"v_and_b32 v{V_T1}, 31, v{V_LANE}")
    e(f"v_bfe_u32 v{V_T2}, v{V_T1}, 1, 3")
    e(f"v_lshrrev_b32 v{V_T3}, 5, v{V_LANE}")
    e(f"v_xor_b32 v{V_T2}, v{V_T2}, v{V_T3}")
    e(f"v_lshlrev_b32 v{V_T2}, 4, v{V_T2}")
    e(f"v_lshl_add_u32 v{V_T1}, v{V_T0}, 5, v{V_T1}")
    e(f"v_lshl_add_u32 v{V_T1}, v{V_T1}, 7, v{V_T2}")
    e(f"v_add_u32 v{V_T1}, {X_BASE}, v{V_T1}")
    for s in range(4):
        e(f"v_xor_b32 v{V_AX+s}, {32*s}, v{V_T1}")
    w_frag_addr_setup(WQ_BASE)
    e(f"v_lshrrev_b32 v{V_T0}, 7, v0")
    e(f"v_and_b32 v{V_T1}, 31, v{V_LANE}")
    e(f"v_and_b32 v{V_T2}, 15, v{V_LANE}")
    e(f"v_lshrrev_b32 v{V_T3}, 5, v{V_LANE}")
    e(f"v_xor_b32 v{V_T2}, v{V_T2}, v{V_T3}")
    e(f"v_lshlrev_b32 v{V_T2}, 4, v{V_T2}")
    e(f"v_lshl_add_u32 v{V_T2}, v{V_T1}, 8, v{V_T2}")
    e(f"v_lshl_add_u32 v{V_T2}, v{V_T0}, 14, v{V_T2}")
    e(f"v_add_u32 v{V_T2}, {K_BASE}, v{V_T2}")
    for s in range(8):
        e(f"v_xor_b32 v{V_AK+s}, {32*s}, v{V_T2}")
    e(f"v_lshlrev_b32 v{V_T0}, 14, v{V_T0}")
    e(f"v_lshl_add_u32 v{V_T0}, v{V_T3}, 10, v{V_T0}")
    e(f"v_add_u32 v{V_T0}, {V_BASE}, v{V_T0}")
    for T in range(4):
        e(f"v_add_u32 v{V_AV+T}, v{V_AV+T}, v{V_T0}")
    e(f"v_lshlrev_b32 v{V_ST}, 4, v{V_LANE}")
    e("s_waitcnt lgkmcnt(0)")
    srd(S_A, 18, 8 << 20)

    def rd_x(g, buf):
        j, s = g // 4, g % 4
        e(f"ds_read_b128 v[{V_FX+4*buf}:{V_FX+4*buf+3}], v{V_AX+s} offset:{((2*j) % 6) * 8192}")
    def rd_w(g, buf, T):
        r_, s = g // 2, g % 2
        off = (r_ % 6) * 8192 + s * 4096
        r = V_FW + 16 * buf + 4 * T
        e(f"ds_read_b64_tr_b16 v[{r}:{r+1}], v{V_AW+T} offset:{off}")
        e(f"ds_read_b64_tr_b16 v[{r+2}:{r+3}], v{V_AW+T} offset:{off + 1024}")
    gemm_compute(rd_x, rd_w, 15)

    stamp()
    def rd_k(i):
        s, t = i // 2, i % 2
        r = V_KF + 4 * (i % 4)
        e(f"ds_read_b128 v[{r}:{r+3}], v{V_AK+s} offset:{8192*t}")
    for i in range(4):
        rd_k(i)
    e("s_nop 7")
    e("s_nop 7")
    for T in range(4):
        for qq in range(8):
            a = V_ACC + 16 * T + 2 * qq
            e(f"v_cvt_pk_bf16_f32 v{V_QB + 8*T + qq}, v{a}, v{a+1}")
    e("s_nop 1")
    for i in range(16):
        s, t = i // 2, i % 2
        r = V_KF + 4 * (i % 4)
        rem = min(3, 15 - i)
        e(f"s_waitcnt lgkmcnt({rem})")
        acc = V_S + 16 * t
        cc = "0" if s == 0 else f"v[{acc}:{acc+15}]"
        b = V_QB + 4 * s
        e(f"v_mfma_f32_32x32x16_bf16 v[{acc}:{acc+15}], v[{r}:{r+3}], v[{b}:{b+3}], {cc}")
        if i + 4 < 16:
            rd_k(i + 4)
    stamp()
    e("s_barrier")
    stamp()
    def rd_v(u, buf):
        for T in range(4):
            r = V_VF + 16 * buf + 4 * T
            e(f"ds_read_b64_tr_b16 v[{r}:{r+1}], v{V_AV+T} offset:{u*4096}")
            e(f"ds_read_b64_tr_b16 v[{r+2}:{r+3}], v{V_AV+T} offset:{u*4096+2048}")
    rd_v(0, 0)
    e("s_nop 7")
    e("s_nop 7")
    e(f"v_max3_f32 v{V_M}, v{V_S}, v{V_S+1}, v{V_S+2}")
    for i in range(3, 31, 2):
        e(f"v_max3_f32 v{V_M}, v{V_M}, v{V_S+i}, v{V_S+i+1}")
    e(f"v_max_f32 v{V_M}, v{V_M}, v{V_S+31}")
    e(f"v_mov_b32 v{V_M2}, v{V_M}")
    e("s_nop 1")
    e(f"v_permlane32_swap_b32 v{V_M}, v{V_M2}")
    e("s_nop 1")
    e(f"v_max_f32 v{V_M}, v{V_M}, v{V_M2}")
    e(f"s_mov_b32 s{S_TMP}, 0x3e0293ee")
    e(f"v_mul_f32 v{V_M}, s{S_TMP}, v{V_M}")
    for i in range(32):
        e(f"v_fma_f32 v{V_S+i}, v{V_S+i}, s{S_TMP}, -v{V_M}")
    for i in range(32):
        e(f"v_exp_f32 v{V_S+i}, v{V_S+i}")
    e("s_nop 0")
    e(f"v_add_f32 v{V_SUM}, v{V_S}, v{V_S+1}")
    e(f"v_add_f32 v{V_SUM2}, v{V_S+2}, v{V_S+3}")
    for i in range(4, 32, 2):
        e(f"v_add_f32 v{V_SUM}, v{V_SUM}, v{V_S+i}")
        e(f"v_add_f32 v{V_SUM2}, v{V_SUM2}, v{V_S+i+1}")
    e(f"v_add_f32 v{V_SUM}, v{V_SUM}, v{V_SUM2}")
    e(f"v_mov_b32 v{V_SUM2}, v{V_SUM}")
    e("s_nop 1")
    e(f"v_permlane32_swap_b32 v{V_SUM}, v{V_SUM2}")
    e("s_nop 1")
    e(f"v_add_f32 v{V_SUM}, v{V_SUM}, v{V_SUM2}")
    e(f"v_rcp_f32 v{V_SUM}, v{V_SUM}")
    e("s_nop 0")
    for i in range(32):
        e(f"v_mul_f32 v{V_S+i}, v{V_S+i}, v{V_SUM}")
    for i in range(16):
        e(f"v_cvt_pk_bf16_f32 v{V_PB+i}, v{V_S+2*i}, v{V_S+2*i+1}")
    e("s_nop 1")
    stamp()
    for u in range(4):
        buf = u & 1
        e("s_waitcnt lgkmcnt(0)")
        if u + 1 < 4:
            rd_v(u + 1, buf ^ 1)
        for T in range(4):
            a = V_VF + 16 * buf + 4 * T
            b = V_PB + 4 * u
            acc = V_ACC + 16 * T
            cc = "0" if u == 0 else f"v[{acc}:{acc+15}]"
            e(f"v_mfma_f32_32x32x16_bf16 v[{acc}:{acc+15}], v[{a}:{a+3}], v[{b}:{b+3}], {cc}")
    e("s_nop 7")
    e("s_nop 7")
    stamp()
    e(f"s_lshl_b32 s{S_TMP}, s{S_RB}, 5")
    e(f"s_add_u32 s{S_TMP}, s{S_TMP}, s{S_H}")
    e(f"s_lshl_b32 s{S_TMP}, s{S_TMP}, 2")
    e(f"s_add_u32 s{S_TMP}, s{S_TMP}, s{S_WV}")
    e(f"s_lshl_b32 s{S_TMP}, s{S_TMP}, 13")
    e(f"s_add_u32 s{S_TMP+1}, s{S_TMP}, 4096")
    for T in range(4):
        for qq in range(2):
            a = V_ACC + 16 * T + 8 * qq
            d = V_S + 8 * T + 4 * qq
            ks = 2 * T + qq
            for i in range(4):
                e(f"v_cvt_pk_bf16_f32 v{d+i}, v{a+2*i}, v{a+2*i+1}")
            e(f"buffer_store_dwordx4 v[{d}:{d+3}], v{V_ST}, s[{S_A}:{S_A+3}], s{S_TMP + (ks >> 2)} offen offset:{1024*(ks&3)}")
    stamp_flush(0)
    e("K1_DONE:")
    e("s_endpgm")
    L.append(kd(name, NVGPR))


def k2():
    name = "k2_kernel"
    NST[0] = 0
    NS = 7
    WO_BASE, O_BASE = 0, NS * 8192
    start(name)
    e("s_cmp_ge_u32 s2, 256")
    e("s_cbranch_scc1 K2_DONE")
    stamp(True)
    stamp()
    e("s_load_dwordx16 s[4:19], s[0:1], 0")
    e(f"v_and_b32 v{V_LANE}, 63, v0")
    e(f"v_lshrrev_b32 v{V_T0}, 6, v0")
    e(f"s_and_b32 s{S_KS}, s2, 7")
    e(f"v_readfirstlane_b32 s{S_WV}, v{V_T0}")
    e(f"s_lshr_b32 s{S_CB}, s2, 3")
    e(f"s_and_b32 s{S_CB}, s{S_CB}, 3")
    e(f"s_lshr_b32 s{S_RB}, s2, 5")
    e(f"s_lshl_b32 s{S_ROT}, s{S_CB}, 1")
    e(f"s_add_u32 s{S_ROT}, s{S_ROT}, s{S_RB}")
    e(f"s_and_b32 s{S_ROT}, s{S_ROT}, 7")
    e(f"s_lshl_b32 s{S_ROT}, s{S_ROT}, 1")
    if opt("rot", "1") == "0":
        e(f"s_mov_b32 s{S_ROT}, 0")
    e(f"s_cmp_lt_u32 s{S_WV}, 4")
    e("s_cbranch_scc1 K2_COMPUTE")
    e(f"s_cmp_eq_u32 s{S_WV}, 4")
    e("s_cbranch_scc1 K2_LW")
    e(f"s_cmp_eq_u32 s{S_WV}, 5")
    e("s_cbranch_scc1 K2_LO")
    e("s_endpgm")
    e("K2_LW:")
    e(f"s_lshl_b32 s{S_BASE}, s{S_KS}, 19")
    e(f"s_lshl_b32 s{S_TMP}, s{S_CB}, 8")
    e(f"s_add_u32 s{S_BASE}, s{S_BASE}, s{S_TMP}")
    e("s_waitcnt lgkmcnt(0)")
    srd(S_A, 12, 4 << 20)
    w_loader(S_A, 10, NS, WO_BASE, opt("woflags", "nt"), 14, 1)
    e("K2_LO:")
    e(f"v_lshlrev_b32 v8, 4, v{V_LANE}")
    for w in range(1, 4):
        e(f"v_add_u32 v{8+w}, {w*8192 - (w & 1) * 2048}, v8")
    e(f"s_lshl_b32 s{S_BASE}, s{S_RB}, 5")
    e(f"s_lshl_b32 s{S_TMP}, s{S_KS}, 2")
    e(f"s_add_u32 s{S_BASE}, s{S_BASE}, s{S_TMP}")
    e(f"s_lshl_b32 s{S_BASE}, s{S_BASE}, 15")
    e("s_waitcnt lgkmcnt(0)")
    srd(S_A, 18, 8 << 20)
    q = VMQ()
    of = opt("oflags", "")
    def o_issue(c):
        slot = c % NS
        e(f"s_add_u32 s{S_TMP}, s{S_ROT}, {c}")
        e(f"s_and_b32 s{S_TMP}, s{S_TMP}, 15")
        e(f"s_lshr_b32 s{S_TMP+1}, s{S_TMP}, 2")
        e(f"s_lshl_b32 s{S_TMP+1}, s{S_TMP+1}, 15")
        e(f"s_and_b32 s{S_TMP}, s{S_TMP}, 3")
        e(f"s_lshl_b32 s{S_TMP}, s{S_TMP}, 11")
        e(f"s_add_u32 s{S_TMP}, s{S_TMP}, s{S_TMP+1}")
        e(f"s_add_u32 s{S_TMP}, s{S_TMP}, s{S_BASE}")
        for w in range(4):
            if w % 2 == 0:
                e(f"s_mov_b32 m0, {O_BASE + slot * 8192 + w * 2048}")
                e("s_nop 0")
            for s in range(2):
                e(f"buffer_load_dwordx4 v{8+w}, s[{S_A}:{S_A+3}], s{S_TMP} offen offset:{(w & 1) * 2048 + s * 1024} {of} lds")
                q.push(c)
    DO = int(opt("do", str(NS)))
    for c in range(DO):
        o_issue(c)
    nxt = DO
    q.wait({0})
    lbar(-1)
    if nxt < NS:
        o_issue(nxt); nxt += 1
    for r in range(15):
        q.wait({r + 1})
        lbar(r)
        if nxt <= r + NS - 1 and nxt < 16:
            o_issue(nxt); nxt += 1
    assert nxt == 16
    lend(1)
    e("K2_COMPUTE:")
    e(f"v_lshlrev_b32 v{V_ST}, 4, v{V_LANE}")
    e(f"v_lshl_add_u32 v{V_AX}, v{V_T0}, 11, v{V_ST}")
    e(f"v_add_u32 v{V_AX}, {O_BASE}, v{V_AX}")
    w_frag_addr_setup(WO_BASE)
    e("s_waitcnt lgkmcnt(0)")
    srd(S_A, 18, 16 << 20, extra_off=P_OFF)
    def rd_x(g, buf):
        r_, s = g // 2, g % 2
        e(f"ds_read_b128 v[{V_FX+4*buf}:{V_FX+4*buf+3}], v{V_AX} offset:{(r_ % NS) * 8192 + s * 1024}")
    def rd_w(g, buf, T):
        r_, s = g // 2, g % 2
        off = (r_ % NS) * 8192 + s * 4096
        r = V_FW + 16 * buf + 4 * T
        e(f"ds_read_b64_tr_b16 v[{r}:{r+1}], v{V_AW+T} offset:{off}")
        e(f"ds_read_b64_tr_b16 v[{r+2}:{r+3}], v{V_AW+T} offset:{off + 1024}")
    gemm_compute(rd_x, rd_w, 14)
    stamp()
    e("s_nop 7")
    e("s_nop 7")
    e(f"s_lshl_b32 s{S_TMP}, s{S_KS}, 3")
    e(f"s_add_u32 s{S_TMP}, s{S_TMP}, s{S_RB}")
    e(f"s_lshl_b32 s{S_TMP}, s{S_TMP}, 2")
    e(f"s_add_u32 s{S_TMP}, s{S_TMP}, s{S_CB}")
    e(f"s_lshl_b32 s{S_TMP}, s{S_TMP}, 2")
    e(f"s_add_u32 s{S_TMP}, s{S_TMP}, s{S_WV}")
    e(f"s_lshl_b32 s{S_TMP}, s{S_TMP}, 14")
    pf = opt("pflags", "")
    for T in range(4):
        if T:
            e(f"s_add_u32 s{S_TMP}, s{S_TMP}, 4096")
        for q4 in range(4):
            a = V_ACC + 16 * T + 4 * q4
            e(f"buffer_store_dwordx4 v[{a}:{a+3}], v{V_ST}, s[{S_A}:{S_A+3}], s{S_TMP} offen offset:{1024*q4} {pf}")
    stamp_flush(1)
    e("K2_DONE:")
    e("s_endpgm")
    L.append(kd(name, NVGPR))


def k3():
    name = "k3_kernel"
    start(name)
    e("s_cmp_ge_u32 s2, 256")
    e("s_cbranch_scc1 K3_DONE")
    e("s_load_dwordx16 s[4:19], s[0:1], 0")
    e("v_and_b32 v1, 63, v0")
    e("v_lshrrev_b32 v2, 6, v0")
    e("s_lshl_b32 s3, s2, 2")
    e("v_add_u32 v2, s3, v2")
    e("v_lshlrev_b32 v3, 11, v2")
    e("v_lshl_add_u32 v3, v1, 4, v3")
    e("v_and_b32 v4, 1, v2")
    e("v_bfe_u32 v5, v2, 1, 2")
    e("v_bfe_u32 v6, v2, 3, 2")
    e("v_bfe_u32 v7, v2, 5, 2")
    e("v_lshrrev_b32 v8, 7, v2")
    e("v_and_b32 v9, 31, v1")
    e("v_lshl_add_u32 v9, v6, 5, v9")
    e("v_lshl_add_u32 v9, v8, 7, v9")
    e("v_lshrrev_b32 v10, 5, v1")
    e("v_lshlrev_b32 v10, 3, v10")
    e("v_lshl_add_u32 v10, v4, 4, v10")
    e("v_lshl_add_u32 v10, v5, 5, v10")
    e("v_lshl_add_u32 v10, v7, 7, v10")
    e("v_lshlrev_b32 v10, 1, v10")
    e("v_lshl_add_u32 v9, v9, 10, v10")
    e("s_waitcnt lgkmcnt(0)")
    srd(20, 18, 16 << 20, extra_off=P_OFF)
    srd(24, 14, 1 << 20)
    rf = opt("rflags", "")
    for ks in range(8):
        e(f"s_mov_b32 s30, {ks << 21}")
        e(f"buffer_load_dwordx4 v[{16+8*ks}:{16+8*ks+3}], v3, s[20:23], s30 offen {rf}")
        e(f"buffer_load_dwordx4 v[{16+8*ks+4}:{16+8*ks+7}], v3, s[20:23], s30 offen offset:1024 {rf}")
    for ks in range(1, 8):
        e(f"s_waitcnt vmcnt({2*(7-ks)})")
        for i in range(8):
            e(f"v_add_f32 v{16+i}, v{16+i}, v{16+8*ks+i}")
    for i in range(4):
        e(f"v_cvt_pk_bf16_f32 v{12+i}, v{16+2*i}, v{16+2*i+1}")
    e("buffer_store_dwordx4 v[12:15], v9, s[24:27], 0 offen")
    e("K3_DONE:")
    e("s_endpgm")
    L.append(kd(name, 80))


def main():
    out = sys.argv[1]
    hdr = HEADER
    hdr += "; @launch kernel=k1_kernel grid=(256,1,1) block=(512,1,1) lds=163840\n"
    hdr += "; @launch kernel=k2_kernel grid=(256,1,1) block=(512,1,1) lds=114688\n"
    hdr += "; @launch kernel=k3_kernel grid=(256,1,1) block=(256,1,1) lds=0\n"
    hdr += '.amdgcn_target "amdgcn-amd-amdhsa--gfx950"\n'
    k1(); k2(); k3()
    open(out, "w").write(hdr + "\n".join(L) + "\n")

main()
```

```python
import sys

HEADER = """; Kernarg layout for this problem (64 bytes, ptrs only, base s[0:1]):
"""
KNAME = "standalone__gqa_block_cached__near_ridge_kernel"
ARGS = sys.argv[2:]
def opt(name, default):
    for a in ARGS:
        if a.startswith(name + "="):
            return a.split("=", 1)[1].replace("_", " ")
    return default

L = []
def e(s=""):
    L.append("    " + s if s and not s.endswith(":") else s)

def kd(name, vgpr, sgpr=100):
    acc = (vgpr + 3) // 4 * 4
    return f""".section .rodata,"a"
.p2align 6
.amdhsa_kernel {name}
  .amdhsa_next_free_vgpr {vgpr}
  .amdhsa_next_free_sgpr {sgpr}
  .amdhsa_accum_offset {acc}
  .amdhsa_group_segment_fixed_size 0
  .amdhsa_kernarg_size 64
  .amdhsa_user_sgpr_count 2
  .amdhsa_user_sgpr_kernarg_segment_ptr 1
  .amdhsa_system_sgpr_workgroup_id_x 1
.end_amdhsa_kernel
"""

def srd(d, b, nbytes, extra_off=None):
    if extra_off:
        e(f"s_add_u32 s{d}, s{b}, {extra_off}")
        e(f"s_addc_u32 s{d+1}, s{b+1}, 0")
    else:
        e(f"s_mov_b32 s{d}, s{b}")
        e(f"s_mov_b32 s{d+1}, s{b+1}")
    e(f"s_mov_b32 s{d+2}, {nbytes}")
    e(f"s_mov_b32 s{d+3}, 0x00020000")

STAMPS = "--stamps" in ARGS
NST = [0]
S_WV = 42
def stamp(real=False):
    if not STAMPS: return
    i = NST[0]; NST[0] += 1
    assert i < 19, "too many stamps"
    e(f"{'s_memrealtime' if real else 's_memtime'} s[{62+2*i}:{63+2*i}]")

def stamp_flush():
    if not STAMPS: return
    e("s_waitcnt vmcnt(0) lgkmcnt(0)")
    stamp(False)
    stamp(True)
    n = NST[0]
    e("s_waitcnt lgkmcnt(0)")
    srd(20, 18, 1 << 20, extra_off=(64 << 20))
    e(f"s_lshl_b32 s3, s2, 3")
    e(f"s_add_u32 s3, s3, s{S_WV}")
    e(f"s_lshl_b32 s3, s3, 8")
    e("v_mov_b32 v2, 0")
    e("s_mov_b64 exec, 1")
    for i in range(n):
        e(f"v_mov_b32 v4, s{62+2*i}")
        e(f"v_mov_b32 v5, s{63+2*i}")
        e(f"buffer_store_dwordx2 v[4:5], v2, s[20:23], s3 offen offset:{8*i}")
        e("s_nop 1")

def bar(st=False):
    if st: stamp()
    e("s_barrier")

def lend(rem=0):
    if STAMPS:
        for _ in range(rem):
            e("s_barrier")
    stamp_flush()
    NST[0] = 2
    e("s_endpgm")

PX_OFF = 8 << 20
F1_OFF = 16 << 20
F1A_OFF = F1_OFF + (512 << 10)
F2_OFF = 17 << 20
WS_BYTES = 18 << 20
WQ_BASE, X_BASE, K_BASE, V_BASE = 0, 49152, 98304, 131072

V_LANE = 1
V_T0, V_T1, V_T2, V_T3 = 2, 3, 4, 5
V_ST = 6
V_OUT = 7
V_AX = 8
V_AW = 12
V_AK = 16
V_AV = 24
V_AO = 28
V_ZERO = 30
V_FX = 32
V_FW = 40
V_ACC = 72
V_S = 136
V_QB = 168
V_KF = 200
V_PB = 168
V_VF = 32
V_M, V_M2, V_SUM, V_SUM2 = 216, 217, 218, 219
V_TOK = 220
V_FA1 = 222
V_FA2 = 223
V_FV = 224
V_FA1A = 226
V_BX = 136
V_BY = 32
V_ACC2 = 168
V_FO = 200
V_PR = 72
V_FIN = 100
NVGPR = 228

S_A, S_B, S_C, S_D = 20, 24, 28, 32
S_H, S_RB = 40, 41
S_HL, S_G4 = 43, 44
S_DRY = 45
S_TMP = 46
S_ROT = 48
S_BASE = 49
S_CNT = 50
S_LO = 51
S_TOK = 52
S_T2 = 54
S_I = 55
S_X0, S_X1 = 56, 57
S_J = 58
S_DEL = 59

SPIN = int(opt('spin', '200000'))


def poll_loop(label, vaddr, srd_reg, flags="sc1", vaddr2=None):
    e(f"s_mov_b32 s{S_CNT}, 0")
    e(f"{label}:")
    if vaddr2 is not None:
        e(f"s_and_b32 s{S_TMP}, s{S_CNT}, 7")
        e(f"s_cmp_eq_u32 s{S_TMP}, 7")
        e(f"s_cbranch_scc1 {label}_B")
    e(f"buffer_load_dwordx2 v[{V_FV}:{V_FV+1}], v{vaddr}, s[{srd_reg}:{srd_reg+3}], 0 offen {flags}")
    if vaddr2 is not None:
        e(f"s_branch {label}_C")
        e(f"{label}_B:")
        e(f"buffer_load_dwordx2 v[{V_FV}:{V_FV+1}], v{vaddr2}, s[{srd_reg}:{srd_reg+3}], 0 offen sc0 sc1")
        e(f"{label}_C:")
    e(f"s_add_u32 s{S_CNT}, s{S_CNT}, 1")
    e("s_waitcnt vmcnt(0)")
    e(f"v_cmp_ne_u64 vcc, s[{S_TOK}:{S_TOK+1}], v[{V_FV}:{V_FV+1}]")
    e(f"s_cmp_gt_u32 s{S_CNT}, {SPIN}")
    e(f"s_cbranch_scc1 {label}_X")
    e("s_nop 2")
    e(f"s_cbranch_vccz {label}_X")
    e(f"s_branch {label}")
    e(f"{label}_X:")


def issue8(vbase, srd_reg, soff, flags):
    e(f"s_mov_b32 m0, s{S_LO}")
    e(f"s_add_u32 s{S_TMP+1}, s{S_LO}, 4096")
    for j in range(4):
        e(f"buffer_load_dwordx4 v{vbase+j}, s[{srd_reg}:{srd_reg+3}], s{soff} offen offset:{1024*j} {flags} lds")
    e(f"s_mov_b32 m0, s{S_TMP+1}")
    e("s_nop 0")
    for j in range(4):
        e(f"buffer_load_dwordx4 v{vbase+4+j}, s[{srd_reg}:{srd_reg+3}], s{soff} offen offset:{1024*j} {flags} lds")


def ring_adv(base):
    e(f"s_add_u32 s{S_LO}, s{S_LO}, 8192")
    e(f"s_cmp_eq_u32 s{S_LO}, {base + 49152}")
    e(f"s_cselect_b32 s{S_LO}, {base}, s{S_LO}")


def wo_loader(half, tag):
    e(f"v_lshrrev_b32 v{V_T1}, 3, v{V_LANE}")
    e(f"v_and_b32 v{V_T2}, 7, v{V_LANE}")
    e(f"v_bfe_u32 v{V_T3}, v{V_LANE}, 4, 1")
    e(f"v_lshlrev_b32 v{V_T3}, 2, v{V_T3}")
    e(f"v_xor_b32 v{V_T2}, v{V_T2}, v{V_T3}")
    e(f"v_lshlrev_b32 v{V_T2}, 4, v{V_T2}")
    e(f"v_lshl_add_u32 v24, v{V_T1}, 10, v{V_T2}")
    for i in range(1, 8):
        e(f"v_add_u32 v{24+i}, {8*i*1024 - 1024*(i&3)}, v24")
    srd(S_B, 12, 4 << 20)
    e(f"s_lshl_b32 s{S_BASE}, s{S_G4}, 20")
    e(f"s_lshl_b32 s{S_TMP}, s{S_HL}, 7")
    e(f"s_add_u32 s{S_BASE}, s{S_BASE}, s{S_TMP}")
    if half:
        e(f"s_add_u32 s{S_BASE}, s{S_BASE}, 65536")
    e(f"s_mov_b32 s{S_LO}, {half * 8192}")
    e(f"s_mov_b32 s{S_J}, 0")
    bar()
    bar(True)
    NA = int(opt("wona", "0"))
    if NA == 0:
        bar()
    e(f"WO_L{tag}:")
    e(f"s_add_u32 s{S_TMP}, s{S_HL}, s{S_J}")
    e(f"s_and_b32 s{S_TMP}, s{S_TMP}, 7")
    e(f"s_lshl_b32 s{S_TMP}, s{S_TMP}, 17")
    e(f"s_add_u32 s{S_TMP}, s{S_TMP}, s{S_BASE}")
    e(f"s_waitcnt vmcnt({int(opt('wothr', '8'))})")
    issue8(24, S_B, S_TMP, opt("woflags", ""))
    e(f"s_add_u32 s{S_LO}, s{S_LO}, 16384")
    e(f"s_add_u32 s{S_J}, s{S_J}, 1")
    if NA:
        e(f"s_cmp_lg_u32 s{S_J}, {NA}")
        e(f"s_cbranch_scc1 WO_N{tag}")
        bar()
        e(f"WO_N{tag}:")
    e(f"s_cmp_lt_u32 s{S_J}, 8")
    e(f"s_cbranch_scc1 WO_L{tag}")
    e("s_waitcnt vmcnt(0)")
    bar(True)
    lend()


def fused():
    name = KNAME
    NST[0] = 0
    e(".text")
    e(f".globl {name}")
    e(".p2align 8")
    e(f".type {name},@function")
    e(f"{name}:")
    e("s_cmp_ge_u32 s2, 256")
    e("s_cbranch_scc1 F_DONE")
    stamp(True)
    stamp()
    e("s_load_dwordx16 s[4:19], s[0:1], 0")
    e(f"v_and_b32 v{V_LANE}, 63, v0")
    e(f"v_lshrrev_b32 v{V_T0}, 6, v0")
    e(f"s_and_b32 s{S_G4}, s2, 3")
    e(f"v_readfirstlane_b32 s{S_WV}, v{V_T0}")
    e(f"s_lshr_b32 s{S_I}, s2, 3")
    e(f"s_and_b32 s{S_HL}, s{S_I}, 7")
    e(f"s_lshl_b32 s{S_H}, s{S_G4}, 3")
    e(f"s_add_u32 s{S_H}, s{S_H}, s{S_HL}")
    e(f"s_lshr_b32 s{S_TMP}, s2, 6")
    e(f"s_and_b32 s{S_RB}, s2, 4")
    e(f"s_add_u32 s{S_RB}, s{S_RB}, s{S_TMP}")
    e(f"s_lshl_b32 s{S_ROT}, s{S_TMP}, 1")
    e(f"s_add_u32 s{S_ROT}, s{S_ROT}, s{S_HL}")
    e(f"s_and_b32 s{S_ROT}, s{S_ROT}, 7")
    e(f"s_lshl_b32 s{S_ROT}, s{S_ROT}, 1")
    if opt("rot", "1") == "0":
        e(f"s_mov_b32 s{S_ROT}, 0")
    e(f"s_cmp_lt_u32 s{S_WV}, 4")
    e("s_cbranch_scc1 F_COMPUTE")
    e(f"s_cmp_eq_u32 s{S_WV}, 5")
    e("s_cbranch_scc1 F_LX")
    e(f"s_cmp_gt_u32 s{S_WV}, 5")
    e("s_cbranch_scc1 F_LKV")

    e(f"s_lshl_b32 s{S_BASE}, s{S_H}, 8")
    e(f"v_lshrrev_b32 v{V_T1}, 4, v{V_LANE}")
    e(f"v_and_b32 v{V_T2}, 15, v{V_LANE}")
    e(f"v_lshlrev_b32 v{V_T3}, 2, v{V_T1}")
    e(f"v_xor_b32 v{V_T2}, v{V_T2}, v{V_T3}")
    e(f"v_lshlrev_b32 v{V_T2}, 4, v{V_T2}")
    e(f"v_lshl_add_u32 v8, v{V_T1}, 13, v{V_T2}")
    for j in range(1, 8):
        e(f"v_add_u32 v{8+j}, {(4*j << 13) - 1024*(j & 3)}, v8")
    e(f"s_mov_b32 s{S_LO}, {WQ_BASE}")
    e(f"s_mov_b32 s{S_J}, 0")
    e("s_waitcnt lgkmcnt(0)")
    srd(S_A, 10, 4 << 20)
    DW = int(opt("dw", "4"))
    wqf = opt("wqflags", "nt")
    def w_issue():
        e(f"s_add_u32 s{S_TMP}, s{S_ROT}, s{S_J}")
        e(f"s_and_b32 s{S_TMP}, s{S_TMP}, 15")
        e(f"s_lshl_b32 s{S_TMP}, s{S_TMP}, 18")
        e(f"s_add_u32 s{S_TMP}, s{S_TMP}, s{S_BASE}")
        issue8(8, S_A, S_TMP, wqf)
        ring_adv(WQ_BASE)
        e(f"s_add_u32 s{S_J}, s{S_J}, 1")
    def ring_loader(tag, issue, D, need_of, free_ok):
        for J in range(D, 16):
            assert free_ok(J, J - D - 1), (tag, J)
        waits = set()
        for J in range(D, 16):
            r = J - D - 1
            waits.add(8 * (J - 1 - need_of(r)))
        w = min(waits)
        e(f"{tag}_L:")
        e(f"s_cmp_lt_u32 s{S_J}, {D}")
        e(f"s_cbranch_scc1 {tag}_I")
        e(f"s_waitcnt vmcnt({w})")
        e("s_barrier")
        e(f"{tag}_I:")
        issue()
        e(f"s_cmp_lt_u32 s{S_J}, 16")
        e(f"s_cbranch_scc1 {tag}_L")
        for r in range(16 - D - 1, 15):
            e(f"s_waitcnt vmcnt({8 * max(0, 15 - need_of(r))})")
            bar(r == 16 - D - 1)
    ring_loader("LW", w_issue, DW, lambda r: r + 1, lambda J, r: J <= max(r - 1, -1) + 6)
    wo_loader(0, "A")

    e("F_LX:")
    e(f"v_lshrrev_b32 v{V_T1}, 3, v{V_LANE}")
    e(f"v_and_b32 v{V_T2}, 7, v{V_LANE}")
    e(f"v_lshrrev_b32 v{V_T3}, 4, v{V_LANE}")
    e(f"v_xor_b32 v{V_T3}, v{V_T3}, v{V_T2}")
    e(f"v_lshlrev_b32 v{V_T3}, 4, v{V_T3}")
    e(f"v_lshl_add_u32 v8, v{V_T1}, 10, v{V_T3}")
    e(f"v_xor_b32 v9, 64, v8")
    e(f"v_add_u32 v9, {8*1024 - 1024}, v9")
    for i in range(2, 8):
        e(f"v_add_u32 v{8+i}, {(8*i*1024 - 1024*(i&3)) - (8*(i&1)*1024 - 1024*(i&1))}, v{8 + (i & 1)}")
    e(f"s_lshl_b32 s{S_BASE}, s{S_RB}, 17")
    e(f"s_mov_b32 s{S_LO}, {X_BASE}")
    e(f"s_mov_b32 s{S_J}, 0")
    e("s_waitcnt lgkmcnt(0)")
    srd(S_A, 4, 1 << 20)
    xf = opt("xflags", "")
    def x_issue():
        e(f"s_add_u32 s{S_TMP}, s{S_ROT}, s{S_J}")
        e(f"s_and_b32 s{S_TMP+1}, s{S_TMP}, 1")
        e(f"s_lshl_b32 s{S_TMP+1}, s{S_TMP+1}, 16")
        e(f"s_and_b32 s{S_TMP}, s{S_TMP}, 14")
        e(f"s_lshl_b32 s{S_TMP}, s{S_TMP}, 6")
        e(f"s_add_u32 s{S_TMP}, s{S_TMP}, s{S_TMP+1}")
        e(f"s_add_u32 s{S_TMP}, s{S_TMP}, s{S_BASE}")
        issue8(8, S_A, S_TMP, xf)
        ring_adv(X_BASE)
        e(f"s_add_u32 s{S_J}, s{S_J}, 1")
    DX = int(opt("dx", "3"))
    ring_loader("LX", x_issue, DX, lambda r: 2 * ((r + 1) >> 1) + 1,
                lambda n, r: (n >> 1) - 3 <= ((r - 2) >> 1 if r >= 2 else -1))
    wo_loader(1, "B")

    e("F_LKV:")
    e(f"v_lshrrev_b32 v{V_T1}, 4, v{V_LANE}")
    e(f"v_and_b32 v{V_T2}, 15, v{V_LANE}")
    e(f"v_lshlrev_b32 v{V_T0}, 8, v{V_T1}")
    e(f"s_lshl_b32 s{S_BASE}, s{S_RB}, 6")
    e(f"s_add_u32 s{S_BASE}, s{S_BASE}, s{S_H}")
    e(f"s_lshl_b32 s{S_BASE}, s{S_BASE}, 14")
    e(f"v_lshlrev_b32 v18, 7, v{V_LANE}")
    e(f"s_mov_b32 s{S_J}, 0")
    e(f"s_mov_b32 s{S_CNT}, 0")
    e(f"s_cmp_eq_u32 s{S_WV}, 7")
    e("s_cbranch_scc1 F_LV")
    kvf = opt("kvflags", "nt")
    def kv_group(srd_reg, lds_base, vo):
        e(f"s_lshl_b32 s{S_TMP}, s{S_J}, 12")
        e(f"s_add_u32 m0, s{S_TMP}, {lds_base}")
        e(f"s_and_b32 s{S_TMP}, s{S_TMP}, 0x3000")
        e(f"s_lshr_b32 s{S_TMP+1}, s{S_J}, 2")
        e(f"s_lshl_b32 s{S_TMP+1}, s{S_TMP+1}, 19")
        e(f"s_add_u32 s{S_TMP}, s{S_TMP}, s{S_TMP+1}")
        e(f"s_add_u32 s{S_TMP}, s{S_TMP}, s{S_BASE}")
        for j in range(4):
            e(f"buffer_load_dwordx4 v{vo(j)}, s[{srd_reg}:{srd_reg+3}], s{S_TMP} offen offset:{1024*j} {kvf} lds")
        e(f"s_add_u32 s{S_J}, s{S_J}, 1")
    for j in range(4):
        e(f"v_add_u32 v{V_T3}, {4*j}, v{V_T1}")
        e(f"v_xor_b32 v{V_T3}, v{V_T3}, v{V_T2}")
        e(f"v_lshl_add_u32 v{8+j}, v{V_T3}, 4, v{V_T0}")
    e("s_waitcnt lgkmcnt(0)")
    srd(S_A, 6, 8 << 20)
    KEV = int(opt("kev", "2"))
    KG = int(opt("kg", "1"))
    e("LK_L:")
    for _ in range(KG):
        kv_group(S_A, K_BASE, lambda j: 8 + j)
    for _ in range(KEV):
        e("s_barrier")
    e(f"s_cmp_lt_u32 s{S_J}, 8")
    e("s_cbranch_scc1 LK_L")
    nb = (8 // KG) * KEV
    assert nb <= 16
    for _ in range(16 - nb):
        e("s_barrier")
    e("s_waitcnt vmcnt(0)")
    bar(True)
    lend(3)

    e("F_LV:")
    e(f"v_lshlrev_b32 v{V_T3}, 2, v{V_T1}")
    e(f"v_xor_b32 v{V_T3}, v{V_T3}, v{V_T2}")
    e(f"v_lshl_add_u32 v8, v{V_T3}, 4, v{V_T0}")
    e(f"s_memrealtime s[{S_TOK}:{S_TOK+1}]")
    e("s_waitcnt lgkmcnt(0)")
    srd(S_A, 8, 8 << 20)
    srd(S_D, 12, 4 << 20)
    e("s_cmp_lg_u32 s2, 0")
    e("s_cbranch_scc1 F_NOTOK")
    srd(S_B, 16, 256)
    e(f"s_or_b32 s{S_TOK}, s{S_TOK}, 1")
    e(f"v_mov_b32 v10, s{S_TOK}")
    e(f"v_mov_b32 v11, s{S_TOK+1}")
    e("v_mov_b32 v12, 0")
    e(f"buffer_store_dwordx2 v[10:11], v12, s[{S_B}:{S_B+3}], 0 offen sc0 sc1")
    e("F_NOTOK:")
    VSTART = int(opt("vstart", "10"))
    for _ in range(VSTART + 2):
        e("s_barrier")
    e("LV_L:")
    kv_group(S_A, V_BASE, lambda j: 8)
    kv_group(S_A, V_BASE, lambda j: 8)
    e(f"s_cmp_eq_u32 s{S_J}, 8")
    e("s_cbranch_scc1 LV_X")
    e("s_barrier")
    e("s_branch LV_L")
    e("LV_X:")
    done = VSTART + 2 + 3
    pof = opt("poflags", "")
    npf = 0
    if opt("wopf", "1") == "1":
        e(f"s_lshl_b32 s{S_TMP}, s{S_G4}, 20")
        e(f"s_lshl_b32 s{S_TMP+1}, s{S_I}, 15")
        e(f"s_add_u32 s{S_TMP}, s{S_TMP}, s{S_TMP+1}")
        for qq in range(4):
            if qq: e(f"s_add_u32 s{S_TMP}, s{S_TMP}, 8192")
            e(f"buffer_load_dword v23, v18, s[{S_D}:{S_D+3}], s{S_TMP} offen {pof}")
        npf = 4
    assert done <= 18
    for _ in range(18 - done):
        e("s_barrier")
    e(f"s_waitcnt vmcnt({npf})")
    bar(True)
    lend(1)

    e("F_COMPUTE:")
    e(f"v_and_b32 v{V_T1}, 31, v{V_LANE}")
    e(f"v_bfe_u32 v{V_T2}, v{V_T1}, 1, 3")
    e(f"v_lshrrev_b32 v{V_T3}, 5, v{V_LANE}")
    e(f"v_xor_b32 v{V_T2}, v{V_T2}, v{V_T3}")
    e(f"v_lshlrev_b32 v{V_T2}, 4, v{V_T2}")
    e(f"v_lshl_add_u32 v{V_T1}, v{V_T0}, 5, v{V_T1}")
    e(f"v_lshl_add_u32 v{V_T1}, v{V_T1}, 7, v{V_T2}")
    e(f"v_add_u32 v{V_T1}, {X_BASE}, v{V_T1}")
    for s in range(4):
        e(f"v_xor_b32 v{V_AX+s}, {32*s}, v{V_T1}")
    e(f"v_bfe_u32 v{V_T1}, v{V_LANE}, 2, 2")
    e(f"v_bfe_u32 v{V_T2}, v{V_LANE}, 4, 1")
    e(f"v_lshlrev_b32 v{V_T2}, 2, v{V_T2}")
    e(f"v_and_b32 v{V_T3}, 1, v{V_LANE}")
    e(f"v_lshl_or_b32 v{V_T2}, v{V_T3}, 1, v{V_T2}")
    e(f"v_bfe_u32 v{V_T3}, v{V_LANE}, 1, 1")
    e(f"v_or_b32 v{V_T2}, v{V_T2}, v{V_T3}")
    e(f"v_lshlrev_b32 v{V_T2}, 3, v{V_T2}")
    e(f"v_lshrrev_b32 v{V_T3}, 5, v{V_LANE}")
    e(f"v_lshl_add_u32 v{V_AO}, v{V_T1}, 7, v{V_T2}")
    e(f"v_lshl_add_u32 v{V_AO}, v{V_T3}, 10, v{V_AO}")
    e(f"v_bfe_u32 v{V_AO+1}, v{V_LANE}, 3, 1")
    e(f"v_lshl_add_u32 v{V_AO}, v{V_AO+1}, 6, v{V_AO}")
    e(f"v_xor_b32 v{V_AO+1}, 64, v{V_AO}")
    e(f"v_lshl_add_u32 v{V_T2}, v{V_T1}, 8, v{V_T2}")
    e(f"v_lshl_add_u32 v{V_T2}, v{V_T1}, 6, v{V_T2}")
    for T in range(4):
        e(f"v_xor_b32 v{V_AV+T}, {64*T}, v{V_T2}")
        e(f"v_lshl_add_u32 v{V_AW+T}, v{V_T3}, 11, v{V_AV+T}")
    e(f"v_lshrrev_b32 v{V_T0}, 7, v0")
    e(f"v_and_b32 v{V_T1}, 31, v{V_LANE}")
    e(f"v_and_b32 v{V_T2}, 15, v{V_LANE}")
    e(f"v_xor_b32 v{V_T2}, v{V_T2}, v{V_T3}")
    e(f"v_lshlrev_b32 v{V_T2}, 4, v{V_T2}")
    e(f"v_lshl_add_u32 v{V_T2}, v{V_T1}, 8, v{V_T2}")
    e(f"v_lshl_add_u32 v{V_T2}, v{V_T0}, 14, v{V_T2}")
    e(f"v_add_u32 v{V_T2}, {K_BASE}, v{V_T2}")
    for s in range(8):
        e(f"v_xor_b32 v{V_AK+s}, {32*s}, v{V_T2}")
    e(f"v_lshlrev_b32 v{V_T0}, 14, v{V_T0}")
    e(f"v_lshl_add_u32 v{V_T0}, v{V_T3}, 10, v{V_T0}")
    e(f"v_add_u32 v{V_T0}, {V_BASE}, v{V_T0}")
    for T in range(4):
        e(f"v_add_u32 v{V_AV+T}, v{V_AV+T}, v{V_T0}")
    e(f"v_lshlrev_b32 v{V_ST}, 4, v{V_LANE}")
    e(f"v_lshrrev_b32 v{V_T0}, 6, v0")
    e(f"v_lshl_add_u32 v{V_T0}, v{V_T0}, 5, v{V_T1}")
    e(f"v_lshlrev_b32 v{V_T0}, 10, v{V_T0}")
    e(f"v_lshl_add_u32 v{V_OUT}, v{V_T3}, 4, v{V_T0}")
    e(f"v_and_b32 v{V_T0}, 7, v{V_LANE}")
    e(f"s_andn2_b32 s{S_TMP}, s2, 0x38")
    e(f"s_lshl_b32 s{S_TMP}, s{S_TMP}, 2")
    e(f"s_add_u32 s{S_TMP}, s{S_TMP}, s{S_WV}")
    e(f"s_lshl_b32 s{S_X0}, s{S_TMP}, 13")
    e(f"s_lshl_b32 s{S_TMP}, s{S_TMP}, 6")
    e(f"s_add_u32 s{S_TMP}, s{S_TMP}, {F1_OFF}")
    e(f"v_lshlrev_b32 v{V_T0}, 11, v{V_T0}")
    e(f"v_add_u32 v{V_FA1}, s{S_TMP}, v{V_T0}")
    e(f"v_add_u32 v{V_FA1A}, {F1A_OFF - F1_OFF}, v{V_FA1}")
    e(f"v_and_b32 v{V_T0}, 3, v{V_LANE}")
    e(f"s_andn2_b32 s{S_TMP}, s2, 3")
    e(f"s_lshl_b32 s{S_TMP}, s{S_TMP}, 2")
    e(f"s_add_u32 s{S_TMP}, s{S_TMP}, s{S_WV}")
    e(f"s_lshl_b32 s{S_TMP}, s{S_TMP}, 6")
    e(f"s_add_u32 s{S_TMP}, s{S_TMP}, {F2_OFF}")
    e(f"v_lshlrev_b32 v{V_T0}, 8, v{V_T0}")
    e(f"v_add_u32 v{V_FA2}, s{S_TMP}, v{V_T0}")
    e(f"v_mov_b32 v{V_ZERO}, 0")
    e(f"s_lshl_b32 s{S_TMP}, s2, 2")
    e(f"s_add_u32 s{S_TMP}, s{S_TMP}, s{S_WV}")
    e(f"s_lshl_b32 s{S_T2}, s{S_TMP}, 6")
    e(f"s_lshl_b32 s{S_X1}, s{S_TMP}, 13")
    e("s_waitcnt lgkmcnt(0)")
    srd(S_A, 18, WS_BYTES)
    srd(S_B, 16, 256)
    srd(S_C, 14, 1 << 20)
    DRY = opt("dry", "1") == "1"
    if DRY:
        e(f"s_mov_b32 s{S_DRY}, 1")
        e("s_branch F_ATT")
        e("F_REAL:")
    e(f"s_mov_b32 s{S_DRY}, 0")
    for i in range(64):
        e(f"v_mov_b32 v{V_ACC+i}, 0")

    def rd_x(s, buf):
        e(f"ds_read_b128 v[{V_FX+4*buf}:{V_FX+4*buf+3}], v{V_AX+s}")
    def rd_w(p, buf, T):
        off = p * 4096
        r = V_FW + 16 * buf + 4 * T
        e(f"ds_read_b64_tr_b16 v[{r}:{r+1}], v{V_AW+T} offset:{off}")
        e(f"ds_read_b64_tr_b16 v[{r+2}:{r+3}], v{V_AW+T} offset:{off + 1024}")

    bar(True)
    rd_x(0, 0)
    for T in range(4):
        rd_w(0, 0, T)
    e(f"s_mov_b32 s{S_CNT}, 0")
    e(f"s_mov_b32 s{S_LO}, 0")
    e("s_mov_b32 s60, -32768")
    e("s_mov_b32 s61, 16384")
    e("QP_L:")
    e(f"s_add_u32 s{S_LO}, s{S_LO}, 16384")
    e(f"s_cmp_eq_u32 s{S_LO}, 49152")
    e(f"s_cselect_b32 s{S_DEL}, s60, s61")
    e(f"s_cselect_b32 s{S_LO}, 0, s{S_LO}")
    for p in range(4):
        buf = p & 1
        nb = buf ^ 1
        if p & 1:
            e("s_barrier")
        for T in range(4):
            nxt = 0 if T == 0 else 1 + 2 * T
            e(f"s_waitcnt lgkmcnt({2*(3-T) + nxt})")
            a = V_FW + 16 * buf + 4 * T
            b = V_FX + 4 * buf
            acc = V_ACC + 16 * T
            e(f"v_mfma_f32_32x32x16_bf16 v[{acc}:{acc+15}], v[{a}:{a+3}], v[{b}:{b+3}], v[{acc}:{acc+15}]")
            if T == 0:
                rd_x((p + 1) & 3, nb)
            rd_w((p + 1) & 3, nb, T)
            if p == 2:
                e(f"v_add_u32 v{V_AW+T}, s{S_DEL}, v{V_AW+T}")
            if p == 0 and T == 1:
                e(f"v_add_u32 v{V_AX}, s{S_DEL}, v{V_AX}")
            if p == 3 and T >= 1:
                e(f"v_add_u32 v{V_AX+T}, s{S_DEL}, v{V_AX+T}")
    e(f"s_add_u32 s{S_CNT}, s{S_CNT}, 1")
    e(f"s_cmp_lt_u32 s{S_CNT}, 8")
    e("s_cbranch_scc1 QP_L")
    e("s_waitcnt lgkmcnt(0)")
    bar(True)

    e("F_ATT:")
    def rd_k(i):
        s, t = i // 2, i % 2
        r = V_KF + 4 * (i % 4)
        e(f"ds_read_b128 v[{r}:{r+3}], v{V_AK+s} offset:{8192*t}")
    for i in range(4):
        rd_k(i)
    e("s_nop 7")
    e("s_nop 3")
    for T in range(4):
        for qq in range(8):
            a = V_ACC + 16 * T + 2 * qq
            e(f"v_cvt_pk_bf16_f32 v{V_QB + 8*T + qq}, v{a}, v{a+1}")
    e("s_nop 1")
    for i in range(16):
        s, t = i // 2, i % 2
        r = V_KF + 4 * (i % 4)
        rem = min(3, 15 - i)
        e(f"s_waitcnt lgkmcnt({rem})")
        acc = V_S + 16 * t
        cc = "0" if s == 0 else f"v[{acc}:{acc+15}]"
        b = V_QB + 4 * s
        e(f"v_mfma_f32_32x32x16_bf16 v[{acc}:{acc+15}], v[{r}:{r+3}], v[{b}:{b+3}], {cc}")
        if i + 4 < 16:
            rd_k(i + 4)
    if DRY:
        e(f"s_cmp_eq_u32 s{S_DRY}, 1")
        e("s_cbranch_scc1 F_SKB17")
    bar(True)
    e("F_SKB17:")
    def rd_v(u, buf):
        for T in range(4):
            r = V_VF + 16 * buf + 4 * T
            e(f"ds_read_b64_tr_b16 v[{r}:{r+1}], v{V_AV+T} offset:{u*4096}")
            e(f"ds_read_b64_tr_b16 v[{r+2}:{r+3}], v{V_AV+T} offset:{u*4096+2048}")
    rd_v(0, 0)
    e("s_nop 7")
    e("s_nop 3")
    e(f"v_max3_f32 v{V_M}, v{V_S}, v{V_S+1}, v{V_S+2}")
    for i in range(3, 31, 2):
        e(f"v_max3_f32 v{V_M}, v{V_M}, v{V_S+i}, v{V_S+i+1}")
    e(f"v_max_f32 v{V_M}, v{V_M}, v{V_S+31}")
    e(f"v_mov_b32 v{V_M2}, v{V_M}")
    e("s_nop 1")
    e(f"v_permlane32_swap_b32 v{V_M}, v{V_M2}")
    e("s_nop 1")
    e(f"v_max_f32 v{V_M}, v{V_M}, v{V_M2}")
    e(f"s_mov_b32 s{S_TMP}, 0x3e0293ee")
    e(f"v_mul_f32 v{V_M}, s{S_TMP}, v{V_M}")
    for i in range(32):
        e(f"v_fma_f32 v{V_S+i}, v{V_S+i}, s{S_TMP}, -v{V_M}")
    for i in range(32):
        e(f"v_exp_f32 v{V_S+i}, v{V_S+i}")
    e("s_nop 0")
    e(f"v_add_f32 v{V_SUM}, v{V_S}, v{V_S+1}")
    e(f"v_add_f32 v{V_SUM2}, v{V_S+2}, v{V_S+3}")
    for i in range(4, 32, 2):
        e(f"v_add_f32 v{V_SUM}, v{V_SUM}, v{V_S+i}")
        e(f"v_add_f32 v{V_SUM2}, v{V_SUM2}, v{V_S+i+1}")
    e(f"v_add_f32 v{V_SUM}, v{V_SUM}, v{V_SUM2}")
    e(f"v_mov_b32 v{V_SUM2}, v{V_SUM}")
    e("s_nop 1")
    e(f"v_permlane32_swap_b32 v{V_SUM}, v{V_SUM2}")
    e("s_nop 1")
    e(f"v_add_f32 v{V_SUM}, v{V_SUM}, v{V_SUM2}")
    e(f"v_rcp_f32 v{V_SUM}, v{V_SUM}")
    e("s_nop 0")
    for i in range(32):
        e(f"v_mul_f32 v{V_S+i}, v{V_S+i}, v{V_SUM}")
    for i in range(16):
        e(f"v_cvt_pk_bf16_f32 v{V_PB+i}, v{V_S+2*i}, v{V_S+2*i+1}")
    e("s_nop 1")
    for u in range(4):
        buf = u & 1
        e("s_waitcnt lgkmcnt(0)")
        if u + 1 < 4:
            rd_v(u + 1, buf ^ 1)
        for T in range(4):
            a = V_VF + 16 * buf + 4 * T
            b = V_PB + 4 * u
            acc = V_ACC + 16 * T
            cc = "0" if u == 0 else f"v[{acc}:{acc+15}]"
            e(f"v_mfma_f32_32x32x16_bf16 v[{acc}:{acc+15}], v[{a}:{a+3}], v[{b}:{b+3}], {cc}")
    e("s_nop 7")
    e("s_nop 7")
    for ks in range(8):
        a = V_ACC + 8 * ks
        d = V_BX + 4 * ks
        for i in range(4):
            e(f"v_cvt_pk_bf16_f32 v{d+i}, v{a+2*i}, v{a+2*i+1}")
    for i in range(32):
        e(f"v_mov_b32 v{V_ACC2+i}, 0")
    if DRY:
        e(f"s_cmp_eq_u32 s{S_DRY}, 1")
        e("s_cbranch_scc1 F_P2PRE")
    stamp()
    e(f"s_add_u32 s{S_TMP+1}, s{S_X1}, 4096")
    for ks in range(8):
        d = V_BX + 4 * ks
        so = S_X1 if ks < 4 else S_TMP + 1
        e(f"buffer_store_dwordx4 v[{d}:{d+3}], v{V_ST}, s[{S_A}:{S_A+3}], s{so} offen offset:{1024*(ks&3)} sc1")
    e(f"s_mov_b32 s{S_CNT}, 0")
    e("F_TOKL:")
    e(f"buffer_load_dwordx2 v[{V_TOK}:{V_TOK+1}], v{V_ZERO}, s[{S_B}:{S_B+3}], 0 offen sc0 sc1")
    e("s_waitcnt vmcnt(0)")
    e(f"v_readfirstlane_b32 s{S_TOK}, v{V_TOK}")
    e(f"v_readfirstlane_b32 s{S_TOK+1}, v{V_TOK+1}")
    e(f"s_add_u32 s{S_CNT}, s{S_CNT}, 1")
    e(f"s_cmp_gt_u32 s{S_CNT}, {SPIN}")
    e("s_cbranch_scc1 F_TOKX")
    e(f"s_cmp_eq_u32 s{S_TOK}, 0")
    e("s_cbranch_scc1 F_TOKL")
    e("F_TOKX:")
    stamp()
    e(f"s_add_u32 s{S_TMP}, s{S_T2}, {F1_OFF}")
    e(f"s_add_u32 s{S_TMP+1}, s{S_T2}, {F1A_OFF}")
    e("s_mov_b64 exec, 1")
    e(f"buffer_store_dwordx2 v[{V_TOK}:{V_TOK+1}], v{V_ZERO}, s[{S_A}:{S_A+3}], s{S_TMP+1} offen")
    e(f"buffer_store_dwordx2 v[{V_TOK}:{V_TOK+1}], v{V_ZERO}, s[{S_A}:{S_A+3}], s{S_TMP} offen sc1")
    e("s_mov_b64 exec, -1")
    bar()
    poll_loop("F_P1", V_FA1A, S_A, "sc1", V_FA1)
    stamp()

    def sib_load(b, jadd):
        e(f"s_add_u32 s{S_TMP}, s{S_HL}, s{S_J}")
        e(f"s_add_u32 s{S_TMP}, s{S_TMP}, {jadd}")
        e(f"s_and_b32 s{S_TMP}, s{S_TMP}, 7")
        e(f"s_lshl_b32 s{S_TMP}, s{S_TMP}, 18")
        e(f"s_add_u32 s{S_TMP}, s{S_TMP}, s{S_X0}")
        e(f"s_add_u32 s{S_TMP+1}, s{S_TMP}, 4096")
        for ks in range(8):
            e(f"buffer_load_dwordx4 v[{b+4*ks}:{b+4*ks+3}], v{V_ST}, s[{S_A}:{S_A+3}], s{S_TMP + (ks >> 2)} offen offset:{1024*(ks&3)} sc1")
    def rd_o(step, buf):
        off = step * 2048
        for T in range(2):
            r = V_FO + 8 * buf + 4 * T
            e(f"ds_read_b64_tr_b16 v[{r}:{r+1}], v{V_AO+T} offset:{off}")
            e(f"ds_read_b64_tr_b16 v[{r+2}:{r+3}], v{V_AO+T} offset:{off + 512}")
    e(f"s_mov_b32 s{S_J}, 0")
    sib_load(V_BY, 1)
    e("F_P2PRE:")
    if DRY:
        e(f"s_cmp_eq_u32 s{S_DRY}, 1")
        e(f"s_cselect_b32 s{S_J}, 6, 0")
    rd_o(0, 0)
    e("P2_L:")
    for half, breg in ((0, V_BX), (1, V_BY)):
        if half == 0:
            e("s_waitcnt vmcnt(8)")
        else:
            e(f"s_cmp_lt_u32 s{S_J}, 6")
            e("s_cbranch_scc1 P2_W8")
            e("s_waitcnt vmcnt(0)")
            e("P2_W8:")
            e("s_waitcnt vmcnt(8)")
        for s in range(8):
            step = 8 * half + s
            buf = s & 1
            rd_o(step + 1, buf ^ 1)
            for T in range(2):
                e(f"s_waitcnt lgkmcnt({4 + 2*(1-T)})")
                a = V_FO + 8 * buf + 4 * T
                b = breg + 4 * s
                acc = V_ACC2 + 16 * T
                e(f"v_mfma_f32_32x32x16_bf16 v[{acc}:{acc+15}], v[{a}:{a+3}], v[{b}:{b+3}], v[{acc}:{acc+15}]")
        e(f"s_cmp_ge_u32 s{S_J}, 6")
        e(f"s_cbranch_scc1 P2_S{half}")
        sib_load(breg, 2 + half)
        e(f"P2_S{half}:")
    e(f"v_add_u32 v{V_AO}, 0x8000, v{V_AO}")
    e(f"v_add_u32 v{V_AO+1}, 0x8000, v{V_AO+1}")
    e(f"s_add_u32 s{S_J}, s{S_J}, 2")
    e(f"s_cmp_lt_u32 s{S_J}, 8")
    e("s_cbranch_scc1 P2_L")
    e("s_waitcnt lgkmcnt(0)")
    if DRY:
        e(f"s_cmp_eq_u32 s{S_DRY}, 0")
        e("s_cbranch_scc1 F_X2")
        e(f"v_subrev_u32 v{V_AO}, 0x8000, v{V_AO}")
        e(f"v_subrev_u32 v{V_AO+1}, 0x8000, v{V_AO+1}")
        e("s_nop 7")
        e("s_nop 7")
        e("s_branch F_REAL")
        e("F_X2:")
    e("s_nop 7")
    e("s_nop 3")
    stamp()
    e(f"s_andn2_b32 s{S_BASE}, s2, 3")
    e(f"s_lshl_b32 s{S_BASE}, s{S_BASE}, 2")
    e(f"s_add_u32 s{S_BASE}, s{S_BASE}, s{S_G4}")
    e(f"s_lshl_b32 s{S_BASE}, s{S_BASE}, 2")
    e(f"s_add_u32 s{S_BASE}, s{S_BASE}, s{S_WV}")
    e(f"s_lshl_b32 s{S_BASE}, s{S_BASE}, 11")
    e(f"s_add_u32 s{S_BASE}, s{S_BASE}, {PX_OFF}")
    for qd in range(4):
        e(f"s_cmp_eq_u32 s{S_G4}, {qd}")
        e(f"s_cbranch_scc1 F_SK{qd}")
        e(f"s_add_u32 s{S_TMP}, s{S_BASE}, {qd * 32768}")
        a = V_ACC2 + 8 * qd
        e(f"buffer_store_dwordx4 v[{a}:{a+3}], v{V_ST}, s[{S_A}:{S_A+3}], s{S_TMP} offen sc1")
        e(f"buffer_store_dwordx4 v[{a+4}:{a+7}], v{V_ST}, s[{S_A}:{S_A+3}], s{S_TMP} offen offset:1024 sc1")
        e(f"s_branch F_SE{qd}")
        e(f"F_SK{qd}:")
        for i in range(8):
            e(f"v_mov_b32 v{V_FIN+i}, v{a+i}")
        e(f"F_SE{qd}:")
    e(f"s_add_u32 s{S_TMP}, s{S_T2}, {F2_OFF}")
    e("s_waitcnt vmcnt(0)")
    stamp()
    e("s_mov_b64 exec, 1")
    e(f"buffer_store_dwordx2 v[{V_TOK}:{V_TOK+1}], v{V_ZERO}, s[{S_A}:{S_A+3}], s{S_TMP} offen sc1")
    e("s_mov_b64 exec, -1")
    e(f"s_lshl_b32 s{S_BASE}, s2, 4")
    e(f"s_add_u32 s{S_BASE}, s{S_BASE}, s{S_WV}")
    e(f"s_lshl_b32 s{S_BASE}, s{S_BASE}, 11")
    e(f"s_add_u32 s{S_BASE}, s{S_BASE}, {PX_OFF}")
    poll_loop("F_P2", V_FA2, S_A, opt("p2flags", "sc0 sc1"))
    stamp()
    for n in range(3):
        e(f"s_add_u32 s{S_TMP}, s{S_G4}, {n+1}")
        e(f"s_and_b32 s{S_TMP}, s{S_TMP}, 3")
        e(f"s_lshl_b32 s{S_TMP}, s{S_TMP}, 13")
        e(f"s_add_u32 s{S_TMP}, s{S_TMP}, s{S_BASE}")
        b = V_PR + 8 * n
        e(f"buffer_load_dwordx4 v[{b}:{b+3}], v{V_ST}, s[{S_A}:{S_A+3}], s{S_TMP} offen sc1")
        e(f"buffer_load_dwordx4 v[{b+4}:{b+7}], v{V_ST}, s[{S_A}:{S_A+3}], s{S_TMP} offen offset:1024 sc1")
    e(f"s_lshl_b32 s{S_TMP}, s{S_RB}, 17")
    e(f"s_lshl_b32 s{S_TMP+1}, s{S_HL}, 7")
    e(f"s_add_u32 s{S_TMP}, s{S_TMP}, s{S_TMP+1}")
    e(f"s_lshl_b32 s{S_TMP+1}, s{S_G4}, 5")
    e(f"s_add_u32 s{S_TMP}, s{S_TMP}, s{S_TMP+1}")
    for n in range(3):
        e(f"s_waitcnt vmcnt({2*(2-n)})")
        for i in range(8):
            e(f"v_add_f32 v{V_FIN+i}, v{V_FIN+i}, v{V_PR+8*n+i}")
    for i in range(4):
        e(f"v_cvt_pk_bf16_f32 v{V_FIN+8+i}, v{V_FIN+2*i}, v{V_FIN+2*i+1}")
    e(f"buffer_store_dwordx4 v[{V_FIN+8}:{V_FIN+11}], v{V_OUT}, s[{S_C}:{S_C+3}], s{S_TMP} offen")
    stamp_flush()
    e("F_DONE:")
    e("s_endpgm")
    L.append(kd(name, NVGPR))


def main():
    out = sys.argv[1]
    hdr = HEADER
    hdr += "; @launch grid=(256,1,1) block=(512,1,1) lds=163840\n"
    hdr += '.amdgcn_target "amdgcn-amd-amdhsa--gfx950"\n'
    fused()
    open(out, "w").write(hdr + "\n".join(L) + "\n")

main()
```

```python
import sys

HEADER = """; Kernarg layout for this problem (64 bytes, ptrs only, base s[0:1]):
"""
KNAME = "standalone__gqa_block_cached__near_ridge_kernel"
ARGS = sys.argv[2:]
def opt(name, default):
    for a in ARGS:
        if a.startswith(name + "="):
            return a.split("=", 1)[1].replace("_", " ")
    return default

L = []
def e(s=""):
    L.append("    " + s if s and not s.endswith(":") else s)

def kd(name, vgpr, sgpr=100):
    acc = (vgpr + 3) // 4 * 4
    return f""".section .rodata,"a"
.p2align 6
.amdhsa_kernel {name}
  .amdhsa_next_free_vgpr {vgpr}
  .amdhsa_next_free_sgpr {sgpr}
  .amdhsa_accum_offset {acc}
  .amdhsa_group_segment_fixed_size 0
  .amdhsa_kernarg_size 64
  .amdhsa_user_sgpr_count 2
  .amdhsa_user_sgpr_kernarg_segment_ptr 1
  .amdhsa_system_sgpr_workgroup_id_x 1
.end_amdhsa_kernel
"""

def srd(d, b, nbytes, extra_off=None):
    if extra_off:
        e(f"s_add_u32 s{d}, s{b}, {extra_off}")
        e(f"s_addc_u32 s{d+1}, s{b+1}, 0")
    else:
        e(f"s_mov_b32 s{d}, s{b}")
        e(f"s_mov_b32 s{d+1}, s{b+1}")
    e(f"s_mov_b32 s{d+2}, {nbytes}")
    e(f"s_mov_b32 s{d+3}, 0x00020000")

STAMPS = "--stamps" in ARGS
NST = [0]
S_WV = 42
def stamp(real=False):
    if not STAMPS: return
    i = NST[0]; NST[0] += 1
    assert i < 17, "too many stamps"
    e(f"{'s_memrealtime' if real else 's_memtime'} s[{62+2*i}:{63+2*i}]")

def stamp_flush():
    if not STAMPS: return
    e("s_waitcnt vmcnt(0) lgkmcnt(0)")
    stamp(False)
    stamp(True)
    n = NST[0]
    e("s_waitcnt lgkmcnt(0)")
    srd(20, 18, 1 << 20, extra_off=(64 << 20))
    e(f"s_lshl_b32 s3, s2, 3")
    e(f"s_add_u32 s3, s3, s{S_WV}")
    e(f"s_lshl_b32 s3, s3, 8")
    e("v_and_b32 v2, 63, v0")
    e("v_lshlrev_b32 v2, 2, v2")
    e("s_mov_b64 exec, 0xffff")
    e("buffer_store_dword v231, v2, s[20:23], s3 offen offset:192")
    e("s_mov_b64 exec, -1")
    e("v_mov_b32 v2, 0")
    e("s_mov_b64 exec, 1")
    for i in range(n):
        e(f"v_mov_b32 v4, s{62+2*i}")
        e(f"v_mov_b32 v5, s{63+2*i}")
        e(f"buffer_store_dwordx2 v[4:5], v2, s[20:23], s3 offen offset:{8*i}")
        e("s_nop 1")

def bar(st=False):
    if st: stamp()
    e("s_barrier")

def lend(rem=0):
    if STAMPS:
        for _ in range(rem):
            e("s_barrier")
    stamp_flush()
    NST[0] = 2
    e("s_endpgm")

PX_OFF = 8 << 20
F1_OFF = 16 << 20
F1A_OFF = F1_OFF + (512 << 10)
F2_OFF = 17 << 20
CK_OFF = 18 << 20
WS_BYTES = 20 << 20
WQ_BASE, X_BASE, K_BASE, V_BASE = 0, 49152, 98304, 131072

V_LANE = 1
V_T0, V_T1, V_T2, V_T3 = 2, 3, 4, 5
V_ST = 6
V_OUT = 7
V_AX = 8
V_AW = 12
V_AK = 16
V_AV = 24
V_AO = 28
V_ZERO = 30
V_FX = 32
V_FW = 40
V_ACC = 72
V_S = 136
V_QB = 168
V_KF = 200
V_PB = 168
V_VF = 32
V_M, V_M2, V_SUM, V_SUM2 = 216, 217, 218, 219
V_TOK = 220
V_FA1 = 222
V_FA2 = 223
V_FV = 224
V_FA1A = 226
V_BX = 136
V_BY = 32
V_BZ = 64
V_BW = 96
V_ACC2 = 168
V_FO = 64
V_PR = 72
V_FIN = 112
V_MM = 228
V_RS = 228
NVGPR = 232

S_A, S_B, S_C, S_D = 20, 24, 28, 32
S_H, S_RB = 40, 41
S_HL, S_G4 = 43, 44
S_DRY = 45
S_TMP = 46
S_ROT = 48
S_BASE = 49
S_CNT = 50
S_LO = 51
S_TOK = 52
S_T2 = 54
S_I = 55
S_X0, S_X1 = 56, 57
S_J = 58
S_DEL = 59
S_SK0 = 39

SPIN = int(opt('spin', '200000'))
SIBF = opt('sibflags', 'sc1')


def poll_loop(label, vaddr, srd_reg, flags="sc1", vaddr2=None, mask=255):
    e(f"s_mov_b32 s{S_CNT}, 0")
    e(f"s_mov_b64 exec, {mask}")
    e(f"{label}:")
    if vaddr2 is not None:
        e(f"s_and_b32 s{S_TMP}, s{S_CNT}, 7")
        e(f"s_cmp_eq_u32 s{S_TMP}, 7")
        e(f"s_cbranch_scc1 {label}_B")
    e(f"buffer_load_dwordx2 v[{V_FV}:{V_FV+1}], v{vaddr}, s[{srd_reg}:{srd_reg+3}], 0 offen {flags}")
    if vaddr2 is not None:
        e(f"s_branch {label}_C")
        e(f"{label}_B:")
        e(f"buffer_load_dwordx2 v[{V_FV}:{V_FV+1}], v{vaddr2}, s[{srd_reg}:{srd_reg+3}], 0 offen sc0 sc1")
        e(f"{label}_C:")
    e(f"s_add_u32 s{S_CNT}, s{S_CNT}, 1")
    e("s_waitcnt vmcnt(0)")
    e(f"v_cmp_ne_u64 vcc, s[{S_TOK}:{S_TOK+1}], v[{V_FV}:{V_FV+1}]")
    e(f"s_cmp_gt_u32 s{S_CNT}, {SPIN}")
    e(f"s_cbranch_scc1 {label}_X")
    e("s_nop 2")
    e(f"s_cbranch_vccz {label}_X")
    if opt("psleep", "0") != "0":
        e(f"s_sleep {opt('psleep', '0')}")
    e(f"s_branch {label}")
    e(f"{label}_X:")
    e("s_mov_b64 exec, -1")


def issue8(vbase, srd_reg, soff, flags):
    e(f"s_mov_b32 m0, s{S_LO}")
    e(f"s_add_u32 s{S_TMP+1}, s{S_LO}, 4096")
    for j in range(4):
        e(f"buffer_load_dwordx4 v{vbase+j}, s[{srd_reg}:{srd_reg+3}], s{soff} offen offset:{1024*j} {flags} lds")
    e(f"s_mov_b32 m0, s{S_TMP+1}")
    e("s_nop 0")
    for j in range(4):
        e(f"buffer_load_dwordx4 v{vbase+4+j}, s[{srd_reg}:{srd_reg+3}], s{soff} offen offset:{1024*j} {flags} lds")


def ring_adv(base):
    e(f"s_add_u32 s{S_LO}, s{S_LO}, 8192")
    e(f"s_cmp_eq_u32 s{S_LO}, {base + 49152}")
    e(f"s_cselect_b32 s{S_LO}, {base}, s{S_LO}")


def wo_loader(half, tag):
    e(f"v_lshrrev_b32 v{V_T1}, 3, v{V_LANE}")
    e(f"v_and_b32 v{V_T2}, 7, v{V_LANE}")
    e(f"v_bfe_u32 v{V_T3}, v{V_LANE}, 4, 1")
    e(f"v_lshlrev_b32 v{V_T3}, 2, v{V_T3}")
    e(f"v_xor_b32 v{V_T2}, v{V_T2}, v{V_T3}")
    e(f"v_lshlrev_b32 v{V_T2}, 4, v{V_T2}")
    e(f"v_lshl_add_u32 v24, v{V_T1}, 10, v{V_T2}")
    for i in range(1, 8):
        e(f"v_add_u32 v{24+i}, {8*i*1024 - 1024*(i&3)}, v24")
    srd(S_B, 12, 4 << 20)
    e(f"s_lshl_b32 s{S_BASE}, s{S_G4}, 20")
    e(f"s_lshl_b32 s{S_TMP}, s{S_HL}, 7")
    e(f"s_add_u32 s{S_BASE}, s{S_BASE}, s{S_TMP}")
    if half:
        e(f"s_add_u32 s{S_BASE}, s{S_BASE}, 65536")
    e(f"s_mov_b32 s{S_LO}, {half * 8192}")
    e(f"s_mov_b32 s{S_J}, 0")
    bar()
    bar(True)
    e(f"WO_L{tag}:")
    e(f"s_add_u32 s{S_TMP}, s{S_HL}, s{S_J}")
    e(f"s_and_b32 s{S_TMP}, s{S_TMP}, 7")
    e(f"s_lshl_b32 s{S_TMP}, s{S_TMP}, 17")
    e(f"s_add_u32 s{S_TMP}, s{S_TMP}, s{S_BASE}")
    e(f"s_waitcnt vmcnt({int(opt('wothr', '16'))})")
    issue8(24, S_B, S_TMP, opt("woflags", ""))
    e(f"s_add_u32 s{S_LO}, s{S_LO}, 16384")
    e(f"s_add_u32 s{S_J}, s{S_J}, 1")
    e(f"s_cmp_lg_u32 s{S_J}, 6")
    e(f"s_cbranch_scc1 WO_N{tag}")
    bar(True)
    e(f"WO_N{tag}:")
    e(f"s_cmp_lt_u32 s{S_J}, 8")
    e(f"s_cbranch_scc1 WO_L{tag}")
    e("s_waitcnt vmcnt(0)")
    bar(True)
    lend()


def fused():
    name = KNAME
    NST[0] = 0
    e(".text")
    e(f".globl {name}")
    e(".p2align 8")
    e(f".type {name},@function")
    e(f"{name}:")
    e("s_cmp_ge_u32 s2, 256")
    e("s_cbranch_scc1 F_DONE")
    stamp(True)
    stamp()
    e("s_load_dwordx16 s[4:19], s[0:1], 0")
    e(f"v_and_b32 v{V_LANE}, 63, v0")
    if STAMPS: e("v_mov_b32 v231, 0")
    e(f"v_lshrrev_b32 v{V_T0}, 6, v0")
    e(f"s_and_b32 s{S_G4}, s2, 3")
    e(f"v_readfirstlane_b32 s{S_WV}, v{V_T0}")
    e(f"s_lshr_b32 s{S_I}, s2, 3")
    e(f"s_and_b32 s{S_HL}, s{S_I}, 7")
    e(f"s_lshl_b32 s{S_H}, s{S_G4}, 3")
    e(f"s_add_u32 s{S_H}, s{S_H}, s{S_HL}")
    e(f"s_lshr_b32 s{S_TMP}, s2, 6")
    e(f"s_and_b32 s{S_RB}, s2, 4")
    e(f"s_add_u32 s{S_RB}, s{S_RB}, s{S_TMP}")
    e(f"s_lshl_b32 s{S_ROT}, s{S_TMP}, 1")
    e(f"s_add_u32 s{S_ROT}, s{S_ROT}, s{S_HL}")
    e(f"s_and_b32 s{S_ROT}, s{S_ROT}, 7")
    e(f"s_lshl_b32 s{S_ROT}, s{S_ROT}, 1")
    if opt("rot", "0") == "0":
        e(f"s_mov_b32 s{S_ROT}, 0")
    e(f"s_cmp_lt_u32 s{S_WV}, 4")
    e("s_cbranch_scc1 F_COMPUTE")
    e(f"s_cmp_eq_u32 s{S_WV}, 5")
    e("s_cbranch_scc1 F_LX")
    e(f"s_cmp_gt_u32 s{S_WV}, 5")
    e("s_cbranch_scc1 F_LKV")

    e(f"s_lshl_b32 s{S_BASE}, s{S_H}, 8")
    e(f"v_lshrrev_b32 v{V_T1}, 4, v{V_LANE}")
    e(f"v_and_b32 v{V_T2}, 15, v{V_LANE}")
    e(f"v_lshlrev_b32 v{V_T3}, 2, v{V_T1}")
    e(f"v_xor_b32 v{V_T2}, v{V_T2}, v{V_T3}")
    e(f"v_lshlrev_b32 v{V_T2}, 4, v{V_T2}")
    e(f"v_lshl_add_u32 v8, v{V_T1}, 13, v{V_T2}")
    for j in range(1, 8):
        e(f"v_add_u32 v{8+j}, {(4*j << 13) - 1024*(j & 3)}, v8")
    e(f"s_mov_b32 s{S_LO}, {WQ_BASE}")
    e(f"s_mov_b32 s{S_J}, 0")
    e("s_waitcnt lgkmcnt(0)")
    srd(S_A, 10, 4 << 20)
    DW = int(opt("dw", "4"))
    wqf = opt("wqflags", "")
    def w_issue():
        e(f"s_add_u32 s{S_TMP}, s{S_ROT}, s{S_J}")
        e(f"s_and_b32 s{S_TMP}, s{S_TMP}, 15")
        e(f"s_lshl_b32 s{S_TMP}, s{S_TMP}, 18")
        e(f"s_add_u32 s{S_TMP}, s{S_TMP}, s{S_BASE}")
        issue8(8, S_A, S_TMP, wqf)
        ring_adv(WQ_BASE)
        e(f"s_add_u32 s{S_J}, s{S_J}, 1")
    def ring_loader(tag, issue, D, need_of, free_ok):
        for J in range(D, 16):
            assert free_ok(J, J - D - 1), (tag, J)
        waits = set()
        for J in range(D, 16):
            r = J - D - 1
            waits.add(8 * (J - 1 - need_of(r)))
        w = min(waits)
        e(f"{tag}_L:")
        e(f"s_cmp_lt_u32 s{S_J}, {D}")
        e(f"s_cbranch_scc1 {tag}_I")
        e(f"s_waitcnt vmcnt({w})")
        e("s_barrier")
        e(f"{tag}_I:")
        issue()
        e(f"s_cmp_lt_u32 s{S_J}, 16")
        e(f"s_cbranch_scc1 {tag}_L")
        for r in range(16 - D - 1, 15):
            e(f"s_waitcnt vmcnt({8 * max(0, 15 - need_of(r))})")
            bar(r == 16 - D - 1)
    ring_loader("LW", w_issue, DW, lambda r: r + 1, lambda J, r: J <= max(r - 1, -1) + 6)
    wo_loader(0, "A")

    e("F_LX:")
    e(f"v_lshrrev_b32 v{V_T1}, 3, v{V_LANE}")
    e(f"v_and_b32 v{V_T2}, 7, v{V_LANE}")
    e(f"v_lshrrev_b32 v{V_T3}, 4, v{V_LANE}")
    e(f"v_xor_b32 v{V_T3}, v{V_T3}, v{V_T2}")
    e(f"v_lshlrev_b32 v{V_T3}, 4, v{V_T3}")
    e(f"v_lshl_add_u32 v8, v{V_T1}, 10, v{V_T3}")
    e(f"v_xor_b32 v9, 64, v8")
    e(f"v_add_u32 v9, {8*1024 - 1024}, v9")
    for i in range(2, 8):
        e(f"v_add_u32 v{8+i}, {(8*i*1024 - 1024*(i&3)) - (8*(i&1)*1024 - 1024*(i&1))}, v{8 + (i & 1)}")
    e(f"s_lshl_b32 s{S_BASE}, s{S_RB}, 17")
    e(f"s_mov_b32 s{S_LO}, {X_BASE}")
    e(f"s_mov_b32 s{S_J}, 0")
    e("s_waitcnt lgkmcnt(0)")
    srd(S_A, 4, 1 << 20)
    xf = opt("xflags", "")
    def x_issue():
        e(f"s_add_u32 s{S_TMP}, s{S_ROT}, s{S_J}")
        e(f"s_and_b32 s{S_TMP+1}, s{S_TMP}, 1")
        e(f"s_lshl_b32 s{S_TMP+1}, s{S_TMP+1}, 16")
        e(f"s_and_b32 s{S_TMP}, s{S_TMP}, 14")
        e(f"s_lshl_b32 s{S_TMP}, s{S_TMP}, 6")
        e(f"s_add_u32 s{S_TMP}, s{S_TMP}, s{S_TMP+1}")
        e(f"s_add_u32 s{S_TMP}, s{S_TMP}, s{S_BASE}")
        issue8(8, S_A, S_TMP, xf)
        ring_adv(X_BASE)
        e(f"s_add_u32 s{S_J}, s{S_J}, 1")
    DX = int(opt("dx", "3"))
    ring_loader("LX", x_issue, DX, lambda r: 2 * ((r + 1) >> 1) + 1,
                lambda n, r: (n >> 1) - 3 <= ((r - 2) >> 1 if r >= 2 else -1))
    wo_loader(1, "B")

    e("F_LKV:")
    e(f"v_lshrrev_b32 v{V_T1}, 4, v{V_LANE}")
    e(f"v_and_b32 v{V_T2}, 15, v{V_LANE}")
    e(f"v_lshlrev_b32 v{V_T0}, 8, v{V_T1}")
    e(f"s_lshl_b32 s{S_BASE}, s{S_RB}, 6")
    e(f"s_add_u32 s{S_BASE}, s{S_BASE}, s{S_H}")
    e(f"s_lshl_b32 s{S_BASE}, s{S_BASE}, 14")
    e(f"v_lshlrev_b32 v18, 7, v{V_LANE}")
    e(f"s_mov_b32 s{S_J}, 0")
    e(f"s_mov_b32 s{S_CNT}, 0")
    e(f"s_cmp_eq_u32 s{S_WV}, 7")
    e("s_cbranch_scc1 F_LV")
    kvf = opt("kvflags", "")
    def kv_group(srd_reg, lds_base, vo):
        e(f"s_lshl_b32 s{S_TMP}, s{S_J}, 12")
        e(f"s_add_u32 m0, s{S_TMP}, {lds_base}")
        e(f"s_and_b32 s{S_TMP}, s{S_TMP}, 0x3000")
        e(f"s_lshr_b32 s{S_TMP+1}, s{S_J}, 2")
        e(f"s_lshl_b32 s{S_TMP+1}, s{S_TMP+1}, 19")
        e(f"s_add_u32 s{S_TMP}, s{S_TMP}, s{S_TMP+1}")
        e(f"s_add_u32 s{S_TMP}, s{S_TMP}, s{S_BASE}")
        for j in range(4):
            e(f"buffer_load_dwordx4 v{vo(j)}, s[{srd_reg}:{srd_reg+3}], s{S_TMP} offen offset:{1024*j} {kvf} lds")
        e(f"s_add_u32 s{S_J}, s{S_J}, 1")
    for j in range(4):
        e(f"v_add_u32 v{V_T3}, {4*j}, v{V_T1}")
        e(f"v_xor_b32 v{V_T3}, v{V_T3}, v{V_T2}")
        e(f"v_lshl_add_u32 v{8+j}, v{V_T3}, 4, v{V_T0}")
    e("s_waitcnt lgkmcnt(0)")
    srd(S_A, 6, 8 << 20)
    SG0 = int(opt("sg0", "2")); SGS = int(opt("sgs", "4")); SGM = int(opt("sgm", "3")); SGH = int(opt("sgh", "0"))
    def slot_calc(extra):
        e(f"s_lshr_b32 s{S_X0}, s{S_I}, {SGH}")
        e(f"s_and_b32 s{S_X0}, s{S_X0}, {SGM}")
        e(f"s_mul_i32 s{S_X0}, s{S_X0}, {SGS}")
        e(f"s_add_u32 s{S_X0}, s{S_X0}, {SG0 + extra}")
    def burst_loop(tag, body, nbar, extra=None):
        e(f"{tag}_L:")
        if extra:
            e(f"s_cmp_lg_u32 s{S_CNT}, s{S_X1}")
            e(f"s_cbranch_scc1 {tag}_E")
            extra()
            e(f"{tag}_E:")
        e(f"s_cmp_lg_u32 s{S_CNT}, s{S_X0}")
        e(f"s_cbranch_scc1 {tag}_S")
        e(f"{tag}_G:")
        body()
        e(f"s_cmp_lt_u32 s{S_J}, 8")
        e(f"s_cbranch_scc1 {tag}_G")
        e(f"{tag}_S:")
        e("s_barrier")
        e(f"s_add_u32 s{S_CNT}, s{S_CNT}, 1")
        e(f"s_cmp_lt_u32 s{S_CNT}, {nbar}")
        e(f"s_cbranch_scc1 {tag}_L")
    assert SG0 + SGS * SGM + int(opt("vex", "0")) <= 15
    slot_calc(0)
    PF = opt("pf", "1") == "1"
    xw_pf = None
    if PF:
        PC0 = int(opt("pc0", "2")); PLEAD = int(opt("plead", "3"))
        srd(S_B, 4, 1 << 20)
        srd(S_C, 10, 4 << 20)
        e(f"v_lshlrev_b32 v16, 10, v{V_LANE}")
        e(f"v_lshlrev_b32 v17, 13, v{V_T1}")
        e(f"v_lshl_add_u32 v17, v{V_T2}, 7, v17")
        e(f"s_lshr_b32 s36, s{S_I}, 2")
        e(f"s_and_b32 s37, s{S_I}, 3")
        e(f"s_max_u32 s{S_X1}, s36, {PLEAD}")
        e(f"s_sub_u32 s{S_X1}, s{S_X1}, {PLEAD}")
        e(f"s_lshl_b32 s{S_X1}, s{S_X1}, 1")
        e(f"s_cmp_lt_u32 s36, {PC0}")
        e(f"s_cselect_b32 s{S_X1}, 99, s{S_X1}")
        e(f"s_and_b32 s38, s2, 4")
        e(f"s_add_u32 s38, s38, s37")
        e(f"s_lshl_b32 s38, s38, 17")
        e(f"s_lshl_b32 s{S_TMP}, s36, 7")
        e(f"s_add_u32 s38, s38, s{S_TMP}")
        e(f"s_lshl_b32 s39, s{S_I}, 17")
        e(f"s_lshl_b32 s{S_TMP}, s{S_G4}, 11")
        e(f"s_add_u32 s39, s39, s{S_TMP}")
        def xw_pf():
            e(f"buffer_load_dword v20, v16, s[{S_B}:{S_B+3}], s38 offen")
            e(f"s_add_u32 s38, s38, 65536")
            e(f"buffer_load_dword v20, v16, s[{S_B}:{S_B+3}], s38 offen")
            for _ in range(4):
                e(f"buffer_load_dword v21, v17, s[{S_C}:{S_C+3}], s39 offen")
                e(f"s_add_u32 s39, s39, 32768")
    burst_loop("LK", lambda: kv_group(S_A, K_BASE, lambda j: 8 + j), 16, xw_pf)
    e("s_waitcnt vmcnt(0)")
    bar(True)
    lend(3)

    e("F_LV:")
    if opt("cpf", "0") == "1":
        e(f"s_cmp_ge_u32 s{S_I}, {opt('cpfn', '2')}")
        e("s_cbranch_scc1 F_NOCPF")
        e("s_getpc_b64 s[36:37]")
        e("F_PCREF:")
        e(f"s_sub_u32 s36, s36, F_PCREF-{KNAME}")
        e("s_subb_u32 s37, s37, 0")
        e(f"s_mov_b32 s38, F_DONE-{KNAME}")
        for i in range(2):
            e(f"v_add_u32 v29, {8192*i}, v18")
            e("v_min_u32 v29, s38, v29")
            e("v_mov_b32 v31, s37")
            e("v_add_co_u32 v30, vcc, s36, v29")
            e("s_nop 1")
            e("v_addc_co_u32 v31, vcc, 0, v31, vcc")
            e(f"global_load_dword v{32+i}, v[30:31], off")
        e("F_NOCPF:")
    e(f"v_lshlrev_b32 v{V_T3}, 2, v{V_T1}")
    e(f"v_xor_b32 v{V_T3}, v{V_T3}, v{V_T2}")
    e(f"v_lshl_add_u32 v8, v{V_T3}, 4, v{V_T0}")
    e(f"s_memrealtime s[{S_TOK}:{S_TOK+1}]")
    e("s_waitcnt lgkmcnt(0)")
    srd(S_A, 8, 8 << 20)
    srd(S_D, 12, 4 << 20)
    e("s_cmp_lg_u32 s2, 0")
    e("s_cbranch_scc1 F_NOTOK")
    srd(S_B, 16, 256)
    e(f"s_or_b32 s{S_TOK}, s{S_TOK}, 1")
    e(f"v_mov_b32 v10, s{S_TOK}")
    e(f"v_mov_b32 v11, s{S_TOK+1}")
    e("v_mov_b32 v12, 0")
    e(f"buffer_store_dwordx2 v[10:11], v12, s[{S_B}:{S_B+3}], 0 offen sc0 sc1")
    e("F_NOTOK:")
    if opt("tlbw", "0") == "1":
        tf = opt("tlbflags", "sc0 sc1")
        srd(S_B, 6, 8 << 20)
        srd(S_C, 18, WS_BYTES)
        e(f"v_lshlrev_b32 v24, 19, v{V_LANE}")
        e(f"v_lshlrev_b32 v25, 20, v{V_LANE}")
        e("s_mov_b64 exec, 3")
        e(f"buffer_load_dword v26, v24, s[{S_B}:{S_B+3}], s{S_BASE} offen {tf}")
        e(f"buffer_load_dword v26, v24, s[{S_A}:{S_A+3}], s{S_BASE} offen {tf}")
        e(f"s_lshl_b32 s{S_TMP}, s{S_G4}, 20")
        e(f"buffer_load_dword v26, v24, s[{S_D}:{S_D+3}], s{S_TMP} offen {tf}")
        e("s_mov_b64 exec, 0x3ffff")
        e(f"buffer_load_dword v26, v25, s[{S_C}:{S_C+3}], 0 offen {tf}")
        srd(S_B, 14, 1 << 20)
        srd(S_C, 16, 256)
        e("s_mov_b64 exec, 1")
        e(f"buffer_load_dword v26, v25, s[{S_B}:{S_B+3}], 0 offen {tf}")
        e(f"buffer_load_dword v26, v25, s[{S_C}:{S_C+3}], 0 offen offset:128 {tf}")
        e("s_mov_b64 exec, -1")
    slot_calc(int(opt("vex", "0")))
    burst_loop("LV", lambda: kv_group(S_A, V_BASE, lambda j: 8), 16)
    done = 16
    pof = opt("poflags", "")
    npf = 0
    if opt("wopf", "1") == "1":
        e(f"s_lshl_b32 s{S_TMP}, s{S_G4}, 20")
        e(f"s_lshl_b32 s{S_TMP+1}, s{S_I}, 15")
        e(f"s_add_u32 s{S_TMP}, s{S_TMP}, s{S_TMP+1}")
        for qq in range(4):
            if qq: e(f"s_add_u32 s{S_TMP}, s{S_TMP}, 8192")
            e(f"buffer_load_dword v23, v18, s[{S_D}:{S_D+3}], s{S_TMP} offen {pof}")
        npf = 4
    assert done <= 17
    for _ in range(17 - done):
        e("s_barrier")
    e(f"s_waitcnt vmcnt({npf})")
    bar(True)
    lend(2)

    e("F_COMPUTE:")
    e(f"v_and_b32 v{V_T1}, 31, v{V_LANE}")
    e(f"v_bfe_u32 v{V_T2}, v{V_T1}, 1, 3")
    e(f"v_lshrrev_b32 v{V_T3}, 5, v{V_LANE}")
    e(f"v_xor_b32 v{V_T2}, v{V_T2}, v{V_T3}")
    e(f"v_lshlrev_b32 v{V_T2}, 4, v{V_T2}")
    e(f"v_lshl_add_u32 v{V_T1}, v{V_T0}, 5, v{V_T1}")
    e(f"v_lshl_add_u32 v{V_T1}, v{V_T1}, 7, v{V_T2}")
    e(f"v_add_u32 v{V_T1}, {X_BASE}, v{V_T1}")
    for s in range(4):
        e(f"v_xor_b32 v{V_AX+s}, {32*s}, v{V_T1}")
    e(f"v_bfe_u32 v{V_T1}, v{V_LANE}, 2, 2")
    e(f"v_bfe_u32 v{V_T2}, v{V_LANE}, 4, 1")
    e(f"v_lshlrev_b32 v{V_T2}, 2, v{V_T2}")
    e(f"v_and_b32 v{V_T3}, 1, v{V_LANE}")
    e(f"v_lshl_or_b32 v{V_T2}, v{V_T3}, 1, v{V_T2}")
    e(f"v_bfe_u32 v{V_T3}, v{V_LANE}, 1, 1")
    e(f"v_or_b32 v{V_T2}, v{V_T2}, v{V_T3}")
    e(f"v_lshlrev_b32 v{V_T2}, 3, v{V_T2}")
    e(f"v_lshrrev_b32 v{V_T3}, 5, v{V_LANE}")
    e(f"v_lshl_add_u32 v{V_AO}, v{V_T1}, 7, v{V_T2}")
    e(f"v_lshl_add_u32 v{V_AO}, v{V_T3}, 10, v{V_AO}")
    e(f"v_bfe_u32 v{V_AO+1}, v{V_LANE}, 3, 1")
    e(f"v_lshl_add_u32 v{V_AO}, v{V_AO+1}, 6, v{V_AO}")
    e(f"v_xor_b32 v{V_AO+1}, 64, v{V_AO}")
    e(f"v_lshl_add_u32 v{V_T2}, v{V_T1}, 8, v{V_T2}")
    e(f"v_lshl_add_u32 v{V_T2}, v{V_T1}, 6, v{V_T2}")
    for T in range(4):
        e(f"v_xor_b32 v{V_AV+T}, {64*T}, v{V_T2}")
        e(f"v_lshl_add_u32 v{V_AW+T}, v{V_T3}, 11, v{V_AV+T}")
    e(f"v_lshrrev_b32 v{V_T0}, 7, v0")
    e(f"v_and_b32 v{V_T1}, 31, v{V_LANE}")
    e(f"v_and_b32 v{V_T2}, 15, v{V_LANE}")
    e(f"v_xor_b32 v{V_T2}, v{V_T2}, v{V_T3}")
    e(f"v_lshlrev_b32 v{V_T2}, 4, v{V_T2}")
    e(f"v_lshl_add_u32 v{V_T2}, v{V_T1}, 8, v{V_T2}")
    e(f"v_lshl_add_u32 v{V_T2}, v{V_T0}, 14, v{V_T2}")
    e(f"v_add_u32 v{V_T2}, {K_BASE}, v{V_T2}")
    for s in range(8):
        e(f"v_xor_b32 v{V_AK+s}, {32*s}, v{V_T2}")
    e(f"v_lshlrev_b32 v{V_T0}, 14, v{V_T0}")
    e(f"v_lshl_add_u32 v{V_T0}, v{V_T3}, 10, v{V_T0}")
    e(f"v_add_u32 v{V_T0}, {V_BASE}, v{V_T0}")
    for T in range(4):
        e(f"v_add_u32 v{V_AV+T}, v{V_AV+T}, v{V_T0}")
    e(f"v_lshlrev_b32 v{V_ST}, 4, v{V_LANE}")
    e(f"v_lshrrev_b32 v{V_T0}, 6, v0")
    e(f"v_lshl_add_u32 v{V_T0}, v{V_T0}, 5, v{V_T1}")
    e(f"v_lshlrev_b32 v{V_T0}, 10, v{V_T0}")
    e(f"v_lshl_add_u32 v{V_OUT}, v{V_T3}, 4, v{V_T0}")
    e(f"v_and_b32 v{V_T0}, 7, v{V_LANE}")
    e(f"s_andn2_b32 s{S_TMP}, s2, 0x38")
    e(f"s_lshl_b32 s{S_TMP}, s{S_TMP}, 2")
    e(f"s_add_u32 s{S_TMP}, s{S_TMP}, s{S_WV}")
    e(f"s_lshl_b32 s{S_X0}, s{S_TMP}, 13")
    e(f"s_lshl_b32 s{S_TMP}, s{S_TMP}, 6")
    e(f"s_add_u32 s{S_TMP}, s{S_TMP}, {F1_OFF}")
    e(f"v_lshlrev_b32 v{V_T0}, 11, v{V_T0}")
    e(f"v_add_u32 v{V_FA1}, s{S_TMP}, v{V_T0}")
    e(f"v_add_u32 v{V_FA1A}, {F1A_OFF - F1_OFF}, v{V_FA1}")
    e(f"v_and_b32 v{V_T0}, 3, v{V_LANE}")
    e(f"s_andn2_b32 s{S_TMP}, s2, 3")
    e(f"s_lshl_b32 s{S_TMP}, s{S_TMP}, 2")
    e(f"s_add_u32 s{S_TMP}, s{S_TMP}, s{S_WV}")
    e(f"s_lshl_b32 s{S_TMP}, s{S_TMP}, 6")
    e(f"s_add_u32 s{S_TMP}, s{S_TMP}, {F2_OFF}")
    e(f"v_lshlrev_b32 v{V_T0}, 8, v{V_T0}")
    e(f"v_add_u32 v{V_FA2}, s{S_TMP}, v{V_T0}")
    e(f"v_mov_b32 v{V_ZERO}, 0")
    e(f"s_lshl_b32 s{S_TMP}, s2, 2")
    e(f"s_add_u32 s{S_TMP}, s{S_TMP}, s{S_WV}")
    e(f"s_lshl_b32 s{S_T2}, s{S_TMP}, 6")
    e(f"s_lshl_b32 s{S_X1}, s{S_TMP}, 13")
    e("s_waitcnt lgkmcnt(0)")
    srd(S_A, 18, WS_BYTES)
    srd(S_B, 16, 256)
    srd(S_C, 14, 1 << 20)
    DRY = opt("dry", "0") == "1"
    if DRY:
        e(f"s_mov_b32 s{S_DRY}, 1")
        e(f"s_mov_b32 s{S_SK0}, 6")
        e("s_mov_b32 s36, 0x40000000")
        e(f"v_mov_b32 v{V_T1}, 0")
        e(f"s_mov_b32 s{S_J}, 6")
        e("s_mov_b64 exec, 0")
        e(f"s_cmp_eq_u32 s{S_WV}, 0")
        e("s_cbranch_scc1 F_ATT")
        e(f"s_cmp_eq_u32 s{S_WV}, 1")
        e("s_cbranch_scc1 F_SEG1")
        e(f"s_cmp_eq_u32 s{S_WV}, 2")
        e("s_cbranch_scc1 F_SEG2")
        e("s_branch P2_L")
        e("F_REAL:")
        e("s_mov_b64 exec, -1")
        e("s_waitcnt lgkmcnt(0)")
        e("s_nop 7")
        e("s_nop 7")
    e(f"s_mov_b32 s{S_DRY}, 0")
    e(f"s_mov_b32 s{S_SK0}, 0")
    for i in range(64):
        e(f"v_mov_b32 v{V_ACC+i}, 0")

    def rd_x(s, buf):
        e(f"ds_read_b128 v[{V_FX+4*buf}:{V_FX+4*buf+3}], v{V_AX+s}")
    def rd_w(p, buf, T):
        off = p * 4096
        r = V_FW + 16 * buf + 4 * T
        e(f"ds_read_b64_tr_b16 v[{r}:{r+1}], v{V_AW+T} offset:{off}")
        e(f"ds_read_b64_tr_b16 v[{r+2}:{r+3}], v{V_AW+T} offset:{off + 1024}")

    bar(True)
    rd_x(0, 0)
    for T in range(4):
        rd_w(0, 0, T)
    e(f"s_mov_b32 s{S_CNT}, 0")
    e(f"s_mov_b32 s{S_LO}, 0")
    e("s_mov_b32 s60, -32768")
    e("s_mov_b32 s61, 16384")
    if STAMPS:
        e("v_mov_b32 v231, 0")
        e("s_mov_b32 s96, 0")
    e("QP_L:")
    if STAMPS:
        e(f"s_mov_b32 m0, s{S_CNT}")
        e("s_nop 0")
        e(f"v_writelane_b32 v231, s96, m0")
        e("s_memtime s[96:97]")
    e(f"s_add_u32 s{S_LO}, s{S_LO}, 16384")
    e(f"s_cmp_eq_u32 s{S_LO}, 49152")
    e(f"s_cselect_b32 s{S_DEL}, s60, s61")
    e(f"s_cselect_b32 s{S_LO}, 0, s{S_LO}")
    for p in range(4):
        buf = p & 1
        nb = buf ^ 1
        if p & 1:
            e("s_barrier")
        for T in range(4):
            nxt = 0 if T == 0 else 1 + 2 * T
            e(f"s_waitcnt lgkmcnt({2*(3-T) + nxt})")
            a = V_FW + 16 * buf + 4 * T
            b = V_FX + 4 * buf
            acc = V_ACC + 16 * T
            e(f"v_mfma_f32_32x32x16_bf16 v[{acc}:{acc+15}], v[{a}:{a+3}], v[{b}:{b+3}], v[{acc}:{acc+15}]")
            if T == 0:
                rd_x((p + 1) & 3, nb)
            rd_w((p + 1) & 3, nb, T)
            if p == 2:
                e(f"v_add_u32 v{V_AW+T}, s{S_DEL}, v{V_AW+T}")
            if p == 0 and T == 1:
                e(f"v_add_u32 v{V_AX}, s{S_DEL}, v{V_AX}")
            if p == 3 and T >= 1:
                e(f"v_add_u32 v{V_AX+T}, s{S_DEL}, v{V_AX+T}")
    e(f"s_add_u32 s{S_CNT}, s{S_CNT}, 1")
    e(f"s_cmp_lt_u32 s{S_CNT}, 8")
    e("s_cbranch_scc1 QP_L")
    e("s_waitcnt lgkmcnt(0)")
    bar(True)

    e("F_ATT:")
    def dry_exit():
        if DRY:
            e(f"s_cmp_eq_u32 s{S_DRY}, 1")
            e("s_cbranch_scc1 F_REAL")
    def rd_k(i):
        t, s_ = i // 8, i % 8
        r = V_KF + 4 * (i % 4)
        e(f"ds_read_b128 v[{r}:{r+3}], v{V_AK+s_} offset:{8192*t}")
    def cvt_q(s_, lo, hi):
        for qq in range(lo, hi):
            a = V_ACC + 8 * s_ + 2 * qq
            e(f"v_cvt_pk_bf16_f32 v{V_QB + 4*s_ + qq}, v{a}, v{a+1}")
    for i in range(4):
        rd_k(i)
    e(f"s_mov_b32 s{S_TMP}, 0x3e0293ee")
    e(f"s_mov_b32 s{S_TMP+1}, 0x3e0293ee")
    e("s_nop 7")
    cvt_q(0, 0, 4)
    cvt_q(1, 0, 2)
    for i in range(16):
        t, s_ = i // 8, i % 8
        r = V_KF + 4 * (i % 4)
        rem = min(3, 15 - i)
        e(f"s_waitcnt lgkmcnt({rem})")
        acc = V_S + 16 * t
        cc = "0" if s_ == 0 else f"v[{acc}:{acc+15}]"
        b = V_QB + 4 * s_
        e(f"v_mfma_f32_32x32x16_bf16 v[{acc}:{acc+15}], v[{r}:{r+3}], v[{b}:{b+3}], {cc}")
        if i + 4 < 16:
            rd_k(i + 4)
        if i < 7:
            cvt_q(i + 1, 2, 4)
            if i + 2 < 8:
                cvt_q(i + 2, 0, 2)
            else:
                e("s_nop 1")
        if i == 12:
            e(f"v_max3_f32 v{V_M}, v{V_S}, v{V_S+1}, v{V_S+2}")
            e(f"v_max3_f32 v{V_M2}, v{V_S+3}, v{V_S+4}, v{V_S+5}")
        if i == 13:
            e(f"v_max3_f32 v{V_M}, v{V_M}, v{V_S+6}, v{V_S+7}")
            e(f"v_max3_f32 v{V_M2}, v{V_M2}, v{V_S+8}, v{V_S+9}")
        if i == 14:
            e(f"v_max3_f32 v{V_M}, v{V_M}, v{V_S+10}, v{V_S+11}")
            e(f"v_max3_f32 v{V_M2}, v{V_M2}, v{V_S+12}, v{V_S+13}")
        if i == 15:
            e(f"v_max3_f32 v{V_M}, v{V_M}, v{V_S+14}, v{V_S+15}")
    dry_exit()
    stamp()
    e("F_SEG1:")
    def rd_v(u, buf):
        for T in range(4):
            r = V_VF + 16 * buf + 4 * T
            e(f"ds_read_b64_tr_b16 v[{r}:{r+1}], v{V_AV+T} offset:{u*4096}")
            e(f"ds_read_b64_tr_b16 v[{r+2}:{r+3}], v{V_AV+T} offset:{u*4096+2048}")
    if opt("tmaj", "1") == "1":
        for u in range(4):
            r = V_VF + 4 * u
            e(f"ds_read_b64_tr_b16 v[{r}:{r+1}], v{V_AV} offset:{u*4096}")
            e(f"ds_read_b64_tr_b16 v[{r+2}:{r+3}], v{V_AV} offset:{u*4096+2048}")
    else:
        rd_v(0, 0)
    e("s_nop 5")
    for i in range(16, 32, 4):
        e(f"v_max3_f32 v{V_M}, v{V_M}, v{V_S+i}, v{V_S+i+1}")
        e(f"v_max3_f32 v{V_M2}, v{V_M2}, v{V_S+i+2}, v{V_S+i+3}")
    e(f"v_max_f32 v{V_M}, v{V_M}, v{V_M2}")
    e(f"v_mov_b32 v{V_M2}, v{V_M}")
    e("s_nop 1")
    e(f"v_permlane32_swap_b32 v{V_M}, v{V_M2}")
    e("s_nop 1")
    e(f"v_max_f32 v{V_M}, v{V_M}, v{V_M2}")
    e(f"v_mul_f32 v{V_M}, s{S_TMP}, v{V_M}")
    def sm_group(u):
        o = []
        for i in range(8 * u, 8 * u + 8):
            o.append(f"v_fma_f32 v{V_S+i}, v{V_S+i}, s{S_TMP}, -v{V_M}")
        for i in range(8 * u, 8 * u + 8):
            o.append(f"v_exp_f32 v{V_S+i}, v{V_S+i}")
        o.append("s_nop 0")
        for i in range(4):
            o.append(f"v_cvt_pk_bf16_f32 v{V_PB+4*u+i}, v{V_S+8*u+2*i}, v{V_S+8*u+2*i+1}")
        return o
    def sum_group(u):
        o = []
        b = V_S + 8 * u
        if u == 0:
            o.append(f"v_add_f32 v{V_SUM}, v{b}, v{b+1}")
            o.append(f"v_add_f32 v{V_SUM2}, v{b+2}, v{b+3}")
            rest = range(4, 8, 2)
        else:
            rest = range(0, 8, 2)
        for i in rest:
            o.append(f"v_add_f32 v{V_SUM}, v{V_SUM}, v{b+i}")
            o.append(f"v_add_f32 v{V_SUM2}, v{V_SUM2}, v{b+i+1}")
        return o
    if opt("tmaj", "1") == "1":
        def rd_vT(T, buf):
            for u in range(4):
                r = V_VF + 16 * buf + 4 * u
                e(f"ds_read_b64_tr_b16 v[{r}:{r+1}], v{V_AV+T} offset:{u*4096}")
                e(f"ds_read_b64_tr_b16 v[{r+2}:{r+3}], v{V_AV+T} offset:{u*4096+2048}")
        for u in range(4):
            for x in sm_group(u): e(x)
            for x in sum_group(u): e(x)
        for x in [f"v_add_f32 v{V_SUM}, v{V_SUM}, v{V_SUM2}", f"v_mov_b32 v{V_SUM2}, v{V_SUM}", "s_nop 1",
                  f"v_permlane32_swap_b32 v{V_SUM}, v{V_SUM2}", "s_nop 1",
                  f"v_add_f32 v{V_SUM}, v{V_SUM}, v{V_SUM2}", f"v_rcp_f32 v{V_RS}, v{V_SUM}", "s_nop 0",
                  f"v_mov_b32 v{V_RS+1}, v{V_RS}"]:
            e(x)
        e(f"s_add_u32 s{S_TMP+1}, s{S_X1}, 4096")
        def fin_tile(T):
            o = []
            for ks in (2 * T, 2 * T + 1):
                a = V_ACC + 8 * ks
                d = V_BX + 4 * ks
                for i in range(4):
                    o.append(f"v_pk_mul_f32 v[{a+2*i}:{a+2*i+1}], v[{a+2*i}:{a+2*i+1}], v[{V_RS}:{V_RS+1}]")
                for i in range(4):
                    o.append(f"v_cvt_pk_bf16_f32 v{d+i}, v{a+2*i}, v{a+2*i+1}")
                so = S_X1 if ks < 4 else S_TMP + 1
                o.append(f"buffer_store_dwordx4 v[{d}:{d+3}], v{V_ST}, s[{S_A}:{S_A+3}], s{so} offen offset:{1024*(ks&3)} sc1")
            return o
        for T in range(4):
            buf = T & 1
            e("s_waitcnt lgkmcnt(0)")
            fill = fin_tile(T - 1) if T >= 1 else []
            for u in range(4):
                a = V_VF + 16 * buf + 4 * u
                b = V_PB + 4 * u
                acc = V_ACC + 16 * T
                cc = "0" if u == 0 else f"v[{acc}:{acc+15}]"
                e(f"v_mfma_f32_32x32x16_bf16 v[{acc}:{acc+15}], v[{a}:{a+3}], v[{b}:{b+3}], {cc}")
                if u == 0:
                    if T + 1 < 4:
                        rd_vT(T + 1, buf ^ 1)
                    else:
                        e("s_nop 7")
                    e("s_nop 1")
                elif fill:
                    n = 6
                    for x in fill[(u - 1) * n:u * n]:
                        e(x)
        e("s_nop 7")
        e("s_nop 3")
        for x in fin_tile(3): e(x)
        for i in range(8):
            e(f"v_mov_b32 v{V_ACC2+24+i}, 0")
        stamp()
    else:
        for x in sm_group(0): e(x)
        e("s_nop 0")
        for u in range(4):
            buf = u & 1
            if u == 2:
                dry_exit()
                e("F_SEG2:")
            e("s_waitcnt lgkmcnt(0)")
            fill = []
            if u + 1 < 4:
                fill = sm_group(u + 1) + sum_group(u)
            else:
                fill = sum_group(u) + [f"v_add_f32 v{V_SUM}, v{V_SUM}, v{V_SUM2}", f"v_mov_b32 v{V_SUM2}, v{V_SUM}", "s_nop 1",
                                       f"v_permlane32_swap_b32 v{V_SUM}, v{V_SUM2}", "s_nop 1",
                                       f"v_add_f32 v{V_SUM}, v{V_SUM}, v{V_SUM2}", f"v_rcp_f32 v{V_RS}, v{V_SUM}", "s_nop 0",
                                       f"v_mov_b32 v{V_RS+1}, v{V_RS}"]
            per = (len(fill) + 3) // 4
            for T in range(4):
                a = V_VF + 16 * buf + 4 * T
                b = V_PB + 4 * u
                acc = V_ACC + 16 * T
                cc = "0" if u == 0 else f"v[{acc}:{acc+15}]"
                e(f"v_mfma_f32_32x32x16_bf16 v[{acc}:{acc+15}], v[{a}:{a+3}], v[{b}:{b+3}], {cc}")
                if T == 0 and u + 1 < 4:
                    rd_v(u + 1, buf ^ 1)
                for x in fill[T * per:(T + 1) * per]:
                    e(x)
            if u + 1 < 4:
                e("s_nop 1")
        e("s_nop 3")
        for i in range(8):
            e(f"v_mov_b32 v{V_ACC2+24+i}, 0")
        for ks in range(8):
            a = V_ACC + 8 * ks
            d = V_BX + 4 * ks
            for i in range(4):
                e(f"v_pk_mul_f32 v[{a+2*i}:{a+2*i+1}], v[{a+2*i}:{a+2*i+1}], v[{V_RS}:{V_RS+1}]")
            for i in range(4):
                e(f"v_cvt_pk_bf16_f32 v{d+i}, v{a+2*i}, v{a+2*i+1}")
        dry_exit()
        stamp()
        e(f"s_add_u32 s{S_TMP+1}, s{S_X1}, 4096")
        for ks in range(8):
            d = V_BX + 4 * ks
            so = S_X1 if ks < 4 else S_TMP + 1
            e(f"buffer_store_dwordx4 v[{d}:{d+3}], v{V_ST}, s[{S_A}:{S_A+3}], s{so} offen offset:{1024*(ks&3)} sc1")
    e(f"s_mov_b32 s{S_CNT}, 0")
    bar()
    for i in range(24):
        e(f"v_mov_b32 v{V_ACC2+i}, 0")
    e("s_mov_b64 exec, 1")
    e("F_TOKL:")
    e(f"buffer_load_dwordx2 v[{V_TOK}:{V_TOK+1}], v{V_ZERO}, s[{S_B}:{S_B+3}], 0 offen sc0 sc1")
    e("s_waitcnt vmcnt(0)")
    e(f"v_readfirstlane_b32 s{S_TOK}, v{V_TOK}")
    e(f"v_readfirstlane_b32 s{S_TOK+1}, v{V_TOK+1}")
    e(f"s_add_u32 s{S_CNT}, s{S_CNT}, 1")
    e(f"s_cmp_gt_u32 s{S_CNT}, {SPIN}")
    e("s_cbranch_scc1 F_TOKX")
    e(f"s_cmp_eq_u32 s{S_TOK}, 0")
    e("s_cbranch_scc1 F_TOKL")
    e("F_TOKX:")
    stamp()
    e(f"s_add_u32 s{S_TMP}, s{S_T2}, {F1_OFF}")
    e(f"s_add_u32 s{S_TMP+1}, s{S_T2}, {F1A_OFF}")
    e("s_mov_b64 exec, 1")
    e(f"buffer_store_dwordx2 v[{V_TOK}:{V_TOK+1}], v{V_ZERO}, s[{S_A}:{S_A+3}], s{S_TMP+1} offen")
    e(f"buffer_store_dwordx2 v[{V_TOK}:{V_TOK+1}], v{V_ZERO}, s[{S_A}:{S_A+3}], s{S_TMP} offen sc1")
    e("s_mov_b64 exec, -1")
    if opt("opf", "0") == "1":
        e(f"v_lshlrev_b32 v{V_T2}, 7, v{V_LANE}")
        e(f"buffer_load_dword v{V_T3}, v{V_T2}, s[{S_A}:{S_A+3}], s{S_X1} offen {opt('opfflags', '')}")
    bar()
    poll_loop("F_P1", V_FA1A, S_A, "sc1", V_FA1)
    stamp()

    D = int(opt("p2d", "12"))
    def slot_reg(sl):
        return (V_BX if sl < 8 else V_BY) + 4 * (sl & 7)
    def blk_base(sreg, jadd):
        e(f"s_add_u32 s{sreg}, s{S_HL}, s{S_J}")
        e(f"s_add_u32 s{sreg}, s{sreg}, {jadd}")
        e(f"s_and_b32 s{sreg}, s{sreg}, 7")
        e(f"s_lshl_b32 s{sreg}, s{sreg}, 18")
        e(f"s_add_u32 s{sreg}, s{sreg}, s{S_X0}")
        if jadd >= 2:
            e(f"s_cmp_ge_u32 s{S_J}, 6")
            e(f"s_cselect_b32 s{sreg}, 0x40000000, s{sreg}")
    def ld(sl, sreg, ks):
        b = slot_reg(sl)
        vo = V_ST if ks < 4 else V_T1
        e(f"buffer_load_dwordx4 v[{b}:{b+3}], v{vo}, s[{S_A}:{S_A+3}], s{sreg} offen offset:{1024*(ks&3)} {SIBF}")
    def rd_o(step, buf):
        off = step * 2048
        for T in range(2):
            r = V_FO + 8 * buf + 4 * T
            e(f"ds_read_b64_tr_b16 v[{r}:{r+1}], v{V_AO+T} offset:{off}")
            e(f"ds_read_b64_tr_b16 v[{r+2}:{r+3}], v{V_AO+T} offset:{off + 512}")
    SB = (36, 37, 38)
    e(f"s_mov_b32 s{S_J}, 0")
    e(f"v_add_u32 v{V_T1}, 4096, v{V_ST}")
    blk_base(SB[0], 1)
    for ks in range(D - 8):
        ld(8 + ks, SB[0], ks)
    PD = int(opt("pd", "3"))
    for i in range(PD):
        rd_o(i, i)
    e("P2_L:")
    blk_base(SB[1], 2)
    blk_base(SB[2], 3)
    LA = D
    def rd_o1(step, buf, T):
        off = step * 2048
        r = V_FO + 8 * buf + 4 * T
        e(f"ds_read_b64_tr_b16 v[{r}:{r+1}], v{V_AO+T} offset:{off}")
        e(f"ds_read_b64_tr_b16 v[{r+2}:{r+3}], v{V_AO+T} offset:{off + 512}")
    for l in range(16):
        buf = l & 3
        e(f"s_waitcnt vmcnt({LA - 1}) lgkmcnt({4 * (PD - 1)})")
        for T in range(2):
            a = V_FO + 8 * buf + 4 * T
            b = slot_reg(l)
            acc = V_ACC2 + 16 * T
            e(f"v_mfma_f32_32x32x16_bf16 v[{acc}:{acc+15}], v[{a}:{a+3}], v[{b}:{b+3}], v[{acc}:{acc+15}]")
            rd_o1(l + PD, (l + PD) & 3, T)
            if T == 0:
                e(f"__LOAD{l}__")
    e(f"v_add_u32 v{V_AO}, 0x8000, v{V_AO}")
    e(f"v_add_u32 v{V_AO+1}, 0x8000, v{V_AO+1}")
    e(f"s_mov_b32 s{SB[0]}, s{SB[2]}")
    e(f"s_add_u32 s{S_J}, s{S_J}, 2")
    e(f"s_cmp_lt_u32 s{S_J}, 8")
    e("s_cbranch_scc1 P2_L")
    if DRY:
        e(f"s_cmp_eq_u32 s{S_DRY}, 0")
        e("s_cbranch_scc1 F_X2")
        e(f"v_subrev_u32 v{V_AO}, 0x8000, v{V_AO}")
        e(f"v_subrev_u32 v{V_AO+1}, 0x8000, v{V_AO+1}")
        e("s_branch F_REAL")
        e("F_X2:")
    e("s_waitcnt lgkmcnt(0)")
    e("s_nop 7")
    e("s_nop 3")
    stamp()
    out = []
    for line in L:
        t = line.strip()
        if t.startswith("__LOAD"):
            l = int(t[6:-2])
            tgt = l + LA
            sl = tgt & 15
            blk = tgt >> 3
            sreg = SB[blk - 1]
            ks = tgt & 7
            b = slot_reg(sl)
            vo = V_ST if ks < 4 else V_T1
            ins = f"    buffer_load_dwordx4 v[{b}:{b+3}], v{vo}, s[{S_A}:{S_A+3}], s{sreg} offen offset:{1024*(ks&3)} {SIBF}"
            out.append(ins)
        elif t.startswith("__WAITB"):
            out += [f"    s_waitcnt vmcnt({LA - 1})"]
        else:
            out.append(line)
    L[:] = out
    V_CK = 96
    V_L8 = V_T2
    e(f"v_lshlrev_b32 v{V_L8}, 3, v{V_LANE}")
    e(f"s_andn2_b32 s{S_BASE}, s2, 3")
    e(f"s_lshl_b32 s{S_BASE}, s{S_BASE}, 2")
    e(f"s_add_u32 s{S_BASE}, s{S_BASE}, s{S_G4}")
    e(f"s_lshl_b32 s{S_BASE}, s{S_BASE}, 2")
    e(f"s_add_u32 s{S_BASE}, s{S_BASE}, s{S_WV}")
    e(f"s_lshl_b32 s{S_LO}, s{S_BASE}, 9")
    e(f"s_add_u32 s{S_LO}, s{S_LO}, {CK_OFF}")
    e(f"s_lshl_b32 s{S_BASE}, s{S_BASE}, 11")
    e(f"s_add_u32 s{S_BASE}, s{S_BASE}, {PX_OFF}")
    for qd in range(4):
        e(f"s_cmp_eq_u32 s{S_G4}, {qd}")
        e(f"s_cbranch_scc1 F_SK{qd}")
        e(f"s_add_u32 s{S_TMP}, s{S_BASE}, {qd * 32768}")
        a = V_ACC2 + 8 * qd
        c = V_CK + 2 * qd
        e(f"buffer_store_dwordx4 v[{a}:{a+3}], v{V_ST}, s[{S_A}:{S_A+3}], s{S_TMP} offen sc1")
        e(f"buffer_store_dwordx4 v[{a+4}:{a+7}], v{V_ST}, s[{S_A}:{S_A+3}], s{S_TMP} offen offset:1024 sc1")
        e(f"v_xor_b32 v{c}, s{S_TOK+1}, v{a}")
        for i in range(1, 8):
            e(f"v_xor_b32 v{c}, v{c}, v{a+i}")
        e(f"v_mov_b32 v{c+1}, s{S_TOK}")
        e(f"s_add_u32 s{S_TMP+1}, s{S_LO}, {qd * 8192}")
        e(f"buffer_store_dwordx2 v[{c}:{c+1}], v{V_L8}, s[{S_A}:{S_A+3}], s{S_TMP+1} offen sc1")
        e(f"s_branch F_SE{qd}")
        e(f"F_SK{qd}:")
        for i in range(8):
            e(f"v_mov_b32 v{V_FIN+i}, v{a+i}")
        e(f"F_SE{qd}:")
    stamp()
    e(f"s_lshl_b32 s{S_BASE}, s2, 4")
    e(f"s_add_u32 s{S_BASE}, s{S_BASE}, s{S_WV}")
    e(f"s_lshl_b32 s{S_LO}, s{S_BASE}, 9")
    e(f"s_add_u32 s{S_LO}, s{S_LO}, {CK_OFF}")
    e(f"s_lshl_b32 s{S_BASE}, s{S_BASE}, 11")
    e(f"s_add_u32 s{S_BASE}, s{S_BASE}, {PX_OFF}")
    if opt("x2", "poll") == "direct":
        rf = opt("rxflags", "sc0 sc1")
        SD = (32, 33, 34); SC = (36, 37, 38)
        for n in range(3):
            e(f"s_add_u32 s{S_TMP}, s{S_G4}, {n+1}")
            e(f"s_and_b32 s{S_TMP}, s{S_TMP}, 3")
            e(f"s_lshl_b32 s{SC[n]}, s{S_TMP}, 11")
            e(f"s_add_u32 s{SC[n]}, s{SC[n]}, s{S_LO}")
            e(f"s_lshl_b32 s{SD[n]}, s{S_TMP}, 13")
            e(f"s_add_u32 s{SD[n]}, s{SD[n]}, s{S_BASE}")
        def rx(n):
            b = V_PR + 8 * n
            e(f"buffer_load_dwordx4 v[{b}:{b+3}], v{V_ST}, s[{S_A}:{S_A+3}], s{SD[n]} offen {rf}")
            e(f"buffer_load_dwordx4 v[{b+4}:{b+7}], v{V_ST}, s[{S_A}:{S_A+3}], s{SD[n]} offen offset:1024 {rf}")
            e(f"buffer_load_dwordx2 v[{104+2*n}:{105+2*n}], v{V_L8}, s[{S_A}:{S_A+3}], s{SC[n]} offen {rf}")
        if int(opt("x2delay", "0")):
            e("s_waitcnt vmcnt(0)")
        for n in range(3):
            rx(n)
        e(f"s_mov_b32 s{S_CNT}, 0")
        for n in range(3):
            b = V_PR + 8 * n
            c = 104 + 2 * n
            e(f"s_waitcnt vmcnt({3*(2-n)})")
            e(f"s_branch F_RV{n}")
            e(f"F_RR{n}:")
            rx(n)
            e(f"s_add_u32 s{S_CNT}, s{S_CNT}, 1")
            e("s_waitcnt vmcnt(0)")
            e(f"F_RV{n}:")
            e(f"v_xor_b32 v{c}, s{S_TOK+1}, v{c}")
            for i in range(8):
                e(f"v_xor_b32 v{c}, v{c}, v{b+i}")
            e(f"v_xor_b32 v{c+1}, s{S_TOK}, v{c+1}")
            e(f"v_or_b32 v{c}, v{c}, v{c+1}")
            e(f"v_cmp_ne_u32 vcc, 0, v{c}")
            e(f"s_cmp_gt_u32 s{S_CNT}, {SPIN}")
            e(f"s_cbranch_scc1 F_RX{n}")
            e("s_nop 2")
            e(f"s_cbranch_vccnz F_RR{n}")
            e(f"F_RX{n}:")
        stamp()
    else:
        e(f"v_add_u32 v{V_T3}, s{S_G4}, v{V_LANE}")
        e(f"v_add_u32 v{V_T3}, 1, v{V_T3}")
        e(f"v_and_b32 v{V_T3}, 3, v{V_T3}")
        e(f"v_lshlrev_b32 v{V_T3}, 11, v{V_T3}")
        e(f"s_mov_b32 s{S_CNT}, 0")
        e("s_mov_b64 exec, 7")
        e("F_P2:")
        e(f"buffer_load_dword v{V_FV}, v{V_T3}, s[{S_A}:{S_A+3}], s{S_LO} offen offset:508 sc0 sc1")
        e(f"s_add_u32 s{S_CNT}, s{S_CNT}, 1")
        e("s_waitcnt vmcnt(0)")
        e(f"v_cmp_ne_u32 vcc, s{S_TOK}, v{V_FV}")
        e(f"s_cmp_gt_u32 s{S_CNT}, {SPIN}")
        e("s_cbranch_scc1 F_P2X")
        e("s_nop 2")
        e("s_cbranch_vccnz F_P2")
        e("F_P2X:")
        e("s_mov_b64 exec, -1")
        stamp()
        e("F_RX:")
        rf = opt("rxflags", "sc0 sc1")
        for n in range(3):
            e(f"s_add_u32 s{S_TMP}, s{S_G4}, {n+1}")
            e(f"s_and_b32 s{S_TMP}, s{S_TMP}, 3")
            e(f"s_lshl_b32 s{S_TMP+1}, s{S_TMP}, 11")
            e(f"s_add_u32 s{S_TMP+1}, s{S_TMP+1}, s{S_LO}")
            e(f"s_lshl_b32 s{S_TMP}, s{S_TMP}, 13")
            e(f"s_add_u32 s{S_TMP}, s{S_TMP}, s{S_BASE}")
            b = V_PR + 8 * n
            e(f"buffer_load_dwordx4 v[{b}:{b+3}], v{V_ST}, s[{S_A}:{S_A+3}], s{S_TMP} offen {rf}")
            e(f"buffer_load_dwordx4 v[{b+4}:{b+7}], v{V_ST}, s[{S_A}:{S_A+3}], s{S_TMP} offen offset:1024 {rf}")
            e(f"buffer_load_dwordx2 v[{104+2*n}:{105+2*n}], v{V_L8}, s[{S_A}:{S_A+3}], s{S_TMP+1} offen {rf}")
        e(f"s_add_u32 s{S_CNT}, s{S_CNT}, 1")
        for n in range(3):
            e(f"s_waitcnt vmcnt({3*(2-n)})")
            b = V_PR + 8 * n
            c = 104 + 2 * n
            e(f"v_xor_b32 v{c}, s{S_TOK+1}, v{c}")
            for i in range(8):
                e(f"v_xor_b32 v{c}, v{c}, v{b+i}")
            e(f"v_xor_b32 v{c+1}, s{S_TOK}, v{c+1}")
            if n == 0:
                e(f"v_or_b32 v{V_T3}, v{c}, v{c+1}")
            else:
                e(f"v_or3_b32 v{V_T3}, v{V_T3}, v{c}, v{c+1}")
        e(f"v_cmp_ne_u32 vcc, 0, v{V_T3}")
        e(f"s_cmp_gt_u32 s{S_CNT}, {SPIN}")
        e("s_cbranch_scc1 F_RXX")
        e("s_nop 2")
        e("s_cbranch_vccnz F_RX")
        e("F_RXX:")
    e(f"s_lshl_b32 s{S_TMP}, s{S_RB}, 17")
    e(f"s_lshl_b32 s{S_TMP+1}, s{S_HL}, 7")
    e(f"s_add_u32 s{S_TMP}, s{S_TMP}, s{S_TMP+1}")
    e(f"s_lshl_b32 s{S_TMP+1}, s{S_G4}, 5")
    e(f"s_add_u32 s{S_TMP}, s{S_TMP}, s{S_TMP+1}")
    for n in range(3):
        for i in range(8):
            e(f"v_add_f32 v{V_FIN+i}, v{V_FIN+i}, v{V_PR+8*n+i}")
    for i in range(4):
        e(f"v_cvt_pk_bf16_f32 v{V_FIN+8+i}, v{V_FIN+2*i}, v{V_FIN+2*i+1}")
    e(f"buffer_store_dwordx4 v[{V_FIN+8}:{V_FIN+11}], v{V_OUT}, s[{S_C}:{S_C+3}], s{S_TMP} offen")
    stamp_flush()
    e("F_DONE:")
    e("s_endpgm")
    L.append(kd(name, NVGPR))


def main():
    out = sys.argv[1]
    hdr = HEADER
    hdr += "; @launch grid=(256,1,1) block=(512,1,1) lds=163840\n"
    hdr += '.amdgcn_target "amdgcn-amd-amdhsa--gfx950"\n'
    fused()
    open(out, "w").write(hdr + "\n".join(L) + "\n")

main()
```

```python
import sys

HEADER = """; Kernarg layout for this problem (64 bytes, ptrs only, base s[0:1]):
"""
KNAME = "standalone__gqa_block_cached__near_ridge_kernel"
ARGS = sys.argv[2:]
def opt(name, default):
    for a in ARGS:
        if a.startswith(name + "="):
            return a.split("=", 1)[1].replace("_", " ")
    return default

L = []
def e(s=""):
    L.append("    " + s if s and not s.endswith(":") else s)

def kd(name, vgpr, sgpr=100):
    acc = (vgpr + 3) // 4 * 4
    return f""".section .rodata,"a"
.p2align 6
.amdhsa_kernel {name}
  .amdhsa_next_free_vgpr {vgpr}
  .amdhsa_next_free_sgpr {sgpr}
  .amdhsa_accum_offset {acc}
  .amdhsa_group_segment_fixed_size 0
  .amdhsa_kernarg_size 64
  .amdhsa_user_sgpr_count 2
  .amdhsa_user_sgpr_kernarg_segment_ptr 1
  .amdhsa_system_sgpr_workgroup_id_x 1
.end_amdhsa_kernel
"""

def srd(d, b, nbytes, extra_off=None):
    if extra_off:
        e(f"s_add_u32 s{d}, s{b}, {extra_off}")
        e(f"s_addc_u32 s{d+1}, s{b+1}, 0")
    else:
        e(f"s_mov_b32 s{d}, s{b}")
        e(f"s_mov_b32 s{d+1}, s{b+1}")
    e(f"s_mov_b32 s{d+2}, {nbytes}")
    e(f"s_mov_b32 s{d+3}, 0x00020000")

STAMPS = "--stamps" in ARGS
NST = [0]
S_WV = 42
def stamp(real=False):
    if not STAMPS: return
    i = NST[0]; NST[0] += 1
    assert i < 17, "too many stamps"
    e(f"{'s_memrealtime' if real else 's_memtime'} s[{62+2*i}:{63+2*i}]")

def stamp_flush():
    if not STAMPS: return
    e("s_waitcnt vmcnt(0) lgkmcnt(0)")
    stamp(False)
    stamp(True)
    n = NST[0]
    e("s_waitcnt lgkmcnt(0)")
    srd(20, 18, 1 << 20, extra_off=(64 << 20))
    e(f"s_lshl_b32 s3, s2, 3")
    e(f"s_add_u32 s3, s3, s{S_WV}")
    e(f"s_lshl_b32 s3, s3, 8")
    e("v_and_b32 v2, 63, v0")
    e("v_lshlrev_b32 v2, 2, v2")
    e("s_mov_b64 exec, 0xffff")
    e("buffer_store_dword v231, v2, s[20:23], s3 offen offset:192")
    e("s_mov_b64 exec, -1")
    e("v_mov_b32 v2, 0")
    e("s_mov_b64 exec, 1")
    for i in range(n):
        e(f"v_mov_b32 v4, s{62+2*i}")
        e(f"v_mov_b32 v5, s{63+2*i}")
        e(f"buffer_store_dwordx2 v[4:5], v2, s[20:23], s3 offen offset:{8*i}")
        e("s_nop 1")

def bar(st=False):
    if st: stamp()
    e("s_barrier")

def lend(rem=0):
    if STAMPS:
        for _ in range(rem):
            e("s_barrier")
    stamp_flush()
    NST[0] = 2
    e("s_endpgm")

PX_OFF = 8 << 20
F1_OFF = 16 << 20
F1A_OFF = F1_OFF + (512 << 10)
F2_OFF = 17 << 20
CK_OFF = 18 << 20
WS_BYTES = 20 << 20
WQ_BASE, X_BASE, K_BASE, V_BASE = 0, 49152, 98304, 131072

V_LANE = 1
V_T0, V_T1, V_T2, V_T3 = 2, 3, 4, 5
V_ST = 6
V_OUT = 7
V_AX = 8
V_AW = 12
V_AK = 16
V_AV = 24
V_AO = 28
V_ZERO = 30
V_FX = 32
V_FW = 40
V_ACC = 72
V_S = 136
V_QB = 168
V_KF = 200
V_PB = 168
V_VF = 32
V_M, V_M2, V_SUM, V_SUM2 = 216, 217, 218, 219
V_TOK = 220
V_FA1 = 222
V_FA2 = 223
V_FV = 224
V_FA1A = 226
V_BX = 136
V_BY = 32
V_BZ = 64
V_BW = 96
V_ACC2 = 168
V_FO = 64
V_PR = 72
V_FIN = 112
V_MM = 228
V_RS = 228
NVGPR = 232

S_A, S_B, S_C, S_D = 20, 24, 28, 32
S_H, S_RB = 40, 41
S_HL, S_G4 = 43, 44
S_DRY = 45
S_TMP = 46
S_ROT = 48
S_BASE = 49
S_CNT = 50
S_LO = 51
S_TOK = 52
S_T2 = 54
S_I = 55
S_X0, S_X1 = 56, 57
S_J = 58
S_DEL = 59
S_SK0 = 39

SPIN = int(opt('spin', '200000'))
SIBF = opt('sibflags', 'sc1')


def poll_loop(label, vaddr, srd_reg, flags="sc1", vaddr2=None, mask=255):
    e(f"s_mov_b32 s{S_CNT}, 0")
    e(f"s_mov_b64 exec, {mask}")
    e(f"{label}:")
    if vaddr2 is not None:
        e(f"s_and_b32 s{S_TMP}, s{S_CNT}, 7")
        e(f"s_cmp_eq_u32 s{S_TMP}, 7")
        e(f"s_cbranch_scc1 {label}_B")
    e(f"buffer_load_dwordx2 v[{V_FV}:{V_FV+1}], v{vaddr}, s[{srd_reg}:{srd_reg+3}], 0 offen {flags}")
    if vaddr2 is not None:
        e(f"s_branch {label}_C")
        e(f"{label}_B:")
        e(f"buffer_load_dwordx2 v[{V_FV}:{V_FV+1}], v{vaddr2}, s[{srd_reg}:{srd_reg+3}], 0 offen sc0 sc1")
        e(f"{label}_C:")
    e(f"s_add_u32 s{S_CNT}, s{S_CNT}, 1")
    e("s_waitcnt vmcnt(0)")
    e(f"v_cmp_ne_u64 vcc, s[{S_TOK}:{S_TOK+1}], v[{V_FV}:{V_FV+1}]")
    e(f"s_cmp_gt_u32 s{S_CNT}, {SPIN}")
    e(f"s_cbranch_scc1 {label}_X")
    e("s_nop 2")
    e(f"s_cbranch_vccz {label}_X")
    if opt("psleep", "0") != "0":
        e(f"s_sleep {opt('psleep', '0')}")
    e(f"s_branch {label}")
    e(f"{label}_X:")
    e("s_mov_b64 exec, -1")


def issue8(vbase, srd_reg, soff, flags):
    e(f"s_mov_b32 m0, s{S_LO}")
    e(f"s_add_u32 s{S_TMP+1}, s{S_LO}, 4096")
    for j in range(4):
        e(f"buffer_load_dwordx4 v{vbase+j}, s[{srd_reg}:{srd_reg+3}], s{soff} offen offset:{1024*j} {flags} lds")
    e(f"s_mov_b32 m0, s{S_TMP+1}")
    e("s_nop 0")
    for j in range(4):
        e(f"buffer_load_dwordx4 v{vbase+4+j}, s[{srd_reg}:{srd_reg+3}], s{soff} offen offset:{1024*j} {flags} lds")


def ring_adv(base):
    e(f"s_add_u32 s{S_LO}, s{S_LO}, 8192")
    e(f"s_cmp_eq_u32 s{S_LO}, {base + 49152}")
    e(f"s_cselect_b32 s{S_LO}, {base}, s{S_LO}")


def wo_loader(half, tag):
    e(f"v_lshrrev_b32 v{V_T1}, 3, v{V_LANE}")
    e(f"v_and_b32 v{V_T2}, 7, v{V_LANE}")
    e(f"v_bfe_u32 v{V_T3}, v{V_LANE}, 4, 1")
    e(f"v_lshlrev_b32 v{V_T3}, 2, v{V_T3}")
    e(f"v_xor_b32 v{V_T2}, v{V_T2}, v{V_T3}")
    e(f"v_lshlrev_b32 v{V_T2}, 4, v{V_T2}")
    e(f"v_lshl_add_u32 v24, v{V_T1}, 10, v{V_T2}")
    for i in range(1, 8):
        e(f"v_add_u32 v{24+i}, {8*i*1024 - 1024*(i&3)}, v24")
    srd(S_B, 12, 4 << 20)
    e(f"s_lshl_b32 s{S_BASE}, s{S_G4}, 20")
    e(f"s_lshl_b32 s{S_TMP}, s{S_HL}, 7")
    e(f"s_add_u32 s{S_BASE}, s{S_BASE}, s{S_TMP}")
    if half:
        e(f"s_add_u32 s{S_BASE}, s{S_BASE}, 65536")
    e(f"s_mov_b32 s{S_LO}, {half * 8192}")
    e(f"s_mov_b32 s{S_J}, 0")
    bar()
    bar(True)
    e(f"WO_L{tag}:")
    e(f"s_add_u32 s{S_TMP}, s{S_HL}, s{S_J}")
    e(f"s_and_b32 s{S_TMP}, s{S_TMP}, 7")
    e(f"s_lshl_b32 s{S_TMP}, s{S_TMP}, 17")
    e(f"s_add_u32 s{S_TMP}, s{S_TMP}, s{S_BASE}")
    e(f"s_waitcnt vmcnt({int(opt('wothr', '16'))})")
    issue8(24, S_B, S_TMP, opt("woflags", ""))
    e(f"s_add_u32 s{S_LO}, s{S_LO}, 16384")
    e(f"s_add_u32 s{S_J}, s{S_J}, 1")
    e(f"s_cmp_lg_u32 s{S_J}, 6")
    e(f"s_cbranch_scc1 WO_N{tag}")
    bar(True)
    e(f"WO_N{tag}:")
    e(f"s_cmp_lt_u32 s{S_J}, 8")
    e(f"s_cbranch_scc1 WO_L{tag}")
    e("s_waitcnt vmcnt(0)")
    bar(True)
    lend()


def fused():
    name = KNAME
    NST[0] = 0
    e(".text")
    e(f".globl {name}")
    e(".p2align 8")
    e(f".type {name},@function")
    e(f"{name}:")
    e("s_cmp_ge_u32 s2, 256")
    e("s_cbranch_scc1 F_DONE")
    stamp(True)
    stamp()
    e("s_load_dwordx16 s[4:19], s[0:1], 0")
    e(f"v_and_b32 v{V_LANE}, 63, v0")
    if STAMPS: e("v_mov_b32 v231, 0")
    e(f"v_lshrrev_b32 v{V_T0}, 6, v0")
    e(f"s_and_b32 s{S_G4}, s2, 3")
    e(f"v_readfirstlane_b32 s{S_WV}, v{V_T0}")
    e(f"s_lshr_b32 s{S_I}, s2, 3")
    e(f"s_and_b32 s{S_HL}, s{S_I}, 7")
    e(f"s_lshl_b32 s{S_H}, s{S_G4}, 3")
    e(f"s_add_u32 s{S_H}, s{S_H}, s{S_HL}")
    e(f"s_lshr_b32 s{S_TMP}, s2, 6")
    e(f"s_and_b32 s{S_RB}, s2, 4")
    e(f"s_add_u32 s{S_RB}, s{S_RB}, s{S_TMP}")
    e(f"s_lshl_b32 s{S_ROT}, s{S_TMP}, 1")
    e(f"s_add_u32 s{S_ROT}, s{S_ROT}, s{S_HL}")
    e(f"s_and_b32 s{S_ROT}, s{S_ROT}, 7")
    e(f"s_lshl_b32 s{S_ROT}, s{S_ROT}, 1")
    if opt("rot", "0") == "0":
        e(f"s_mov_b32 s{S_ROT}, 0")
    e(f"s_cmp_lt_u32 s{S_WV}, 4")
    e("s_cbranch_scc1 F_COMPUTE")
    e(f"s_cmp_eq_u32 s{S_WV}, 5")
    e("s_cbranch_scc1 F_LX")
    e(f"s_cmp_gt_u32 s{S_WV}, 5")
    e("s_cbranch_scc1 F_LKV")

    e(f"s_lshl_b32 s{S_BASE}, s{S_H}, 8")
    e(f"v_lshrrev_b32 v{V_T1}, 4, v{V_LANE}")
    e(f"v_and_b32 v{V_T2}, 15, v{V_LANE}")
    e(f"v_lshlrev_b32 v{V_T3}, 2, v{V_T1}")
    e(f"v_xor_b32 v{V_T2}, v{V_T2}, v{V_T3}")
    e(f"v_lshlrev_b32 v{V_T2}, 4, v{V_T2}")
    e(f"v_lshl_add_u32 v8, v{V_T1}, 13, v{V_T2}")
    for j in range(1, 8):
        e(f"v_add_u32 v{8+j}, {(4*j << 13) - 1024*(j & 3)}, v8")
    e(f"s_mov_b32 s{S_LO}, {WQ_BASE}")
    e(f"s_mov_b32 s{S_J}, 0")
    e("s_waitcnt lgkmcnt(0)")
    srd(S_A, 10, 4 << 20)
    DW = int(opt("dw", "3"))
    wqf = opt("wqflags", "")
    def w_issue():
        e(f"s_add_u32 s{S_TMP}, s{S_ROT}, s{S_J}")
        e(f"s_and_b32 s{S_TMP}, s{S_TMP}, 15")
        e(f"s_lshl_b32 s{S_TMP}, s{S_TMP}, 18")
        e(f"s_add_u32 s{S_TMP}, s{S_TMP}, s{S_BASE}")
        issue8(8, S_A, S_TMP, wqf)
        ring_adv(WQ_BASE)
        e(f"s_add_u32 s{S_J}, s{S_J}, 1")
    def ring_loader(tag, issue, D, need_of, free_ok):
        for J in range(D, 16):
            assert free_ok(J, J - D - 1), (tag, J)
        waits = set()
        for J in range(D, 16):
            r = J - D - 1
            waits.add(8 * (J - 1 - need_of(r)))
        w = min(waits)
        e(f"{tag}_L:")
        e(f"s_cmp_lt_u32 s{S_J}, {D}")
        e(f"s_cbranch_scc1 {tag}_I")
        e(f"s_waitcnt vmcnt({w})")
        e("s_barrier")
        e(f"{tag}_I:")
        issue()
        e(f"s_cmp_lt_u32 s{S_J}, 16")
        e(f"s_cbranch_scc1 {tag}_L")
        for r in range(16 - D - 1, 15):
            e(f"s_waitcnt vmcnt({8 * max(0, 15 - need_of(r))})")
            bar(r == 16 - D - 1)
    ring_loader("LW", w_issue, DW, lambda r: r + 1, lambda J, r: J <= max(r - 1, -1) + 6)
    wo_loader(0, "A")

    e("F_LX:")
    e(f"v_lshrrev_b32 v{V_T1}, 3, v{V_LANE}")
    e(f"v_and_b32 v{V_T2}, 7, v{V_LANE}")
    e(f"v_lshrrev_b32 v{V_T3}, 4, v{V_LANE}")
    e(f"v_xor_b32 v{V_T3}, v{V_T3}, v{V_T2}")
    e(f"v_lshlrev_b32 v{V_T3}, 4, v{V_T3}")
    e(f"v_lshl_add_u32 v8, v{V_T1}, 10, v{V_T3}")
    e(f"v_xor_b32 v9, 64, v8")
    e(f"v_add_u32 v9, {8*1024 - 1024}, v9")
    for i in range(2, 8):
        e(f"v_add_u32 v{8+i}, {(8*i*1024 - 1024*(i&3)) - (8*(i&1)*1024 - 1024*(i&1))}, v{8 + (i & 1)}")
    e(f"s_lshl_b32 s{S_BASE}, s{S_RB}, 17")
    e(f"s_mov_b32 s{S_LO}, {X_BASE}")
    e(f"s_mov_b32 s{S_J}, 0")
    e("s_waitcnt lgkmcnt(0)")
    srd(S_A, 4, 1 << 20)
    xf = opt("xflags", "")
    def x_issue():
        e(f"s_add_u32 s{S_TMP}, s{S_ROT}, s{S_J}")
        e(f"s_and_b32 s{S_TMP+1}, s{S_TMP}, 1")
        e(f"s_lshl_b32 s{S_TMP+1}, s{S_TMP+1}, 16")
        e(f"s_and_b32 s{S_TMP}, s{S_TMP}, 14")
        e(f"s_lshl_b32 s{S_TMP}, s{S_TMP}, 6")
        e(f"s_add_u32 s{S_TMP}, s{S_TMP}, s{S_TMP+1}")
        e(f"s_add_u32 s{S_TMP}, s{S_TMP}, s{S_BASE}")
        issue8(8, S_A, S_TMP, xf)
        ring_adv(X_BASE)
        e(f"s_add_u32 s{S_J}, s{S_J}, 1")
    DX = int(opt("dx", "3"))
    ring_loader("LX", x_issue, DX, lambda r: 2 * ((r + 1) >> 1) + 1,
                lambda n, r: (n >> 1) - 3 <= ((r - 2) >> 1 if r >= 2 else -1))
    wo_loader(1, "B")

    e("F_LKV:")
    e(f"v_lshrrev_b32 v{V_T1}, 4, v{V_LANE}")
    e(f"v_and_b32 v{V_T2}, 15, v{V_LANE}")
    e(f"v_lshlrev_b32 v{V_T0}, 8, v{V_T1}")
    e(f"s_lshl_b32 s{S_BASE}, s{S_RB}, 6")
    e(f"s_add_u32 s{S_BASE}, s{S_BASE}, s{S_H}")
    e(f"s_lshl_b32 s{S_BASE}, s{S_BASE}, 14")
    e(f"v_lshlrev_b32 v18, 7, v{V_LANE}")
    e(f"s_mov_b32 s{S_J}, 0")
    e(f"s_mov_b32 s{S_CNT}, 0")
    e(f"s_cmp_eq_u32 s{S_WV}, 7")
    e("s_cbranch_scc1 F_LV")
    kvf = opt("kvflags", "")
    def kv_group(srd_reg, lds_base, vo):
        e(f"s_lshl_b32 s{S_TMP}, s{S_J}, 12")
        e(f"s_add_u32 m0, s{S_TMP}, {lds_base}")
        e(f"s_and_b32 s{S_TMP}, s{S_TMP}, 0x3000")
        e(f"s_lshr_b32 s{S_TMP+1}, s{S_J}, 2")
        e(f"s_lshl_b32 s{S_TMP+1}, s{S_TMP+1}, 19")
        e(f"s_add_u32 s{S_TMP}, s{S_TMP}, s{S_TMP+1}")
        e(f"s_add_u32 s{S_TMP}, s{S_TMP}, s{S_BASE}")
        for j in range(4):
            e(f"buffer_load_dwordx4 v{vo(j)}, s[{srd_reg}:{srd_reg+3}], s{S_TMP} offen offset:{1024*j} {kvf} lds")
        e(f"s_add_u32 s{S_J}, s{S_J}, 1")
    for j in range(4):
        e(f"v_add_u32 v{V_T3}, {4*j}, v{V_T1}")
        e(f"v_xor_b32 v{V_T3}, v{V_T3}, v{V_T2}")
        e(f"v_lshl_add_u32 v{8+j}, v{V_T3}, 4, v{V_T0}")
    e("s_waitcnt lgkmcnt(0)")
    srd(S_A, 6, 8 << 20)
    SG0 = int(opt("sg0", "2")); SGS = int(opt("sgs", "4")); SGM = int(opt("sgm", "3")); SGH = int(opt("sgh", "0"))
    def slot_calc(extra):
        e(f"s_lshr_b32 s{S_X0}, s{S_I}, {SGH}")
        e(f"s_and_b32 s{S_X0}, s{S_X0}, {SGM}")
        e(f"s_mul_i32 s{S_X0}, s{S_X0}, {SGS}")
        e(f"s_add_u32 s{S_X0}, s{S_X0}, {SG0 + extra}")
    def burst_loop(tag, body, nbar, extra=None):
        e(f"{tag}_L:")
        if extra:
            e(f"s_cmp_lg_u32 s{S_CNT}, s{S_X1}")
            e(f"s_cbranch_scc1 {tag}_E")
            extra()
            e(f"{tag}_E:")
        e(f"s_cmp_lg_u32 s{S_CNT}, s{S_X0}")
        e(f"s_cbranch_scc1 {tag}_S")
        e(f"{tag}_G:")
        body()
        e(f"s_cmp_lt_u32 s{S_J}, 8")
        e(f"s_cbranch_scc1 {tag}_G")
        e(f"{tag}_S:")
        e("s_barrier")
        e(f"s_add_u32 s{S_CNT}, s{S_CNT}, 1")
        e(f"s_cmp_lt_u32 s{S_CNT}, {nbar}")
        e(f"s_cbranch_scc1 {tag}_L")
    assert SG0 + SGS * SGM + int(opt("vex", "0")) <= 15
    slot_calc(0)
    PF = opt("pf", "1") == "1"
    xw_pf = None
    if PF:
        PC0 = int(opt("pc0", "2")); PLEAD = int(opt("plead", "4"))
        srd(S_B, 4, 1 << 20)
        srd(S_C, 10, 4 << 20)
        e(f"v_lshlrev_b32 v16, 10, v{V_LANE}")
        e(f"v_lshlrev_b32 v17, 13, v{V_T1}")
        e(f"v_lshl_add_u32 v17, v{V_T2}, 7, v17")
        e(f"s_lshr_b32 s36, s{S_I}, 2")
        e(f"s_and_b32 s37, s{S_I}, 3")
        e(f"s_max_u32 s{S_X1}, s36, {PLEAD}")
        e(f"s_sub_u32 s{S_X1}, s{S_X1}, {PLEAD}")
        e(f"s_lshl_b32 s{S_X1}, s{S_X1}, 1")
        e(f"s_cmp_lt_u32 s36, {PC0}")
        e(f"s_cselect_b32 s{S_X1}, 99, s{S_X1}")
        e(f"s_and_b32 s38, s2, 4")
        e(f"s_add_u32 s38, s38, s37")
        e(f"s_lshl_b32 s38, s38, 17")
        e(f"s_lshl_b32 s{S_TMP}, s36, 7")
        e(f"s_add_u32 s38, s38, s{S_TMP}")
        e(f"s_lshl_b32 s39, s{S_I}, 17")
        e(f"s_lshl_b32 s{S_TMP}, s{S_G4}, 11")
        e(f"s_add_u32 s39, s39, s{S_TMP}")
        def xw_pf():
            e(f"buffer_load_dword v20, v16, s[{S_B}:{S_B+3}], s38 offen")
            e(f"s_add_u32 s38, s38, 65536")
            e(f"buffer_load_dword v20, v16, s[{S_B}:{S_B+3}], s38 offen")
            for _ in range(4):
                e(f"buffer_load_dword v21, v17, s[{S_C}:{S_C+3}], s39 offen")
                e(f"s_add_u32 s39, s39, 32768")
    burst_loop("LK", lambda: kv_group(S_A, K_BASE, lambda j: 8 + j), 16, xw_pf)
    e("s_waitcnt vmcnt(0)")
    bar(True)
    lend(3)

    e("F_LV:")
    if opt("cpf", "0") == "1":
        e(f"s_cmp_ge_u32 s{S_I}, {opt('cpfn', '2')}")
        e("s_cbranch_scc1 F_NOCPF")
        e("s_getpc_b64 s[36:37]")
        e("F_PCREF:")
        e(f"s_sub_u32 s36, s36, F_PCREF-{KNAME}")
        e("s_subb_u32 s37, s37, 0")
        e(f"s_mov_b32 s38, F_DONE-{KNAME}")
        for i in range(2):
            e(f"v_add_u32 v29, {8192*i}, v18")
            e("v_min_u32 v29, s38, v29")
            e("v_mov_b32 v31, s37")
            e("v_add_co_u32 v30, vcc, s36, v29")
            e("s_nop 1")
            e("v_addc_co_u32 v31, vcc, 0, v31, vcc")
            e(f"global_load_dword v{32+i}, v[30:31], off")
        e("F_NOCPF:")
    e(f"v_lshlrev_b32 v{V_T3}, 2, v{V_T1}")
    e(f"v_xor_b32 v{V_T3}, v{V_T3}, v{V_T2}")
    e(f"v_lshl_add_u32 v8, v{V_T3}, 4, v{V_T0}")
    e(f"s_memrealtime s[{S_TOK}:{S_TOK+1}]")
    e("s_waitcnt lgkmcnt(0)")
    srd(S_A, 8, 8 << 20)
    srd(S_D, 12, 4 << 20)
    e("s_cmp_lg_u32 s2, 0")
    e("s_cbranch_scc1 F_NOTOK")
    srd(S_B, 16, 256)
    e(f"s_or_b32 s{S_TOK}, s{S_TOK}, 1")
    e(f"v_mov_b32 v10, s{S_TOK}")
    e(f"v_mov_b32 v11, s{S_TOK+1}")
    e("v_mov_b32 v12, 0")
    e(f"buffer_store_dwordx2 v[10:11], v12, s[{S_B}:{S_B+3}], 0 offen sc0 sc1")
    e("F_NOTOK:")
    if opt("tlbw", "0") == "1":
        tf = opt("tlbflags", "sc0 sc1")
        srd(S_B, 6, 8 << 20)
        srd(S_C, 18, WS_BYTES)
        e(f"v_lshlrev_b32 v24, 19, v{V_LANE}")
        e(f"v_lshlrev_b32 v25, 20, v{V_LANE}")
        e("s_mov_b64 exec, 3")
        e(f"buffer_load_dword v26, v24, s[{S_B}:{S_B+3}], s{S_BASE} offen {tf}")
        e(f"buffer_load_dword v26, v24, s[{S_A}:{S_A+3}], s{S_BASE} offen {tf}")
        e(f"s_lshl_b32 s{S_TMP}, s{S_G4}, 20")
        e(f"buffer_load_dword v26, v24, s[{S_D}:{S_D+3}], s{S_TMP} offen {tf}")
        e("s_mov_b64 exec, 0x3ffff")
        e(f"buffer_load_dword v26, v25, s[{S_C}:{S_C+3}], 0 offen {tf}")
        srd(S_B, 14, 1 << 20)
        srd(S_C, 16, 256)
        e("s_mov_b64 exec, 1")
        e(f"buffer_load_dword v26, v25, s[{S_B}:{S_B+3}], 0 offen {tf}")
        e(f"buffer_load_dword v26, v25, s[{S_C}:{S_C+3}], 0 offen offset:128 {tf}")
        e("s_mov_b64 exec, -1")
    slot_calc(int(opt("vex", "0")))
    burst_loop("LV", lambda: kv_group(S_A, V_BASE, lambda j: 8), 16)
    done = 16
    pof = opt("poflags", "")
    npf = 0
    if opt("wopf", "1") == "1":
        e(f"s_lshl_b32 s{S_TMP}, s{S_G4}, 20")
        e(f"s_lshl_b32 s{S_TMP+1}, s{S_I}, 15")
        e(f"s_add_u32 s{S_TMP}, s{S_TMP}, s{S_TMP+1}")
        for qq in range(4):
            if qq: e(f"s_add_u32 s{S_TMP}, s{S_TMP}, 8192")
            e(f"buffer_load_dword v23, v18, s[{S_D}:{S_D+3}], s{S_TMP} offen {pof}")
        npf = 4
    assert done <= 17
    for _ in range(17 - done):
        e("s_barrier")
    e(f"s_waitcnt vmcnt({npf})")
    bar(True)
    lend(2)

    e("F_COMPUTE:")
    if opt("prio", "0") != "0":
        e(f"s_setprio {opt('prio', '0')}")
    e(f"v_and_b32 v{V_T1}, 31, v{V_LANE}")
    e(f"v_bfe_u32 v{V_T2}, v{V_T1}, 1, 3")
    e(f"v_lshrrev_b32 v{V_T3}, 5, v{V_LANE}")
    e(f"v_xor_b32 v{V_T2}, v{V_T2}, v{V_T3}")
    e(f"v_lshlrev_b32 v{V_T2}, 4, v{V_T2}")
    e(f"v_lshl_add_u32 v{V_T1}, v{V_T0}, 5, v{V_T1}")
    e(f"v_lshl_add_u32 v{V_T1}, v{V_T1}, 7, v{V_T2}")
    e(f"v_add_u32 v{V_T1}, {X_BASE}, v{V_T1}")
    for s in range(4):
        e(f"v_xor_b32 v{V_AX+s}, {32*s}, v{V_T1}")
    e(f"v_bfe_u32 v{V_T1}, v{V_LANE}, 2, 2")
    e(f"v_bfe_u32 v{V_T2}, v{V_LANE}, 4, 1")
    e(f"v_lshlrev_b32 v{V_T2}, 2, v{V_T2}")
    e(f"v_and_b32 v{V_T3}, 1, v{V_LANE}")
    e(f"v_lshl_or_b32 v{V_T2}, v{V_T3}, 1, v{V_T2}")
    e(f"v_bfe_u32 v{V_T3}, v{V_LANE}, 1, 1")
    e(f"v_or_b32 v{V_T2}, v{V_T2}, v{V_T3}")
    e(f"v_lshlrev_b32 v{V_T2}, 3, v{V_T2}")
    e(f"v_lshrrev_b32 v{V_T3}, 5, v{V_LANE}")
    e(f"v_lshl_add_u32 v{V_AO}, v{V_T1}, 7, v{V_T2}")
    e(f"v_lshl_add_u32 v{V_AO}, v{V_T3}, 10, v{V_AO}")
    e(f"v_bfe_u32 v{V_AO+1}, v{V_LANE}, 3, 1")
    e(f"v_lshl_add_u32 v{V_AO}, v{V_AO+1}, 6, v{V_AO}")
    e(f"v_xor_b32 v{V_AO+1}, 64, v{V_AO}")
    e(f"v_lshl_add_u32 v{V_T2}, v{V_T1}, 8, v{V_T2}")
    e(f"v_lshl_add_u32 v{V_T2}, v{V_T1}, 6, v{V_T2}")
    for T in range(4):
        e(f"v_xor_b32 v{V_AV+T}, {64*T}, v{V_T2}")
        e(f"v_lshl_add_u32 v{V_AW+T}, v{V_T3}, 11, v{V_AV+T}")
    e(f"v_lshrrev_b32 v{V_T0}, 7, v0")
    e(f"v_and_b32 v{V_T1}, 31, v{V_LANE}")
    e(f"v_and_b32 v{V_T2}, 15, v{V_LANE}")
    e(f"v_xor_b32 v{V_T2}, v{V_T2}, v{V_T3}")
    e(f"v_lshlrev_b32 v{V_T2}, 4, v{V_T2}")
    e(f"v_lshl_add_u32 v{V_T2}, v{V_T1}, 8, v{V_T2}")
    e(f"v_lshl_add_u32 v{V_T2}, v{V_T0}, 14, v{V_T2}")
    e(f"v_add_u32 v{V_T2}, {K_BASE}, v{V_T2}")
    for s in range(8):
        e(f"v_xor_b32 v{V_AK+s}, {32*s}, v{V_T2}")
    e(f"v_lshlrev_b32 v{V_T0}, 14, v{V_T0}")
    e(f"v_lshl_add_u32 v{V_T0}, v{V_T3}, 10, v{V_T0}")
    e(f"v_add_u32 v{V_T0}, {V_BASE}, v{V_T0}")
    for T in range(4):
        e(f"v_add_u32 v{V_AV+T}, v{V_AV+T}, v{V_T0}")
    e(f"v_lshlrev_b32 v{V_ST}, 4, v{V_LANE}")
    e(f"v_lshrrev_b32 v{V_T0}, 6, v0")
    e(f"v_lshl_add_u32 v{V_T0}, v{V_T0}, 5, v{V_T1}")
    e(f"v_lshlrev_b32 v{V_T0}, 10, v{V_T0}")
    e(f"v_lshl_add_u32 v{V_OUT}, v{V_T3}, 4, v{V_T0}")
    e(f"v_and_b32 v{V_T0}, 7, v{V_LANE}")
    e(f"s_andn2_b32 s{S_TMP}, s2, 0x38")
    e(f"s_lshl_b32 s{S_TMP}, s{S_TMP}, 2")
    e(f"s_add_u32 s{S_TMP}, s{S_TMP}, s{S_WV}")
    e(f"s_lshl_b32 s{S_X0}, s{S_TMP}, 13")
    e(f"s_lshl_b32 s{S_TMP}, s{S_TMP}, 6")
    e(f"s_add_u32 s{S_TMP}, s{S_TMP}, {F1_OFF}")
    e(f"v_lshlrev_b32 v{V_T0}, 11, v{V_T0}")
    e(f"v_add_u32 v{V_FA1}, s{S_TMP}, v{V_T0}")
    e(f"v_add_u32 v{V_FA1A}, {F1A_OFF - F1_OFF}, v{V_FA1}")
    e(f"v_and_b32 v{V_T0}, 3, v{V_LANE}")
    e(f"s_andn2_b32 s{S_TMP}, s2, 3")
    e(f"s_lshl_b32 s{S_TMP}, s{S_TMP}, 2")
    e(f"s_add_u32 s{S_TMP}, s{S_TMP}, s{S_WV}")
    e(f"s_lshl_b32 s{S_TMP}, s{S_TMP}, 6")
    e(f"s_add_u32 s{S_TMP}, s{S_TMP}, {F2_OFF}")
    e(f"v_lshlrev_b32 v{V_T0}, 8, v{V_T0}")
    e(f"v_add_u32 v{V_FA2}, s{S_TMP}, v{V_T0}")
    e(f"v_mov_b32 v{V_ZERO}, 0")
    e(f"s_lshl_b32 s{S_TMP}, s2, 2")
    e(f"s_add_u32 s{S_TMP}, s{S_TMP}, s{S_WV}")
    e(f"s_lshl_b32 s{S_T2}, s{S_TMP}, 6")
    e(f"s_lshl_b32 s{S_X1}, s{S_TMP}, 13")
    e("s_waitcnt lgkmcnt(0)")
    srd(S_A, 18, WS_BYTES)
    srd(S_B, 16, 256)
    srd(S_C, 14, 1 << 20)
    DRY = opt("dry", "0") == "1"
    if DRY:
        e(f"s_mov_b32 s{S_DRY}, 1")
        e(f"s_mov_b32 s{S_SK0}, 6")
        e("s_mov_b32 s36, 0x40000000")
        e(f"v_mov_b32 v{V_T1}, 0")
        e(f"s_mov_b32 s{S_J}, 6")
        e("s_mov_b64 exec, 0")
        e(f"s_cmp_eq_u32 s{S_WV}, 0")
        e("s_cbranch_scc1 F_ATT")
        e(f"s_cmp_eq_u32 s{S_WV}, 1")
        e("s_cbranch_scc1 F_SEG1")
        e(f"s_cmp_eq_u32 s{S_WV}, 2")
        e("s_cbranch_scc1 F_SEG2")
        e("s_branch P2_L")
        e("F_REAL:")
        e("s_mov_b64 exec, -1")
        e("s_waitcnt lgkmcnt(0)")
        e("s_nop 7")
        e("s_nop 7")
    e(f"s_mov_b32 s{S_DRY}, 0")
    e(f"s_mov_b32 s{S_SK0}, 0")
    for i in range(64):
        e(f"v_mov_b32 v{V_ACC+i}, 0")

    def rd_x(s, buf):
        e(f"ds_read_b128 v[{V_FX+4*buf}:{V_FX+4*buf+3}], v{V_AX+s}")
    def rd_w(p, buf, T):
        off = p * 4096
        r = V_FW + 16 * buf + 4 * T
        e(f"ds_read_b64_tr_b16 v[{r}:{r+1}], v{V_AW+T} offset:{off}")
        e(f"ds_read_b64_tr_b16 v[{r+2}:{r+3}], v{V_AW+T} offset:{off + 1024}")

    bar(True)
    rd_x(0, 0)
    for T in range(4):
        rd_w(0, 0, T)
    e(f"s_mov_b32 s{S_CNT}, 0")
    e(f"s_mov_b32 s{S_LO}, 0")
    e("s_mov_b32 s60, -32768")
    e("s_mov_b32 s61, 16384")
    if STAMPS:
        e("v_mov_b32 v231, 0")
        e("s_mov_b32 s96, 0")
    e("QP_L:")
    if STAMPS:
        e(f"s_mov_b32 m0, s{S_CNT}")
        e("s_nop 0")
        e(f"v_writelane_b32 v231, s96, m0")
        e("s_memtime s[96:97]")
    e(f"s_add_u32 s{S_LO}, s{S_LO}, 16384")
    e(f"s_cmp_eq_u32 s{S_LO}, 49152")
    e(f"s_cselect_b32 s{S_DEL}, s60, s61")
    e(f"s_cselect_b32 s{S_LO}, 0, s{S_LO}")
    for p in range(4):
        buf = p & 1
        nb = buf ^ 1
        if p & 1:
            e("s_barrier")
        for T in range(4):
            nxt = 0 if T == 0 else 1 + 2 * T
            e(f"s_waitcnt lgkmcnt({2*(3-T) + nxt})")
            a = V_FW + 16 * buf + 4 * T
            b = V_FX + 4 * buf
            acc = V_ACC + 16 * T
            e(f"v_mfma_f32_32x32x16_bf16 v[{acc}:{acc+15}], v[{a}:{a+3}], v[{b}:{b+3}], v[{acc}:{acc+15}]")
            if T == 0:
                rd_x((p + 1) & 3, nb)
            rd_w((p + 1) & 3, nb, T)
            if p == 2:
                e(f"v_add_u32 v{V_AW+T}, s{S_DEL}, v{V_AW+T}")
            if p == 0 and T == 1:
                e(f"v_add_u32 v{V_AX}, s{S_DEL}, v{V_AX}")
            if p == 3 and T >= 1:
                e(f"v_add_u32 v{V_AX+T}, s{S_DEL}, v{V_AX+T}")
    e(f"s_add_u32 s{S_CNT}, s{S_CNT}, 1")
    e(f"s_cmp_lt_u32 s{S_CNT}, 8")
    e("s_cbranch_scc1 QP_L")
    e("s_waitcnt lgkmcnt(0)")
    bar(True)

    e("F_ATT:")
    def dry_exit():
        if DRY:
            e(f"s_cmp_eq_u32 s{S_DRY}, 1")
            e("s_cbranch_scc1 F_REAL")
    def rd_k(i):
        t, s_ = i // 8, i % 8
        r = V_KF + 4 * (i % 4)
        e(f"ds_read_b128 v[{r}:{r+3}], v{V_AK+s_} offset:{8192*t}")
    def cvt_q(s_, lo, hi):
        for qq in range(lo, hi):
            a = V_ACC + 8 * s_ + 2 * qq
            e(f"v_cvt_pk_bf16_f32 v{V_QB + 4*s_ + qq}, v{a}, v{a+1}")
    for i in range(4):
        rd_k(i)
    e(f"s_mov_b32 s{S_TMP}, 0x3e0293ee")
    e(f"s_mov_b32 s{S_TMP+1}, 0x3e0293ee")
    e("s_nop 7")
    cvt_q(0, 0, 4)
    cvt_q(1, 0, 2)
    for i in range(16):
        t, s_ = i // 8, i % 8
        r = V_KF + 4 * (i % 4)
        rem = min(3, 15 - i)
        e(f"s_waitcnt lgkmcnt({rem})")
        acc = V_S + 16 * t
        cc = "0" if s_ == 0 else f"v[{acc}:{acc+15}]"
        b = V_QB + 4 * s_
        e(f"v_mfma_f32_32x32x16_bf16 v[{acc}:{acc+15}], v[{r}:{r+3}], v[{b}:{b+3}], {cc}")
        if i + 4 < 16:
            rd_k(i + 4)
        if i < 7:
            cvt_q(i + 1, 2, 4)
            if i + 2 < 8:
                cvt_q(i + 2, 0, 2)
            else:
                e("s_nop 1")
        if i == 12:
            e(f"v_max3_f32 v{V_M}, v{V_S}, v{V_S+1}, v{V_S+2}")
            e(f"v_max3_f32 v{V_M2}, v{V_S+3}, v{V_S+4}, v{V_S+5}")
        if i == 13:
            e(f"v_max3_f32 v{V_M}, v{V_M}, v{V_S+6}, v{V_S+7}")
            e(f"v_max3_f32 v{V_M2}, v{V_M2}, v{V_S+8}, v{V_S+9}")
        if i == 14:
            e(f"v_max3_f32 v{V_M}, v{V_M}, v{V_S+10}, v{V_S+11}")
            e(f"v_max3_f32 v{V_M2}, v{V_M2}, v{V_S+12}, v{V_S+13}")
        if i == 15:
            e(f"v_max3_f32 v{V_M}, v{V_M}, v{V_S+14}, v{V_S+15}")
    dry_exit()
    stamp()
    e("F_SEG1:")
    def rd_v(u, buf):
        for T in range(4):
            r = V_VF + 16 * buf + 4 * T
            e(f"ds_read_b64_tr_b16 v[{r}:{r+1}], v{V_AV+T} offset:{u*4096}")
            e(f"ds_read_b64_tr_b16 v[{r+2}:{r+3}], v{V_AV+T} offset:{u*4096+2048}")
    if opt("tmaj", "0") == "1":
        for u in range(4):
            r = V_VF + 4 * u
            e(f"ds_read_b64_tr_b16 v[{r}:{r+1}], v{V_AV} offset:{u*4096}")
            e(f"ds_read_b64_tr_b16 v[{r+2}:{r+3}], v{V_AV} offset:{u*4096+2048}")
    else:
        rd_v(0, 0)
    e("s_nop 5")
    for i in range(16, 32, 4):
        e(f"v_max3_f32 v{V_M}, v{V_M}, v{V_S+i}, v{V_S+i+1}")
        e(f"v_max3_f32 v{V_M2}, v{V_M2}, v{V_S+i+2}, v{V_S+i+3}")
    e(f"v_max_f32 v{V_M}, v{V_M}, v{V_M2}")
    e(f"v_mov_b32 v{V_M2}, v{V_M}")
    e("s_nop 1")
    e(f"v_permlane32_swap_b32 v{V_M}, v{V_M2}")
    e("s_nop 1")
    e(f"v_max_f32 v{V_M}, v{V_M}, v{V_M2}")
    e(f"v_mul_f32 v{V_M}, s{S_TMP}, v{V_M}")
    def sm_group(u):
        o = []
        for i in range(8 * u, 8 * u + 8):
            o.append(f"v_fma_f32 v{V_S+i}, v{V_S+i}, s{S_TMP}, -v{V_M}")
        for i in range(8 * u, 8 * u + 8):
            o.append(f"v_exp_f32 v{V_S+i}, v{V_S+i}")
        o.append("s_nop 0")
        for i in range(4):
            o.append(f"v_cvt_pk_bf16_f32 v{V_PB+4*u+i}, v{V_S+8*u+2*i}, v{V_S+8*u+2*i+1}")
        return o
    def sum_group(u):
        o = []
        b = V_S + 8 * u
        if u == 0:
            o.append(f"v_add_f32 v{V_SUM}, v{b}, v{b+1}")
            o.append(f"v_add_f32 v{V_SUM2}, v{b+2}, v{b+3}")
            rest = range(4, 8, 2)
        else:
            rest = range(0, 8, 2)
        for i in rest:
            o.append(f"v_add_f32 v{V_SUM}, v{V_SUM}, v{b+i}")
            o.append(f"v_add_f32 v{V_SUM2}, v{V_SUM2}, v{b+i+1}")
        return o
    if opt("tmaj", "0") == "1":
        def rd_vT(T, buf):
            for u in range(4):
                r = V_VF + 16 * buf + 4 * u
                e(f"ds_read_b64_tr_b16 v[{r}:{r+1}], v{V_AV+T} offset:{u*4096}")
                e(f"ds_read_b64_tr_b16 v[{r+2}:{r+3}], v{V_AV+T} offset:{u*4096+2048}")
        for u in range(4):
            for x in sm_group(u): e(x)
            for x in sum_group(u): e(x)
        for x in [f"v_add_f32 v{V_SUM}, v{V_SUM}, v{V_SUM2}", f"v_mov_b32 v{V_SUM2}, v{V_SUM}", "s_nop 1",
                  f"v_permlane32_swap_b32 v{V_SUM}, v{V_SUM2}", "s_nop 1",
                  f"v_add_f32 v{V_SUM}, v{V_SUM}, v{V_SUM2}", f"v_rcp_f32 v{V_RS}, v{V_SUM}", "s_nop 0",
                  f"v_mov_b32 v{V_RS+1}, v{V_RS}"]:
            e(x)
        e(f"s_add_u32 s{S_TMP+1}, s{S_X1}, 4096")
        def fin_tile(T):
            o = []
            for ks in (2 * T, 2 * T + 1):
                a = V_ACC + 8 * ks
                d = V_BX + 4 * ks
                for i in range(4):
                    o.append(f"v_pk_mul_f32 v[{a+2*i}:{a+2*i+1}], v[{a+2*i}:{a+2*i+1}], v[{V_RS}:{V_RS+1}]")
                for i in range(4):
                    o.append(f"v_cvt_pk_bf16_f32 v{d+i}, v{a+2*i}, v{a+2*i+1}")
                so = S_X1 if ks < 4 else S_TMP + 1
                o.append(f"buffer_store_dwordx4 v[{d}:{d+3}], v{V_ST}, s[{S_A}:{S_A+3}], s{so} offen offset:{1024*(ks&3)} sc1")
            return o
        for T in range(4):
            buf = T & 1
            e("s_waitcnt lgkmcnt(0)")
            fill = fin_tile(T - 1) if T >= 1 else []
            for u in range(4):
                a = V_VF + 16 * buf + 4 * u
                b = V_PB + 4 * u
                acc = V_ACC + 16 * T
                cc = "0" if u == 0 else f"v[{acc}:{acc+15}]"
                e(f"v_mfma_f32_32x32x16_bf16 v[{acc}:{acc+15}], v[{a}:{a+3}], v[{b}:{b+3}], {cc}")
                if u == 0:
                    if T + 1 < 4:
                        rd_vT(T + 1, buf ^ 1)
                    else:
                        e("s_nop 7")
                    e("s_nop 1")
                elif fill:
                    n = 6
                    for x in fill[(u - 1) * n:u * n]:
                        e(x)
        e("s_nop 7")
        e("s_nop 3")
        for x in fin_tile(3): e(x)
        for i in range(8):
            e(f"v_mov_b32 v{V_ACC2+24+i}, 0")
        stamp()
    else:
        for x in sm_group(0): e(x)
        e("s_nop 0")
        for u in range(4):
            buf = u & 1
            if u == 2:
                dry_exit()
                e("F_SEG2:")
            e("s_waitcnt lgkmcnt(0)")
            fill = []
            if u + 1 < 4:
                fill = sm_group(u + 1) + sum_group(u)
            else:
                fill = sum_group(u) + [f"v_add_f32 v{V_SUM}, v{V_SUM}, v{V_SUM2}", f"v_mov_b32 v{V_SUM2}, v{V_SUM}", "s_nop 1",
                                       f"v_permlane32_swap_b32 v{V_SUM}, v{V_SUM2}", "s_nop 1",
                                       f"v_add_f32 v{V_SUM}, v{V_SUM}, v{V_SUM2}", f"v_rcp_f32 v{V_RS}, v{V_SUM}", "s_nop 0",
                                       f"v_mov_b32 v{V_RS+1}, v{V_RS}"]
            per = (len(fill) + 3) // 4
            for T in range(4):
                a = V_VF + 16 * buf + 4 * T
                b = V_PB + 4 * u
                acc = V_ACC + 16 * T
                cc = "0" if u == 0 else f"v[{acc}:{acc+15}]"
                e(f"v_mfma_f32_32x32x16_bf16 v[{acc}:{acc+15}], v[{a}:{a+3}], v[{b}:{b+3}], {cc}")
                if T == 0 and u + 1 < 4:
                    rd_v(u + 1, buf ^ 1)
                for x in fill[T * per:(T + 1) * per]:
                    e(x)
            if u + 1 < 4:
                e("s_nop 1")
        e("s_nop 3")
        for i in range(8):
            e(f"v_mov_b32 v{V_ACC2+24+i}, 0")
        for ks in range(8):
            a = V_ACC + 8 * ks
            d = V_BX + 4 * ks
            for i in range(4):
                e(f"v_pk_mul_f32 v[{a+2*i}:{a+2*i+1}], v[{a+2*i}:{a+2*i+1}], v[{V_RS}:{V_RS+1}]")
            for i in range(4):
                e(f"v_cvt_pk_bf16_f32 v{d+i}, v{a+2*i}, v{a+2*i+1}")
        dry_exit()
        stamp()
        e(f"s_add_u32 s{S_TMP+1}, s{S_X1}, 4096")
        for ks in range(8):
            d = V_BX + 4 * ks
            so = S_X1 if ks < 4 else S_TMP + 1
            e(f"buffer_store_dwordx4 v[{d}:{d+3}], v{V_ST}, s[{S_A}:{S_A+3}], s{so} offen offset:{1024*(ks&3)} sc1")
    e(f"s_mov_b32 s{S_CNT}, 0")
    bar()
    for i in range(24):
        e(f"v_mov_b32 v{V_ACC2+i}, 0")
    e("s_mov_b64 exec, 1")
    e("F_TOKL:")
    e(f"buffer_load_dwordx2 v[{V_TOK}:{V_TOK+1}], v{V_ZERO}, s[{S_B}:{S_B+3}], 0 offen sc0 sc1")
    e("s_waitcnt vmcnt(0)")
    e(f"v_readfirstlane_b32 s{S_TOK}, v{V_TOK}")
    e(f"v_readfirstlane_b32 s{S_TOK+1}, v{V_TOK+1}")
    e(f"s_add_u32 s{S_CNT}, s{S_CNT}, 1")
    e(f"s_cmp_gt_u32 s{S_CNT}, {SPIN}")
    e("s_cbranch_scc1 F_TOKX")
    e(f"s_cmp_eq_u32 s{S_TOK}, 0")
    e("s_cbranch_scc1 F_TOKL")
    e("F_TOKX:")
    stamp()
    e(f"s_add_u32 s{S_TMP}, s{S_T2}, {F1_OFF}")
    e(f"s_add_u32 s{S_TMP+1}, s{S_T2}, {F1A_OFF}")
    e("s_mov_b64 exec, 1")
    e(f"buffer_store_dwordx2 v[{V_TOK}:{V_TOK+1}], v{V_ZERO}, s[{S_A}:{S_A+3}], s{S_TMP+1} offen")
    e(f"buffer_store_dwordx2 v[{V_TOK}:{V_TOK+1}], v{V_ZERO}, s[{S_A}:{S_A+3}], s{S_TMP} offen sc1")
    e("s_mov_b64 exec, -1")
    if opt("opf", "0") == "1":
        e(f"v_lshlrev_b32 v{V_T2}, 7, v{V_LANE}")
        e(f"buffer_load_dword v{V_T3}, v{V_T2}, s[{S_A}:{S_A+3}], s{S_X1} offen {opt('opfflags', '')}")
    bar()
    poll_loop("F_P1", V_FA1A, S_A, "sc1", V_FA1)
    stamp()

    D = int(opt("p2d", "12"))
    def slot_reg(sl):
        return (V_BX if sl < 8 else V_BY) + 4 * (sl & 7)
    def blk_base(sreg, jadd):
        e(f"s_add_u32 s{sreg}, s{S_HL}, s{S_J}")
        e(f"s_add_u32 s{sreg}, s{sreg}, {jadd}")
        e(f"s_and_b32 s{sreg}, s{sreg}, 7")
        e(f"s_lshl_b32 s{sreg}, s{sreg}, 18")
        e(f"s_add_u32 s{sreg}, s{sreg}, s{S_X0}")
        if jadd >= 2:
            e(f"s_cmp_ge_u32 s{S_J}, 6")
            e(f"s_cselect_b32 s{sreg}, 0x40000000, s{sreg}")
    def ld(sl, sreg, ks):
        b = slot_reg(sl)
        vo = V_ST if ks < 4 else V_T1
        e(f"buffer_load_dwordx4 v[{b}:{b+3}], v{vo}, s[{S_A}:{S_A+3}], s{sreg} offen offset:{1024*(ks&3)} {SIBF}")
    def rd_o(step, buf):
        off = step * 2048
        for T in range(2):
            r = V_FO + 8 * buf + 4 * T
            e(f"ds_read_b64_tr_b16 v[{r}:{r+1}], v{V_AO+T} offset:{off}")
            e(f"ds_read_b64_tr_b16 v[{r+2}:{r+3}], v{V_AO+T} offset:{off + 512}")
    SB = (36, 37, 38)
    e(f"s_mov_b32 s{S_J}, 0")
    e(f"v_add_u32 v{V_T1}, 4096, v{V_ST}")
    blk_base(SB[0], 1)
    for ks in range(D - 8):
        ld(8 + ks, SB[0], ks)
    PD = int(opt("pd", "3"))
    for i in range(PD):
        rd_o(i, i)
    e("P2_L:")
    blk_base(SB[1], 2)
    blk_base(SB[2], 3)
    LA = D
    def rd_o1(step, buf, T):
        off = step * 2048
        r = V_FO + 8 * buf + 4 * T
        e(f"ds_read_b64_tr_b16 v[{r}:{r+1}], v{V_AO+T} offset:{off}")
        e(f"ds_read_b64_tr_b16 v[{r+2}:{r+3}], v{V_AO+T} offset:{off + 512}")
    for l in range(16):
        buf = l & 3
        e(f"s_waitcnt vmcnt({LA - 1}) lgkmcnt({4 * (PD - 1)})")
        for T in range(2):
            a = V_FO + 8 * buf + 4 * T
            b = slot_reg(l)
            acc = V_ACC2 + 16 * T
            e(f"v_mfma_f32_32x32x16_bf16 v[{acc}:{acc+15}], v[{a}:{a+3}], v[{b}:{b+3}], v[{acc}:{acc+15}]")
            rd_o1(l + PD, (l + PD) & 3, T)
            if T == 0:
                e(f"__LOAD{l}__")
    e(f"v_add_u32 v{V_AO}, 0x8000, v{V_AO}")
    e(f"v_add_u32 v{V_AO+1}, 0x8000, v{V_AO+1}")
    e(f"s_mov_b32 s{SB[0]}, s{SB[2]}")
    e(f"s_add_u32 s{S_J}, s{S_J}, 2")
    e(f"s_cmp_lt_u32 s{S_J}, 8")
    e("s_cbranch_scc1 P2_L")
    if DRY:
        e(f"s_cmp_eq_u32 s{S_DRY}, 0")
        e("s_cbranch_scc1 F_X2")
        e(f"v_subrev_u32 v{V_AO}, 0x8000, v{V_AO}")
        e(f"v_subrev_u32 v{V_AO+1}, 0x8000, v{V_AO+1}")
        e("s_branch F_REAL")
        e("F_X2:")
    e("s_waitcnt lgkmcnt(0)")
    e("s_nop 7")
    e("s_nop 3")
    stamp()
    out = []
    for line in L:
        t = line.strip()
        if t.startswith("__LOAD"):
            l = int(t[6:-2])
            tgt = l + LA
            sl = tgt & 15
            blk = tgt >> 3
            sreg = SB[blk - 1]
            ks = tgt & 7
            b = slot_reg(sl)
            vo = V_ST if ks < 4 else V_T1
            ins = f"    buffer_load_dwordx4 v[{b}:{b+3}], v{vo}, s[{S_A}:{S_A+3}], s{sreg} offen offset:{1024*(ks&3)} {SIBF}"
            out.append(ins)
        elif t.startswith("__WAITB"):
            out += [f"    s_waitcnt vmcnt({LA - 1})"]
        else:
            out.append(line)
    L[:] = out
    V_CK = 96
    V_L8 = V_T2
    DPPS = ["quad_perm:[1,0,3,2]", "quad_perm:[2,3,0,1]", "row_half_mirror", "row_mirror"]
    e(f"v_lshrrev_b32 v{V_L8}, 4, v{V_LANE}")
    e(f"v_lshlrev_b32 v{V_L8}, 3, v{V_L8}")
    e(f"s_andn2_b32 s{S_BASE}, s2, 3")
    e(f"s_lshl_b32 s{S_BASE}, s{S_BASE}, 2")
    e(f"s_add_u32 s{S_BASE}, s{S_BASE}, s{S_G4}")
    e(f"s_lshl_b32 s{S_BASE}, s{S_BASE}, 2")
    e(f"s_add_u32 s{S_BASE}, s{S_BASE}, s{S_WV}")
    e(f"s_lshl_b32 s{S_LO}, s{S_BASE}, 6")
    e(f"s_add_u32 s{S_LO}, s{S_LO}, {CK_OFF}")
    e(f"s_lshl_b32 s{S_BASE}, s{S_BASE}, 11")
    e(f"s_add_u32 s{S_BASE}, s{S_BASE}, {PX_OFF}")
    for qd in range(4):
        e(f"s_cmp_eq_u32 s{S_G4}, {qd}")
        e(f"s_cbranch_scc1 F_SK{qd}")
        e(f"s_add_u32 s{S_TMP}, s{S_BASE}, {qd * 32768}")
        a = V_ACC2 + 8 * qd
        e(f"buffer_store_dwordx4 v[{a}:{a+3}], v{V_ST}, s[{S_A}:{S_A+3}], s{S_TMP} offen sc1")
        e(f"buffer_store_dwordx4 v[{a+4}:{a+7}], v{V_ST}, s[{S_A}:{S_A+3}], s{S_TMP} offen offset:1024 sc1")
        e(f"s_branch F_SE{qd}")
        e(f"F_SK{qd}:")
        for i in range(8):
            e(f"v_mov_b32 v{V_FIN+i}, v{a+i}")
        e(f"F_SE{qd}:")
    for qd in range(4):
        a = V_ACC2 + 8 * qd
        c = V_CK + 2 * qd
        e(f"v_bitop3_b32 v{c}, v{a}, v{a+1}, v{a+2} bitop3:0x96")
        e(f"v_bitop3_b32 v{c}, v{c}, v{a+3}, v{a+4} bitop3:0x96")
        e(f"v_bitop3_b32 v{c}, v{c}, v{a+5}, v{a+6} bitop3:0x96")
        e(f"v_xor_b32 v{c}, v{c}, v{a+7}")
        e(f"v_mov_b32 v{c+1}, s{S_TOK}")
    e("s_nop 0")
    for d in DPPS:
        for qd in range(4):
            c = V_CK + 2 * qd
            e(f"v_xor_b32_dpp v{c}, v{c}, v{c} {d} row_mask:0xf bank_mask:0xf")
    for qd in range(4):
        c = V_CK + 2 * qd
        e(f"v_xor_b32 v{c}, s{S_TOK+1}, v{c}")
    e("s_mov_b32 exec_lo, 0x00010001")
    e("s_mov_b32 exec_hi, 0x00010001")
    for qd in range(4):
        c = V_CK + 2 * qd
        e(f"buffer_store_dwordx2 v[{c}:{c+1}], v{V_L8}, s[{S_A}:{S_A+3}], s{S_LO} offen offset:{qd*1024} sc1")
    e("s_mov_b64 exec, -1")
    stamp()
    e(f"s_lshl_b32 s{S_BASE}, s2, 4")
    e(f"s_add_u32 s{S_BASE}, s{S_BASE}, s{S_WV}")
    e(f"s_lshl_b32 s{S_LO}, s{S_BASE}, 6")
    e(f"s_add_u32 s{S_LO}, s{S_LO}, {CK_OFF}")
    e(f"s_lshl_b32 s{S_BASE}, s{S_BASE}, 11")
    e(f"s_add_u32 s{S_BASE}, s{S_BASE}, {PX_OFF}")
    SD = (32, 33, 34); SC = (36, 37, 38)
    for n in range(3):
        e(f"s_add_u32 s{S_TMP}, s{S_G4}, {n+1}")
        e(f"s_and_b32 s{S_TMP}, s{S_TMP}, 3")
        e(f"s_lshl_b32 s{SC[n]}, s{S_TMP}, 8")
        e(f"s_add_u32 s{SC[n]}, s{SC[n]}, s{S_LO}")
        e(f"s_lshl_b32 s{SD[n]}, s{S_TMP}, 13")
        e(f"s_add_u32 s{SD[n]}, s{SD[n]}, s{S_BASE}")
    e(f"v_add_u32 v{V_T3}, s{S_G4}, v{V_LANE}")
    e(f"v_add_u32 v{V_T3}, 1, v{V_T3}")
    e(f"v_and_b32 v{V_T3}, 3, v{V_T3}")
    e(f"v_lshlrev_b32 v{V_T3}, 8, v{V_T3}")
    e(f"s_mov_b32 s{S_CNT}, 0")
    e("s_mov_b64 exec, 7")
    e("F_P2:")
    e(f"buffer_load_dword v{V_FV}, v{V_T3}, s[{S_A}:{S_A+3}], s{S_LO} offen offset:28 sc0 sc1")
    e(f"s_add_u32 s{S_CNT}, s{S_CNT}, 1")
    e("s_waitcnt vmcnt(0)")
    e(f"v_cmp_ne_u32 vcc, s{S_TOK}, v{V_FV}")
    e(f"s_cmp_gt_u32 s{S_CNT}, {SPIN}")
    e("s_cbranch_scc1 F_P2X")
    e("s_nop 2")
    e("s_cbranch_vccnz F_P2")
    e("F_P2X:")
    e("s_mov_b64 exec, -1")
    stamp()
    if STAMPS: e(f"v_writelane_b32 v231, s{S_CNT}, 12")
    def rx_all(rf):
        for n in range(3):
            b = V_PR + 8 * n
            e(f"buffer_load_dwordx4 v[{b}:{b+3}], v{V_ST}, s[{S_A}:{S_A+3}], s{SD[n]} offen {rf}")
            e(f"buffer_load_dwordx4 v[{b+4}:{b+7}], v{V_ST}, s[{S_A}:{S_A+3}], s{SD[n]} offen offset:1024 {rf}")
            e(f"buffer_load_dwordx2 v[{104+2*n}:{105+2*n}], v{V_L8}, s[{S_A}:{S_A+3}], s{SC[n]} offen {rf}")
    rx_all(opt("rxflags", "sc1"))
    e("s_branch F_RV")
    e("F_RX:")
    rx_all("sc0 sc1")
    e("F_RV:")
    e(f"s_add_u32 s{S_CNT}, s{S_CNT}, 1")
    VX = 124
    for n in range(3):
        e(f"s_waitcnt vmcnt({3*(2-n)})")
        b = V_PR + 8 * n
        c = VX + n
        e(f"v_bitop3_b32 v{c}, v{b}, v{b+1}, v{b+2} bitop3:0x96")
        e(f"v_bitop3_b32 v{c}, v{c}, v{b+3}, v{b+4} bitop3:0x96")
        e(f"v_bitop3_b32 v{c}, v{c}, v{b+5}, v{b+6} bitop3:0x96")
        e(f"v_xor_b32 v{c}, v{c}, v{b+7}")
    e("s_nop 1")
    for d in DPPS:
        for n in range(3):
            c = VX + n
            e(f"v_xor_b32_dpp v{c}, v{c}, v{c} {d} row_mask:0xf bank_mask:0xf")
    for n in range(3):
        c = VX + n
        e(f"v_bitop3_b32 v{c}, v{c}, v{104+2*n}, s{S_TOK+1} bitop3:0x96")
        e(f"v_xor_b32 v{105+2*n}, s{S_TOK}, v{105+2*n}")
    e(f"v_or3_b32 v{V_T3}, v{VX}, v{VX+1}, v{VX+2}")
    e(f"v_or3_b32 v{V_T3}, v{V_T3}, v105, v107")
    e(f"v_or_b32 v{V_T3}, v{V_T3}, v109")
    e(f"v_cmp_ne_u32 vcc, 0, v{V_T3}")
    e(f"s_cmp_gt_u32 s{S_CNT}, {SPIN}")
    e("s_cbranch_scc1 F_RXX")
    e("s_nop 2")
    e("s_cbranch_vccnz F_RX")
    e("F_RXX:")
    if STAMPS:
        e(f"v_writelane_b32 v231, s{S_CNT}, 13")
        stamp()
    e(f"s_lshl_b32 s{S_TMP}, s{S_RB}, 17")
    e(f"s_lshl_b32 s{S_TMP+1}, s{S_HL}, 7")
    e(f"s_add_u32 s{S_TMP}, s{S_TMP}, s{S_TMP+1}")
    e(f"s_lshl_b32 s{S_TMP+1}, s{S_G4}, 5")
    e(f"s_add_u32 s{S_TMP}, s{S_TMP}, s{S_TMP+1}")
    for n in range(3):
        for i in range(8):
            e(f"v_add_f32 v{V_FIN+i}, v{V_FIN+i}, v{V_PR+8*n+i}")
    for i in range(4):
        e(f"v_cvt_pk_bf16_f32 v{V_FIN+8+i}, v{V_FIN+2*i}, v{V_FIN+2*i+1}")
    e(f"buffer_store_dwordx4 v[{V_FIN+8}:{V_FIN+11}], v{V_OUT}, s[{S_C}:{S_C+3}], s{S_TMP} offen")
    stamp_flush()
    e("F_DONE:")
    e("s_endpgm")
    L.append(kd(name, NVGPR))


def main():
    out = sys.argv[1]
    hdr = HEADER
    hdr += "; @launch grid=(256,1,1) block=(512,1,1) lds=163840\n"
    hdr += '.amdgcn_target "amdgcn-amd-amdhsa--gfx950"\n'
    fused()
    open(out, "w").write(hdr + "\n".join(L) + "\n")

main()
```

```python
import sys

HEADER = """; Kernarg layout for this problem (64 bytes, ptrs only, base s[0:1]):
"""
KNAME = "standalone__gqa_block_cached__near_ridge_kernel"
ARGS = sys.argv[2:]
def opt(name, default):
    for a in ARGS:
        if a.startswith(name + "="):
            return a.split("=", 1)[1].replace("_", " ")
    return default

L = []
def e(s=""):
    L.append("    " + s if s and not s.endswith(":") else s)

def kd(name, vgpr, sgpr=100):
    acc = (vgpr + 3) // 4 * 4
    return f""".section .rodata,"a"
.p2align 6
.amdhsa_kernel {name}
  .amdhsa_next_free_vgpr {vgpr}
  .amdhsa_next_free_sgpr {sgpr}
  .amdhsa_accum_offset {acc}
  .amdhsa_group_segment_fixed_size 0
  .amdhsa_kernarg_size 64
  .amdhsa_user_sgpr_count 2
  .amdhsa_user_sgpr_kernarg_segment_ptr 1
  .amdhsa_system_sgpr_workgroup_id_x 1
.end_amdhsa_kernel
"""

def srd(d, b, nbytes, extra_off=None):
    if extra_off:
        e(f"s_add_u32 s{d}, s{b}, {extra_off}")
        e(f"s_addc_u32 s{d+1}, s{b+1}, 0")
    else:
        e(f"s_mov_b32 s{d}, s{b}")
        e(f"s_mov_b32 s{d+1}, s{b+1}")
    e(f"s_mov_b32 s{d+2}, {nbytes}")
    e(f"s_mov_b32 s{d+3}, 0x00020000")

STAMPS = "--stamps" in ARGS
NST = [0]
S_WV = 42
def stamp(real=False):
    if not STAMPS: return
    i = NST[0]; NST[0] += 1
    assert i < 17, "too many stamps"
    e(f"{'s_memrealtime' if real else 's_memtime'} s[{62+2*i}:{63+2*i}]")

def stamp_flush():
    if not STAMPS: return
    e("s_waitcnt vmcnt(0) lgkmcnt(0)")
    stamp(False)
    stamp(True)
    n = NST[0]
    e("s_waitcnt lgkmcnt(0)")
    srd(20, 18, 1 << 20, extra_off=(64 << 20))
    e(f"s_lshl_b32 s3, s2, 3")
    e(f"s_add_u32 s3, s3, s{S_WV}")
    e(f"s_lshl_b32 s3, s3, 8")
    e("v_and_b32 v2, 63, v0")
    e("v_lshlrev_b32 v2, 2, v2")
    e("s_mov_b64 exec, 0xffff")
    e("buffer_store_dword v231, v2, s[20:23], s3 offen offset:192")
    e("s_mov_b64 exec, -1")
    e("v_mov_b32 v2, 0")
    e("s_mov_b64 exec, 1")
    for i in range(n):
        e(f"v_mov_b32 v4, s{62+2*i}")
        e(f"v_mov_b32 v5, s{63+2*i}")
        e(f"buffer_store_dwordx2 v[4:5], v2, s[20:23], s3 offen offset:{8*i}")
        e("s_nop 1")

def bar(st=False):
    if st: stamp()
    e("s_barrier")

def lend(rem=0):
    if STAMPS:
        for _ in range(rem):
            e("s_barrier")
    stamp_flush()
    NST[0] = 2
    e("s_endpgm")

PX_OFF = 8 << 20
F1_OFF = 16 << 20
F1A_OFF = F1_OFF + (512 << 10)
F2_OFF = 17 << 20
CK_OFF = 18 << 20
WS_BYTES = 20 << 20
WQ_BASE, X_BASE, K_BASE, V_BASE = 0, 49152, 98304, 131072

V_LANE = 1
V_T0, V_T1, V_T2, V_T3 = 2, 3, 4, 5
V_ST = 6
V_OUT = 7
V_AX = 8
V_AW = 12
V_AK = 16
V_AV = 24
V_AO = 28
V_ZERO = 30
V_FX = 32
V_FW = 40
V_ACC = 72
V_S = 136
V_QB = 168
V_KF = 200
V_PB = 168
V_VF = 32
V_M, V_M2, V_SUM, V_SUM2 = 216, 217, 218, 219
V_TOK = 220
V_FA1 = 222
V_FA2 = 223
V_FV = 224
V_FA1A = 226
V_BX = 136
V_BY = 32
V_BZ = 64
V_BW = 96
V_ACC2 = 168
V_FO = 64
V_PR = 72
V_FIN = 112
V_MM = 228
V_RS = 228
NVGPR = 232

S_A, S_B, S_C, S_D = 20, 24, 28, 32
S_H, S_RB = 40, 41
S_HL, S_G4 = 43, 44
S_DRY = 45
S_TMP = 46
S_ROT = 48
S_BASE = 49
S_CNT = 50
S_LO = 51
S_TOK = 52
S_T2 = 54
S_I = 55
S_X0, S_X1 = 56, 57
S_J = 58
S_DEL = 59
S_SK0 = 39

SPIN = int(opt('spin', '200000'))
SIBF = opt('sibflags', 'sc1')


def poll_loop(label, vaddr, srd_reg, flags="sc1", vaddr2=None, mask=255):
    e(f"s_mov_b32 s{S_CNT}, 0")
    e(f"s_mov_b64 exec, {mask}")
    e(f"{label}:")
    if vaddr2 is not None:
        e(f"s_and_b32 s{S_TMP}, s{S_CNT}, 7")
        e(f"s_cmp_eq_u32 s{S_TMP}, 7")
        e(f"s_cbranch_scc1 {label}_B")
    e(f"buffer_load_dwordx2 v[{V_FV}:{V_FV+1}], v{vaddr}, s[{srd_reg}:{srd_reg+3}], 0 offen {flags}")
    if vaddr2 is not None:
        e(f"s_branch {label}_C")
        e(f"{label}_B:")
        e(f"buffer_load_dwordx2 v[{V_FV}:{V_FV+1}], v{vaddr2}, s[{srd_reg}:{srd_reg+3}], 0 offen sc0 sc1")
        e(f"{label}_C:")
    e(f"s_add_u32 s{S_CNT}, s{S_CNT}, 1")
    e("s_waitcnt vmcnt(0)")
    e(f"v_cmp_ne_u64 vcc, s[{S_TOK}:{S_TOK+1}], v[{V_FV}:{V_FV+1}]")
    e(f"s_cmp_gt_u32 s{S_CNT}, {SPIN}")
    e(f"s_cbranch_scc1 {label}_X")
    e("s_nop 2")
    e(f"s_cbranch_vccz {label}_X")
    if opt("psleep", "0") != "0":
        e(f"s_sleep {opt('psleep', '0')}")
    e(f"s_branch {label}")
    e(f"{label}_X:")
    e("s_mov_b64 exec, -1")


def issue8(vbase, srd_reg, soff, flags):
    e(f"s_mov_b32 m0, s{S_LO}")
    e(f"s_add_u32 s{S_TMP+1}, s{S_LO}, 4096")
    for j in range(4):
        e(f"buffer_load_dwordx4 v{vbase+j}, s[{srd_reg}:{srd_reg+3}], s{soff} offen offset:{1024*j} {flags} lds")
    e(f"s_mov_b32 m0, s{S_TMP+1}")
    e("s_nop 0")
    for j in range(4):
        e(f"buffer_load_dwordx4 v{vbase+4+j}, s[{srd_reg}:{srd_reg+3}], s{soff} offen offset:{1024*j} {flags} lds")


def ring_adv(base):
    e(f"s_add_u32 s{S_LO}, s{S_LO}, 8192")
    e(f"s_cmp_eq_u32 s{S_LO}, {base + 49152}")
    e(f"s_cselect_b32 s{S_LO}, {base}, s{S_LO}")


def wo_loader(half, tag):
    e(f"v_lshrrev_b32 v{V_T1}, 3, v{V_LANE}")
    e(f"v_and_b32 v{V_T2}, 7, v{V_LANE}")
    e(f"v_bfe_u32 v{V_T3}, v{V_LANE}, 4, 1")
    e(f"v_lshlrev_b32 v{V_T3}, 2, v{V_T3}")
    e(f"v_xor_b32 v{V_T2}, v{V_T2}, v{V_T3}")
    e(f"v_lshlrev_b32 v{V_T2}, 4, v{V_T2}")
    e(f"v_lshl_add_u32 v24, v{V_T1}, 10, v{V_T2}")
    for i in range(1, 8):
        e(f"v_add_u32 v{24+i}, {8*i*1024 - 1024*(i&3)}, v24")
    srd(S_B, 12, 4 << 20)
    e(f"s_lshl_b32 s{S_BASE}, s{S_G4}, 20")
    e(f"s_lshl_b32 s{S_TMP}, s{S_HL}, 7")
    e(f"s_add_u32 s{S_BASE}, s{S_BASE}, s{S_TMP}")
    if half:
        e(f"s_add_u32 s{S_BASE}, s{S_BASE}, 65536")
    e(f"s_mov_b32 s{S_LO}, {half * 8192}")
    e(f"s_mov_b32 s{S_J}, 0")
    bar()
    bar(True)
    e(f"WO_L{tag}:")
    e(f"s_add_u32 s{S_TMP}, s{S_HL}, s{S_J}")
    e(f"s_and_b32 s{S_TMP}, s{S_TMP}, 7")
    e(f"s_lshl_b32 s{S_TMP}, s{S_TMP}, 17")
    e(f"s_add_u32 s{S_TMP}, s{S_TMP}, s{S_BASE}")
    e(f"s_waitcnt vmcnt({int(opt('wothr', '16'))})")
    issue8(24, S_B, S_TMP, opt("woflags", ""))
    e(f"s_add_u32 s{S_LO}, s{S_LO}, 16384")
    e(f"s_add_u32 s{S_J}, s{S_J}, 1")
    e(f"s_cmp_lg_u32 s{S_J}, 6")
    e(f"s_cbranch_scc1 WO_N{tag}")
    bar(True)
    e(f"WO_N{tag}:")
    e(f"s_cmp_lt_u32 s{S_J}, 8")
    e(f"s_cbranch_scc1 WO_L{tag}")
    e("s_waitcnt vmcnt(0)")
    bar(True)
    lend()


def fused():
    name = KNAME
    NST[0] = 0
    e(".text")
    e(f".globl {name}")
    e(".p2align 8")
    e(f".type {name},@function")
    e(f"{name}:")
    e("s_cmp_ge_u32 s2, 256")
    e("s_cbranch_scc1 F_DONE")
    stamp(True)
    stamp()
    e("s_load_dwordx16 s[4:19], s[0:1], 0")
    e(f"v_and_b32 v{V_LANE}, 63, v0")
    if STAMPS: e("v_mov_b32 v231, 0")
    e(f"v_lshrrev_b32 v{V_T0}, 6, v0")
    e(f"s_and_b32 s{S_G4}, s2, 3")
    e(f"v_readfirstlane_b32 s{S_WV}, v{V_T0}")
    e(f"s_lshr_b32 s{S_I}, s2, 3")
    e(f"s_and_b32 s{S_HL}, s{S_I}, 7")
    e(f"s_lshl_b32 s{S_H}, s{S_G4}, 3")
    e(f"s_add_u32 s{S_H}, s{S_H}, s{S_HL}")
    e(f"s_lshr_b32 s{S_TMP}, s2, 6")
    e(f"s_and_b32 s{S_RB}, s2, 4")
    e(f"s_add_u32 s{S_RB}, s{S_RB}, s{S_TMP}")
    e(f"s_lshl_b32 s{S_ROT}, s{S_TMP}, 1")
    e(f"s_add_u32 s{S_ROT}, s{S_ROT}, s{S_HL}")
    e(f"s_and_b32 s{S_ROT}, s{S_ROT}, 7")
    e(f"s_lshl_b32 s{S_ROT}, s{S_ROT}, 1")
    if opt("rot", "0") == "0":
        e(f"s_mov_b32 s{S_ROT}, 0")
    e(f"s_cmp_lt_u32 s{S_WV}, 4")
    e("s_cbranch_scc1 F_COMPUTE")
    e(f"s_cmp_eq_u32 s{S_WV}, 5")
    e("s_cbranch_scc1 F_LX")
    e(f"s_cmp_gt_u32 s{S_WV}, 5")
    e("s_cbranch_scc1 F_LKV")

    e(f"s_lshl_b32 s{S_BASE}, s{S_H}, 8")
    e(f"v_lshrrev_b32 v{V_T1}, 4, v{V_LANE}")
    e(f"v_and_b32 v{V_T2}, 15, v{V_LANE}")
    e(f"v_lshlrev_b32 v{V_T3}, 2, v{V_T1}")
    e(f"v_xor_b32 v{V_T2}, v{V_T2}, v{V_T3}")
    e(f"v_lshlrev_b32 v{V_T2}, 4, v{V_T2}")
    e(f"v_lshl_add_u32 v8, v{V_T1}, 13, v{V_T2}")
    for j in range(1, 8):
        e(f"v_add_u32 v{8+j}, {(4*j << 13) - 1024*(j & 3)}, v8")
    e(f"s_mov_b32 s{S_LO}, {WQ_BASE}")
    e(f"s_mov_b32 s{S_J}, 0")
    e("s_waitcnt lgkmcnt(0)")
    srd(S_A, 10, 4 << 20)
    DW = int(opt("dw", "3"))
    wqf = opt("wqflags", "")
    def w_issue():
        e(f"s_add_u32 s{S_TMP}, s{S_ROT}, s{S_J}")
        e(f"s_and_b32 s{S_TMP}, s{S_TMP}, 15")
        e(f"s_lshl_b32 s{S_TMP}, s{S_TMP}, 18")
        e(f"s_add_u32 s{S_TMP}, s{S_TMP}, s{S_BASE}")
        issue8(8, S_A, S_TMP, wqf)
        ring_adv(WQ_BASE)
        e(f"s_add_u32 s{S_J}, s{S_J}, 1")
    def ring_loader(tag, issue, D, need_of, free_ok):
        for J in range(D, 16):
            assert free_ok(J, J - D - 1), (tag, J)
        waits = set()
        for J in range(D, 16):
            r = J - D - 1
            waits.add(8 * (J - 1 - need_of(r)))
        w = min(waits)
        e(f"{tag}_L:")
        e(f"s_cmp_lt_u32 s{S_J}, {D}")
        e(f"s_cbranch_scc1 {tag}_I")
        e(f"s_waitcnt vmcnt({w})")
        e("s_barrier")
        e(f"{tag}_I:")
        issue()
        e(f"s_cmp_lt_u32 s{S_J}, 16")
        e(f"s_cbranch_scc1 {tag}_L")
        for r in range(16 - D - 1, 15):
            e(f"s_waitcnt vmcnt({8 * max(0, 15 - need_of(r))})")
            bar(r == 16 - D - 1)
    ring_loader("LW", w_issue, DW, lambda r: r + 1, lambda J, r: J <= max(r - 1, -1) + 6)
    wo_loader(0, "A")

    e("F_LX:")
    e(f"v_lshrrev_b32 v{V_T1}, 3, v{V_LANE}")
    e(f"v_and_b32 v{V_T2}, 7, v{V_LANE}")
    e(f"v_lshrrev_b32 v{V_T3}, 4, v{V_LANE}")
    e(f"v_xor_b32 v{V_T3}, v{V_T3}, v{V_T2}")
    e(f"v_lshlrev_b32 v{V_T3}, 4, v{V_T3}")
    e(f"v_lshl_add_u32 v8, v{V_T1}, 10, v{V_T3}")
    e(f"v_xor_b32 v9, 64, v8")
    e(f"v_add_u32 v9, {8*1024 - 1024}, v9")
    for i in range(2, 8):
        e(f"v_add_u32 v{8+i}, {(8*i*1024 - 1024*(i&3)) - (8*(i&1)*1024 - 1024*(i&1))}, v{8 + (i & 1)}")
    e(f"s_lshl_b32 s{S_BASE}, s{S_RB}, 17")
    e(f"s_mov_b32 s{S_LO}, {X_BASE}")
    e(f"s_mov_b32 s{S_J}, 0")
    e("s_waitcnt lgkmcnt(0)")
    srd(S_A, 4, 1 << 20)
    xf = opt("xflags", "")
    def x_issue():
        e(f"s_add_u32 s{S_TMP}, s{S_ROT}, s{S_J}")
        e(f"s_and_b32 s{S_TMP+1}, s{S_TMP}, 1")
        e(f"s_lshl_b32 s{S_TMP+1}, s{S_TMP+1}, 16")
        e(f"s_and_b32 s{S_TMP}, s{S_TMP}, 14")
        e(f"s_lshl_b32 s{S_TMP}, s{S_TMP}, 6")
        e(f"s_add_u32 s{S_TMP}, s{S_TMP}, s{S_TMP+1}")
        e(f"s_add_u32 s{S_TMP}, s{S_TMP}, s{S_BASE}")
        issue8(8, S_A, S_TMP, xf)
        ring_adv(X_BASE)
        e(f"s_add_u32 s{S_J}, s{S_J}, 1")
    DX = int(opt("dx", "3"))
    ring_loader("LX", x_issue, DX, lambda r: 2 * ((r + 1) >> 1) + 1,
                lambda n, r: (n >> 1) - 3 <= ((r - 2) >> 1 if r >= 2 else -1))
    wo_loader(1, "B")

    e("F_LKV:")
    e(f"v_lshrrev_b32 v{V_T1}, 4, v{V_LANE}")
    e(f"v_and_b32 v{V_T2}, 15, v{V_LANE}")
    e(f"v_lshlrev_b32 v{V_T0}, 8, v{V_T1}")
    e(f"s_lshl_b32 s{S_BASE}, s{S_RB}, 6")
    e(f"s_add_u32 s{S_BASE}, s{S_BASE}, s{S_H}")
    e(f"s_lshl_b32 s{S_BASE}, s{S_BASE}, 14")
    e(f"v_lshlrev_b32 v18, 7, v{V_LANE}")
    e(f"s_mov_b32 s{S_J}, 0")
    e(f"s_mov_b32 s{S_CNT}, 0")
    e(f"s_cmp_eq_u32 s{S_WV}, 7")
    e("s_cbranch_scc1 F_LV")
    kvf = opt("kvflags", "")
    def kv_group(srd_reg, lds_base, vo):
        e(f"s_lshl_b32 s{S_TMP}, s{S_J}, 12")
        e(f"s_add_u32 m0, s{S_TMP}, {lds_base}")
        e(f"s_and_b32 s{S_TMP}, s{S_TMP}, 0x3000")
        e(f"s_lshr_b32 s{S_TMP+1}, s{S_J}, 2")
        e(f"s_lshl_b32 s{S_TMP+1}, s{S_TMP+1}, 19")
        e(f"s_add_u32 s{S_TMP}, s{S_TMP}, s{S_TMP+1}")
        e(f"s_add_u32 s{S_TMP}, s{S_TMP}, s{S_BASE}")
        for j in range(4):
            e(f"buffer_load_dwordx4 v{vo(j)}, s[{srd_reg}:{srd_reg+3}], s{S_TMP} offen offset:{1024*j} {kvf} lds")
        e(f"s_add_u32 s{S_J}, s{S_J}, 1")
    for j in range(4):
        e(f"v_add_u32 v{V_T3}, {4*j}, v{V_T1}")
        e(f"v_xor_b32 v{V_T3}, v{V_T3}, v{V_T2}")
        e(f"v_lshl_add_u32 v{8+j}, v{V_T3}, 4, v{V_T0}")
    e("s_waitcnt lgkmcnt(0)")
    srd(S_A, 6, 8 << 20)
    SG0 = int(opt("sg0", "2")); SGS = int(opt("sgs", "4")); SGM = int(opt("sgm", "3")); SGH = int(opt("sgh", "0"))
    def slot_calc(extra):
        e(f"s_lshr_b32 s{S_X0}, s{S_I}, {SGH}")
        e(f"s_and_b32 s{S_X0}, s{S_X0}, {SGM}")
        e(f"s_mul_i32 s{S_X0}, s{S_X0}, {SGS}")
        e(f"s_add_u32 s{S_X0}, s{S_X0}, {SG0 + extra}")
    def burst_loop(tag, body, nbar, extra=None):
        e(f"{tag}_L:")
        if extra:
            e(f"s_cmp_lg_u32 s{S_CNT}, s{S_X1}")
            e(f"s_cbranch_scc1 {tag}_E")
            extra()
            e(f"{tag}_E:")
        e(f"s_cmp_lg_u32 s{S_CNT}, s{S_X0}")
        e(f"s_cbranch_scc1 {tag}_S")
        e(f"{tag}_G:")
        body()
        e(f"s_cmp_lt_u32 s{S_J}, 8")
        e(f"s_cbranch_scc1 {tag}_G")
        e(f"{tag}_S:")
        e("s_barrier")
        e(f"s_add_u32 s{S_CNT}, s{S_CNT}, 1")
        e(f"s_cmp_lt_u32 s{S_CNT}, {nbar}")
        e(f"s_cbranch_scc1 {tag}_L")
    assert SG0 + SGS * SGM + int(opt("vex", "0")) <= 15
    slot_calc(0)
    PF = opt("pf", "1") == "1"
    xw_pf = None
    if PF:
        PC0 = int(opt("pc0", "2")); PLEAD = int(opt("plead", "4"))
        srd(S_B, 4, 1 << 20)
        srd(S_C, 10, 4 << 20)
        e(f"v_lshlrev_b32 v16, 10, v{V_LANE}")
        e(f"v_lshlrev_b32 v17, 13, v{V_T1}")
        e(f"v_lshl_add_u32 v17, v{V_T2}, 7, v17")
        e(f"s_lshr_b32 s36, s{S_I}, 2")
        e(f"s_and_b32 s37, s{S_I}, 3")
        e(f"s_max_u32 s{S_X1}, s36, {PLEAD}")
        e(f"s_sub_u32 s{S_X1}, s{S_X1}, {PLEAD}")
        e(f"s_lshl_b32 s{S_X1}, s{S_X1}, 1")
        e(f"s_cmp_lt_u32 s36, {PC0}")
        e(f"s_cselect_b32 s{S_X1}, 99, s{S_X1}")
        e(f"s_and_b32 s38, s2, 4")
        e(f"s_add_u32 s38, s38, s37")
        e(f"s_lshl_b32 s38, s38, 17")
        e(f"s_lshl_b32 s{S_TMP}, s36, 7")
        e(f"s_add_u32 s38, s38, s{S_TMP}")
        e(f"s_lshl_b32 s39, s{S_I}, 17")
        e(f"s_lshl_b32 s{S_TMP}, s{S_G4}, 11")
        e(f"s_add_u32 s39, s39, s{S_TMP}")
        def xw_pf():
            e(f"buffer_load_dword v20, v16, s[{S_B}:{S_B+3}], s38 offen")
            e(f"s_add_u32 s38, s38, 65536")
            e(f"buffer_load_dword v20, v16, s[{S_B}:{S_B+3}], s38 offen")
            for _ in range(4):
                e(f"buffer_load_dword v21, v17, s[{S_C}:{S_C+3}], s39 offen")
                e(f"s_add_u32 s39, s39, 32768")
    burst_loop("LK", lambda: kv_group(S_A, K_BASE, lambda j: 8 + j), 16, xw_pf)
    e("s_waitcnt vmcnt(0)")
    bar(True)
    lend(3)

    e("F_LV:")
    if opt("cpf", "0") == "1":
        e(f"s_cmp_ge_u32 s{S_I}, {opt('cpfn', '2')}")
        e("s_cbranch_scc1 F_NOCPF")
        e("s_getpc_b64 s[36:37]")
        e("F_PCREF:")
        e(f"s_sub_u32 s36, s36, F_PCREF-{KNAME}")
        e("s_subb_u32 s37, s37, 0")
        e(f"s_mov_b32 s38, F_DONE-{KNAME}")
        for i in range(2):
            e(f"v_add_u32 v29, {8192*i}, v18")
            e("v_min_u32 v29, s38, v29")
            e("v_mov_b32 v31, s37")
            e("v_add_co_u32 v30, vcc, s36, v29")
            e("s_nop 1")
            e("v_addc_co_u32 v31, vcc, 0, v31, vcc")
            e(f"global_load_dword v{32+i}, v[30:31], off")
        e("F_NOCPF:")
    e(f"v_lshlrev_b32 v{V_T3}, 2, v{V_T1}")
    e(f"v_xor_b32 v{V_T3}, v{V_T3}, v{V_T2}")
    e(f"v_lshl_add_u32 v8, v{V_T3}, 4, v{V_T0}")
    e(f"s_memrealtime s[{S_TOK}:{S_TOK+1}]")
    e("s_waitcnt lgkmcnt(0)")
    srd(S_A, 8, 8 << 20)
    srd(S_D, 12, 4 << 20)
    e("s_cmp_lg_u32 s2, 0")
    e("s_cbranch_scc1 F_NOTOK")
    srd(S_B, 16, 256)
    e(f"s_or_b32 s{S_TOK}, s{S_TOK}, 1")
    e(f"v_mov_b32 v10, s{S_TOK}")
    e(f"v_mov_b32 v11, s{S_TOK+1}")
    e("v_mov_b32 v12, 0")
    e(f"buffer_store_dwordx2 v[10:11], v12, s[{S_B}:{S_B+3}], 0 offen sc0 sc1")
    e("F_NOTOK:")
    if opt("tlbw", "0") == "1":
        tf = opt("tlbflags", "sc0 sc1")
        srd(S_B, 6, 8 << 20)
        srd(S_C, 18, WS_BYTES)
        e(f"v_lshlrev_b32 v24, 19, v{V_LANE}")
        e(f"v_lshlrev_b32 v25, 20, v{V_LANE}")
        e("s_mov_b64 exec, 3")
        e(f"buffer_load_dword v26, v24, s[{S_B}:{S_B+3}], s{S_BASE} offen {tf}")
        e(f"buffer_load_dword v26, v24, s[{S_A}:{S_A+3}], s{S_BASE} offen {tf}")
        e(f"s_lshl_b32 s{S_TMP}, s{S_G4}, 20")
        e(f"buffer_load_dword v26, v24, s[{S_D}:{S_D+3}], s{S_TMP} offen {tf}")
        e("s_mov_b64 exec, 0x3ffff")
        e(f"buffer_load_dword v26, v25, s[{S_C}:{S_C+3}], 0 offen {tf}")
        srd(S_B, 14, 1 << 20)
        srd(S_C, 16, 256)
        e("s_mov_b64 exec, 1")
        e(f"buffer_load_dword v26, v25, s[{S_B}:{S_B+3}], 0 offen {tf}")
        e(f"buffer_load_dword v26, v25, s[{S_C}:{S_C+3}], 0 offen offset:128 {tf}")
        e("s_mov_b64 exec, -1")
    slot_calc(int(opt("vex", "0")))
    burst_loop("LV", lambda: kv_group(S_A, V_BASE, lambda j: 8), 16)
    done = 16
    pof = opt("poflags", "")
    npf = 0
    if opt("wopf", "1") == "1":
        e(f"s_lshl_b32 s{S_TMP}, s{S_G4}, 20")
        e(f"s_lshl_b32 s{S_TMP+1}, s{S_I}, 15")
        e(f"s_add_u32 s{S_TMP}, s{S_TMP}, s{S_TMP+1}")
        for qq in range(4):
            if qq: e(f"s_add_u32 s{S_TMP}, s{S_TMP}, 8192")
            e(f"buffer_load_dword v23, v18, s[{S_D}:{S_D+3}], s{S_TMP} offen {pof}")
        npf = 4
    assert done <= 17
    for _ in range(17 - done):
        e("s_barrier")
    e(f"s_waitcnt vmcnt({npf})")
    bar(True)
    lend(2)

    e("F_COMPUTE:")
    if opt("prio", "0") != "0":
        e(f"s_setprio {opt('prio', '0')}")
    e(f"v_and_b32 v{V_T1}, 31, v{V_LANE}")
    e(f"v_bfe_u32 v{V_T2}, v{V_T1}, 1, 3")
    e(f"v_lshrrev_b32 v{V_T3}, 5, v{V_LANE}")
    e(f"v_xor_b32 v{V_T2}, v{V_T2}, v{V_T3}")
    e(f"v_lshlrev_b32 v{V_T2}, 4, v{V_T2}")
    e(f"v_lshl_add_u32 v{V_T1}, v{V_T0}, 5, v{V_T1}")
    e(f"v_lshl_add_u32 v{V_T1}, v{V_T1}, 7, v{V_T2}")
    e(f"v_add_u32 v{V_T1}, {X_BASE}, v{V_T1}")
    for s in range(4):
        e(f"v_xor_b32 v{V_AX+s}, {32*s}, v{V_T1}")
    e(f"v_bfe_u32 v{V_T1}, v{V_LANE}, 2, 2")
    e(f"v_bfe_u32 v{V_T2}, v{V_LANE}, 4, 1")
    e(f"v_lshlrev_b32 v{V_T2}, 2, v{V_T2}")
    e(f"v_and_b32 v{V_T3}, 1, v{V_LANE}")
    e(f"v_lshl_or_b32 v{V_T2}, v{V_T3}, 1, v{V_T2}")
    e(f"v_bfe_u32 v{V_T3}, v{V_LANE}, 1, 1")
    e(f"v_or_b32 v{V_T2}, v{V_T2}, v{V_T3}")
    e(f"v_lshlrev_b32 v{V_T2}, 3, v{V_T2}")
    e(f"v_lshrrev_b32 v{V_T3}, 5, v{V_LANE}")
    e(f"v_lshl_add_u32 v{V_AO}, v{V_T1}, 7, v{V_T2}")
    e(f"v_lshl_add_u32 v{V_AO}, v{V_T3}, 10, v{V_AO}")
    e(f"v_bfe_u32 v{V_AO+1}, v{V_LANE}, 3, 1")
    e(f"v_lshl_add_u32 v{V_AO}, v{V_AO+1}, 6, v{V_AO}")
    e(f"v_xor_b32 v{V_AO+1}, 64, v{V_AO}")
    e(f"v_lshl_add_u32 v{V_T2}, v{V_T1}, 8, v{V_T2}")
    e(f"v_lshl_add_u32 v{V_T2}, v{V_T1}, 6, v{V_T2}")
    for T in range(4):
        e(f"v_xor_b32 v{V_AV+T}, {64*T}, v{V_T2}")
        e(f"v_lshl_add_u32 v{V_AW+T}, v{V_T3}, 11, v{V_AV+T}")
    e(f"v_lshrrev_b32 v{V_T0}, 7, v0")
    e(f"v_and_b32 v{V_T1}, 31, v{V_LANE}")
    e(f"v_and_b32 v{V_T2}, 15, v{V_LANE}")
    e(f"v_xor_b32 v{V_T2}, v{V_T2}, v{V_T3}")
    e(f"v_lshlrev_b32 v{V_T2}, 4, v{V_T2}")
    e(f"v_lshl_add_u32 v{V_T2}, v{V_T1}, 8, v{V_T2}")
    e(f"v_lshl_add_u32 v{V_T2}, v{V_T0}, 14, v{V_T2}")
    e(f"v_add_u32 v{V_T2}, {K_BASE}, v{V_T2}")
    for s in range(8):
        e(f"v_xor_b32 v{V_AK+s}, {32*s}, v{V_T2}")
    e(f"v_lshlrev_b32 v{V_T0}, 14, v{V_T0}")
    e(f"v_lshl_add_u32 v{V_T0}, v{V_T3}, 10, v{V_T0}")
    e(f"v_add_u32 v{V_T0}, {V_BASE}, v{V_T0}")
    for T in range(4):
        e(f"v_add_u32 v{V_AV+T}, v{V_AV+T}, v{V_T0}")
    e(f"v_lshlrev_b32 v{V_ST}, 4, v{V_LANE}")
    e(f"v_lshrrev_b32 v{V_T0}, 6, v0")
    e(f"v_lshl_add_u32 v{V_T0}, v{V_T0}, 5, v{V_T1}")
    e(f"v_lshlrev_b32 v{V_T0}, 10, v{V_T0}")
    e(f"v_lshl_add_u32 v{V_OUT}, v{V_T3}, 4, v{V_T0}")
    e(f"v_and_b32 v{V_T0}, 7, v{V_LANE}")
    e(f"s_andn2_b32 s{S_TMP}, s2, 0x38")
    e(f"s_lshl_b32 s{S_TMP}, s{S_TMP}, 2")
    e(f"s_add_u32 s{S_TMP}, s{S_TMP}, s{S_WV}")
    e(f"s_lshl_b32 s{S_X0}, s{S_TMP}, 13")
    e(f"s_lshl_b32 s{S_TMP}, s{S_TMP}, 6")
    e(f"s_add_u32 s{S_TMP}, s{S_TMP}, {F1_OFF}")
    e(f"v_lshlrev_b32 v{V_T0}, 11, v{V_T0}")
    e(f"v_add_u32 v{V_FA1}, s{S_TMP}, v{V_T0}")
    e(f"v_add_u32 v{V_FA1A}, {F1A_OFF - F1_OFF}, v{V_FA1}")
    e(f"v_and_b32 v{V_T0}, 3, v{V_LANE}")
    e(f"s_andn2_b32 s{S_TMP}, s2, 3")
    e(f"s_lshl_b32 s{S_TMP}, s{S_TMP}, 2")
    e(f"s_add_u32 s{S_TMP}, s{S_TMP}, s{S_WV}")
    e(f"s_lshl_b32 s{S_TMP}, s{S_TMP}, 6")
    e(f"s_add_u32 s{S_TMP}, s{S_TMP}, {F2_OFF}")
    e(f"v_lshlrev_b32 v{V_T0}, 8, v{V_T0}")
    e(f"v_add_u32 v{V_FA2}, s{S_TMP}, v{V_T0}")
    e(f"v_mov_b32 v{V_ZERO}, 0")
    e(f"s_lshl_b32 s{S_TMP}, s2, 2")
    e(f"s_add_u32 s{S_TMP}, s{S_TMP}, s{S_WV}")
    e(f"s_lshl_b32 s{S_T2}, s{S_TMP}, 6")
    e(f"s_lshl_b32 s{S_X1}, s{S_TMP}, 13")
    e("s_waitcnt lgkmcnt(0)")
    srd(S_A, 18, WS_BYTES)
    srd(S_B, 16, 256)
    srd(S_C, 14, 1 << 20)
    DRY = opt("dry", "0") == "1"
    if DRY:
        e(f"s_mov_b32 s{S_DRY}, 1")
        e(f"s_mov_b32 s{S_SK0}, 6")
        e("s_mov_b32 s36, 0x40000000")
        e(f"v_mov_b32 v{V_T1}, 0")
        e(f"s_mov_b32 s{S_J}, 6")
        e("s_mov_b64 exec, 0")
        e(f"s_cmp_eq_u32 s{S_WV}, 0")
        e("s_cbranch_scc1 F_ATT")
        e(f"s_cmp_eq_u32 s{S_WV}, 1")
        e("s_cbranch_scc1 F_SEG1")
        e(f"s_cmp_eq_u32 s{S_WV}, 2")
        e("s_cbranch_scc1 F_SEG2")
        e("s_branch P2_L")
        e("F_REAL:")
        e("s_mov_b64 exec, -1")
        e("s_waitcnt lgkmcnt(0)")
        e("s_nop 7")
        e("s_nop 7")
    e(f"s_mov_b32 s{S_DRY}, 0")
    e(f"s_mov_b32 s{S_SK0}, 0")
    for i in range(64):
        e(f"v_mov_b32 v{V_ACC+i}, 0")

    def rd_x(s, buf):
        e(f"ds_read_b128 v[{V_FX+4*buf}:{V_FX+4*buf+3}], v{V_AX+s}")
    def rd_w(p, buf, T):
        off = p * 4096
        r = V_FW + 16 * buf + 4 * T
        e(f"ds_read_b64_tr_b16 v[{r}:{r+1}], v{V_AW+T} offset:{off}")
        e(f"ds_read_b64_tr_b16 v[{r+2}:{r+3}], v{V_AW+T} offset:{off + 1024}")

    bar(True)
    rd_x(0, 0)
    for T in range(4):
        rd_w(0, 0, T)
    e(f"s_mov_b32 s{S_CNT}, 0")
    e(f"s_mov_b32 s{S_LO}, 0")
    e("s_mov_b32 s60, -32768")
    e("s_mov_b32 s61, 16384")
    if STAMPS:
        e("v_mov_b32 v231, 0")
        e("s_mov_b32 s96, 0")
    e("QP_L:")
    if STAMPS:
        e(f"s_mov_b32 m0, s{S_CNT}")
        e("s_nop 0")
        e(f"v_writelane_b32 v231, s96, m0")
        e("s_memtime s[96:97]")
    e(f"s_add_u32 s{S_LO}, s{S_LO}, 16384")
    e(f"s_cmp_eq_u32 s{S_LO}, 49152")
    e(f"s_cselect_b32 s{S_DEL}, s60, s61")
    e(f"s_cselect_b32 s{S_LO}, 0, s{S_LO}")
    for p in range(4):
        buf = p & 1
        nb = buf ^ 1
        if p & 1:
            e("s_barrier")
        for T in range(4):
            nxt = 0 if T == 0 else 1 + 2 * T
            e(f"s_waitcnt lgkmcnt({2*(3-T) + nxt})")
            a = V_FW + 16 * buf + 4 * T
            b = V_FX + 4 * buf
            acc = V_ACC + 16 * T
            e(f"v_mfma_f32_32x32x16_bf16 v[{acc}:{acc+15}], v[{a}:{a+3}], v[{b}:{b+3}], v[{acc}:{acc+15}]")
            if T == 0:
                rd_x((p + 1) & 3, nb)
            rd_w((p + 1) & 3, nb, T)
            if p == 2:
                e(f"v_add_u32 v{V_AW+T}, s{S_DEL}, v{V_AW+T}")
            if p == 0 and T == 1:
                e(f"v_add_u32 v{V_AX}, s{S_DEL}, v{V_AX}")
            if p == 3 and T >= 1:
                e(f"v_add_u32 v{V_AX+T}, s{S_DEL}, v{V_AX+T}")
    e(f"s_add_u32 s{S_CNT}, s{S_CNT}, 1")
    e(f"s_cmp_lt_u32 s{S_CNT}, 8")
    e("s_cbranch_scc1 QP_L")
    e("s_waitcnt lgkmcnt(0)")
    bar(True)

    e("F_ATT:")
    def dry_exit():
        if DRY:
            e(f"s_cmp_eq_u32 s{S_DRY}, 1")
            e("s_cbranch_scc1 F_REAL")
    def rd_k(i):
        t, s_ = i // 8, i % 8
        r = V_KF + 4 * (i % 4)
        e(f"ds_read_b128 v[{r}:{r+3}], v{V_AK+s_} offset:{8192*t}")
    def cvt_q(s_, lo, hi):
        for qq in range(lo, hi):
            a = V_ACC + 8 * s_ + 2 * qq
            e(f"v_cvt_pk_bf16_f32 v{V_QB + 4*s_ + qq}, v{a}, v{a+1}")
    for i in range(4):
        rd_k(i)
    e(f"s_mov_b32 s{S_TMP}, 0x3e0293ee")
    e(f"s_mov_b32 s{S_TMP+1}, 0x3e0293ee")
    e("s_nop 7")
    cvt_q(0, 0, 4)
    cvt_q(1, 0, 2)
    for i in range(16):
        t, s_ = i // 8, i % 8
        r = V_KF + 4 * (i % 4)
        rem = min(3, 15 - i)
        e(f"s_waitcnt lgkmcnt({rem})")
        acc = V_S + 16 * t
        cc = "0" if s_ == 0 else f"v[{acc}:{acc+15}]"
        b = V_QB + 4 * s_
        e(f"v_mfma_f32_32x32x16_bf16 v[{acc}:{acc+15}], v[{r}:{r+3}], v[{b}:{b+3}], {cc}")
        if i + 4 < 16:
            rd_k(i + 4)
        if i < 7:
            cvt_q(i + 1, 2, 4)
            if i + 2 < 8:
                cvt_q(i + 2, 0, 2)
            else:
                e("s_nop 1")
        if i == 12:
            e(f"v_max3_f32 v{V_M}, v{V_S}, v{V_S+1}, v{V_S+2}")
            e(f"v_max3_f32 v{V_M2}, v{V_S+3}, v{V_S+4}, v{V_S+5}")
        if i == 13:
            e(f"v_max3_f32 v{V_M}, v{V_M}, v{V_S+6}, v{V_S+7}")
            e(f"v_max3_f32 v{V_M2}, v{V_M2}, v{V_S+8}, v{V_S+9}")
        if i == 14:
            e(f"v_max3_f32 v{V_M}, v{V_M}, v{V_S+10}, v{V_S+11}")
            e(f"v_max3_f32 v{V_M2}, v{V_M2}, v{V_S+12}, v{V_S+13}")
        if i == 15:
            e(f"v_max3_f32 v{V_M}, v{V_M}, v{V_S+14}, v{V_S+15}")
    dry_exit()
    stamp()
    e("F_SEG1:")
    def rd_v(u, buf):
        for T in range(4):
            r = V_VF + 16 * buf + 4 * T
            e(f"ds_read_b64_tr_b16 v[{r}:{r+1}], v{V_AV+T} offset:{u*4096}")
            e(f"ds_read_b64_tr_b16 v[{r+2}:{r+3}], v{V_AV+T} offset:{u*4096+2048}")
    if opt("tmaj", "0") == "1":
        for u in range(4):
            r = V_VF + 4 * u
            e(f"ds_read_b64_tr_b16 v[{r}:{r+1}], v{V_AV} offset:{u*4096}")
            e(f"ds_read_b64_tr_b16 v[{r+2}:{r+3}], v{V_AV} offset:{u*4096+2048}")
    else:
        rd_v(0, 0)
    e("s_nop 5")
    for i in range(16, 32, 4):
        e(f"v_max3_f32 v{V_M}, v{V_M}, v{V_S+i}, v{V_S+i+1}")
        e(f"v_max3_f32 v{V_M2}, v{V_M2}, v{V_S+i+2}, v{V_S+i+3}")
    e(f"v_max_f32 v{V_M}, v{V_M}, v{V_M2}")
    e(f"v_mov_b32 v{V_M2}, v{V_M}")
    e("s_nop 1")
    e(f"v_permlane32_swap_b32 v{V_M}, v{V_M2}")
    e("s_nop 1")
    e(f"v_max_f32 v{V_M}, v{V_M}, v{V_M2}")
    e(f"v_mul_f32 v{V_M}, s{S_TMP}, v{V_M}")
    def sm_group(u):
        o = []
        for i in range(8 * u, 8 * u + 8):
            o.append(f"v_fma_f32 v{V_S+i}, v{V_S+i}, s{S_TMP}, -v{V_M}")
        for i in range(8 * u, 8 * u + 8):
            o.append(f"v_exp_f32 v{V_S+i}, v{V_S+i}")
        o.append("s_nop 0")
        for i in range(4):
            o.append(f"v_cvt_pk_bf16_f32 v{V_PB+4*u+i}, v{V_S+8*u+2*i}, v{V_S+8*u+2*i+1}")
        return o
    def sum_group(u):
        o = []
        b = V_S + 8 * u
        if u == 0:
            o.append(f"v_add_f32 v{V_SUM}, v{b}, v{b+1}")
            o.append(f"v_add_f32 v{V_SUM2}, v{b+2}, v{b+3}")
            rest = range(4, 8, 2)
        else:
            rest = range(0, 8, 2)
        for i in rest:
            o.append(f"v_add_f32 v{V_SUM}, v{V_SUM}, v{b+i}")
            o.append(f"v_add_f32 v{V_SUM2}, v{V_SUM2}, v{b+i+1}")
        return o
    if opt("tmaj", "0") == "1":
        def rd_vT(T, buf):
            for u in range(4):
                r = V_VF + 16 * buf + 4 * u
                e(f"ds_read_b64_tr_b16 v[{r}:{r+1}], v{V_AV+T} offset:{u*4096}")
                e(f"ds_read_b64_tr_b16 v[{r+2}:{r+3}], v{V_AV+T} offset:{u*4096+2048}")
        for u in range(4):
            for x in sm_group(u): e(x)
            for x in sum_group(u): e(x)
        for x in [f"v_add_f32 v{V_SUM}, v{V_SUM}, v{V_SUM2}", f"v_mov_b32 v{V_SUM2}, v{V_SUM}", "s_nop 1",
                  f"v_permlane32_swap_b32 v{V_SUM}, v{V_SUM2}", "s_nop 1",
                  f"v_add_f32 v{V_SUM}, v{V_SUM}, v{V_SUM2}", f"v_rcp_f32 v{V_RS}, v{V_SUM}", "s_nop 0",
                  f"v_mov_b32 v{V_RS+1}, v{V_RS}"]:
            e(x)
        e(f"s_add_u32 s{S_TMP+1}, s{S_X1}, 4096")
        def fin_tile(T):
            o = []
            for ks in (2 * T, 2 * T + 1):
                a = V_ACC + 8 * ks
                d = V_BX + 4 * ks
                for i in range(4):
                    o.append(f"v_pk_mul_f32 v[{a+2*i}:{a+2*i+1}], v[{a+2*i}:{a+2*i+1}], v[{V_RS}:{V_RS+1}]")
                for i in range(4):
                    o.append(f"v_cvt_pk_bf16_f32 v{d+i}, v{a+2*i}, v{a+2*i+1}")
                so = S_X1 if ks < 4 else S_TMP + 1
                o.append(f"buffer_store_dwordx4 v[{d}:{d+3}], v{V_ST}, s[{S_A}:{S_A+3}], s{so} offen offset:{1024*(ks&3)} sc1")
            return o
        for T in range(4):
            buf = T & 1
            e("s_waitcnt lgkmcnt(0)")
            fill = fin_tile(T - 1) if T >= 1 else []
            for u in range(4):
                a = V_VF + 16 * buf + 4 * u
                b = V_PB + 4 * u
                acc = V_ACC + 16 * T
                cc = "0" if u == 0 else f"v[{acc}:{acc+15}]"
                e(f"v_mfma_f32_32x32x16_bf16 v[{acc}:{acc+15}], v[{a}:{a+3}], v[{b}:{b+3}], {cc}")
                if u == 0:
                    if T + 1 < 4:
                        rd_vT(T + 1, buf ^ 1)
                    else:
                        e("s_nop 7")
                    e("s_nop 1")
                elif fill:
                    n = 6
                    for x in fill[(u - 1) * n:u * n]:
                        e(x)
        e("s_nop 7")
        e("s_nop 3")
        for x in fin_tile(3): e(x)
        for i in range(8):
            e(f"v_mov_b32 v{V_ACC2+24+i}, 0")
        stamp()
    else:
        for x in sm_group(0): e(x)
        e("s_nop 0")
        for u in range(4):
            buf = u & 1
            if u == 2:
                dry_exit()
                e("F_SEG2:")
            e("s_waitcnt lgkmcnt(0)")
            fill = []
            if u + 1 < 4:
                fill = sm_group(u + 1) + sum_group(u)
            else:
                fill = sum_group(u) + [f"v_add_f32 v{V_SUM}, v{V_SUM}, v{V_SUM2}", f"v_mov_b32 v{V_SUM2}, v{V_SUM}", "s_nop 1",
                                       f"v_permlane32_swap_b32 v{V_SUM}, v{V_SUM2}", "s_nop 1",
                                       f"v_add_f32 v{V_SUM}, v{V_SUM}, v{V_SUM2}", f"v_rcp_f32 v{V_RS}, v{V_SUM}", "s_nop 0",
                                       f"v_mov_b32 v{V_RS+1}, v{V_RS}"]
            per = (len(fill) + 3) // 4
            for T in range(4):
                a = V_VF + 16 * buf + 4 * T
                b = V_PB + 4 * u
                acc = V_ACC + 16 * T
                cc = "0" if u == 0 else f"v[{acc}:{acc+15}]"
                e(f"v_mfma_f32_32x32x16_bf16 v[{acc}:{acc+15}], v[{a}:{a+3}], v[{b}:{b+3}], {cc}")
                if T == 0 and u + 1 < 4:
                    rd_v(u + 1, buf ^ 1)
                for x in fill[T * per:(T + 1) * per]:
                    e(x)
            if u + 1 < 4:
                e("s_nop 1")
        e("s_nop 3")
        for i in range(8):
            e(f"v_mov_b32 v{V_ACC2+24+i}, 0")
        for ks in range(8):
            a = V_ACC + 8 * ks
            d = V_BX + 4 * ks
            for i in range(4):
                e(f"v_pk_mul_f32 v[{a+2*i}:{a+2*i+1}], v[{a+2*i}:{a+2*i+1}], v[{V_RS}:{V_RS+1}]")
            for i in range(4):
                e(f"v_cvt_pk_bf16_f32 v{d+i}, v{a+2*i}, v{a+2*i+1}")
        dry_exit()
        stamp()
        if int(opt("xdel", "0")):
            nd = int(opt("xdel", "0"))
            e(f"s_lshr_b32 s{S_TMP}, s2, {opt('xsh', '7')}")
            e(f"s_mul_i32 s{S_TMP}, s{S_TMP}, {nd}")
            e("XD_L:")
            e(f"s_cmp_eq_u32 s{S_TMP}, 0")
            e("s_cbranch_scc1 XD_X")
            e("s_sleep 2")
            e(f"s_sub_u32 s{S_TMP}, s{S_TMP}, 1")
            e("s_branch XD_L")
            e("XD_X:")
        e(f"s_add_u32 s{S_TMP+1}, s{S_X1}, 4096")
        for ks in range(8):
            d = V_BX + 4 * ks
            so = S_X1 if ks < 4 else S_TMP + 1
            e(f"buffer_store_dwordx4 v[{d}:{d+3}], v{V_ST}, s[{S_A}:{S_A+3}], s{so} offen offset:{1024*(ks&3)} sc1")
    e(f"s_mov_b32 s{S_CNT}, 0")
    bar()
    for i in range(24):
        e(f"v_mov_b32 v{V_ACC2+i}, 0")
    e("s_mov_b64 exec, 1")
    e("F_TOKL:")
    e(f"buffer_load_dwordx2 v[{V_TOK}:{V_TOK+1}], v{V_ZERO}, s[{S_B}:{S_B+3}], 0 offen sc0 sc1")
    e("s_waitcnt vmcnt(0)")
    e(f"v_readfirstlane_b32 s{S_TOK}, v{V_TOK}")
    e(f"v_readfirstlane_b32 s{S_TOK+1}, v{V_TOK+1}")
    e(f"s_add_u32 s{S_CNT}, s{S_CNT}, 1")
    e(f"s_cmp_gt_u32 s{S_CNT}, {SPIN}")
    e("s_cbranch_scc1 F_TOKX")
    e(f"s_cmp_eq_u32 s{S_TOK}, 0")
    e("s_cbranch_scc1 F_TOKL")
    e("F_TOKX:")
    stamp()
    e(f"s_add_u32 s{S_TMP}, s{S_T2}, {F1_OFF}")
    e(f"s_add_u32 s{S_TMP+1}, s{S_T2}, {F1A_OFF}")
    e("s_mov_b64 exec, 1")
    e(f"buffer_store_dwordx2 v[{V_TOK}:{V_TOK+1}], v{V_ZERO}, s[{S_A}:{S_A+3}], s{S_TMP+1} offen")
    e(f"buffer_store_dwordx2 v[{V_TOK}:{V_TOK+1}], v{V_ZERO}, s[{S_A}:{S_A+3}], s{S_TMP} offen sc1")
    e("s_mov_b64 exec, -1")
    if opt("opf", "0") == "1":
        e(f"v_lshlrev_b32 v{V_T2}, 7, v{V_LANE}")
        e(f"buffer_load_dword v{V_T3}, v{V_T2}, s[{S_A}:{S_A+3}], s{S_X1} offen {opt('opfflags', '')}")
    bar()
    poll_loop("F_P1", V_FA1A, S_A, "sc1", V_FA1)
    stamp()

    D = int(opt("p2d", "12"))
    def slot_reg(sl):
        return (V_BX if sl < 8 else V_BY) + 4 * (sl & 7)
    def blk_base(sreg, jadd):
        e(f"s_add_u32 s{sreg}, s{S_HL}, s{S_J}")
        e(f"s_add_u32 s{sreg}, s{sreg}, {jadd}")
        e(f"s_and_b32 s{sreg}, s{sreg}, 7")
        e(f"s_lshl_b32 s{sreg}, s{sreg}, 18")
        e(f"s_add_u32 s{sreg}, s{sreg}, s{S_X0}")
        if jadd >= 2:
            e(f"s_cmp_ge_u32 s{S_J}, 6")
            e(f"s_cselect_b32 s{sreg}, 0x40000000, s{sreg}")
    def ld(sl, sreg, ks):
        b = slot_reg(sl)
        vo = V_ST if ks < 4 else V_T1
        e(f"buffer_load_dwordx4 v[{b}:{b+3}], v{vo}, s[{S_A}:{S_A+3}], s{sreg} offen offset:{1024*(ks&3)} {SIBF}")
    def rd_o(step, buf):
        off = step * 2048
        for T in range(2):
            r = V_FO + 8 * buf + 4 * T
            e(f"ds_read_b64_tr_b16 v[{r}:{r+1}], v{V_AO+T} offset:{off}")
            e(f"ds_read_b64_tr_b16 v[{r+2}:{r+3}], v{V_AO+T} offset:{off + 512}")
    SB = (36, 37, 38)
    e(f"s_mov_b32 s{S_J}, 0")
    e(f"v_add_u32 v{V_T1}, 4096, v{V_ST}")
    blk_base(SB[0], 1)
    for ks in range(D - 8):
        ld(8 + ks, SB[0], ks)
    PD = int(opt("pd", "3"))
    for i in range(PD):
        rd_o(i, i)
    e("P2_L:")
    blk_base(SB[1], 2)
    blk_base(SB[2], 3)
    LA = D
    def rd_o1(step, buf, T):
        off = step * 2048
        r = V_FO + 8 * buf + 4 * T
        e(f"ds_read_b64_tr_b16 v[{r}:{r+1}], v{V_AO+T} offset:{off}")
        e(f"ds_read_b64_tr_b16 v[{r+2}:{r+3}], v{V_AO+T} offset:{off + 512}")
    for l in range(16):
        buf = l & 3
        e(f"s_waitcnt vmcnt({LA - 1}) lgkmcnt({4 * (PD - 1)})")
        for T in range(2):
            a = V_FO + 8 * buf + 4 * T
            b = slot_reg(l)
            acc = V_ACC2 + 16 * T
            e(f"v_mfma_f32_32x32x16_bf16 v[{acc}:{acc+15}], v[{a}:{a+3}], v[{b}:{b+3}], v[{acc}:{acc+15}]")
            rd_o1(l + PD, (l + PD) & 3, T)
            if T == 0:
                e(f"__LOAD{l}__")
    e(f"v_add_u32 v{V_AO}, 0x8000, v{V_AO}")
    e(f"v_add_u32 v{V_AO+1}, 0x8000, v{V_AO+1}")
    e(f"s_mov_b32 s{SB[0]}, s{SB[2]}")
    e(f"s_add_u32 s{S_J}, s{S_J}, 2")
    e(f"s_cmp_lt_u32 s{S_J}, 8")
    e("s_cbranch_scc1 P2_L")
    if DRY:
        e(f"s_cmp_eq_u32 s{S_DRY}, 0")
        e("s_cbranch_scc1 F_X2")
        e(f"v_subrev_u32 v{V_AO}, 0x8000, v{V_AO}")
        e(f"v_subrev_u32 v{V_AO+1}, 0x8000, v{V_AO+1}")
        e("s_branch F_REAL")
        e("F_X2:")
    e("s_waitcnt lgkmcnt(0)")
    e("s_nop 7")
    e("s_nop 3")
    stamp()
    out = []
    for line in L:
        t = line.strip()
        if t.startswith("__LOAD"):
            l = int(t[6:-2])
            tgt = l + LA
            sl = tgt & 15
            blk = tgt >> 3
            sreg = SB[blk - 1]
            ks = tgt & 7
            b = slot_reg(sl)
            vo = V_ST if ks < 4 else V_T1
            ins = f"    buffer_load_dwordx4 v[{b}:{b+3}], v{vo}, s[{S_A}:{S_A+3}], s{sreg} offen offset:{1024*(ks&3)} {SIBF}"
            out.append(ins)
        elif t.startswith("__WAITB"):
            out += [f"    s_waitcnt vmcnt({LA - 1})"]
        else:
            out.append(line)
    L[:] = out
    V_ENC = 136
    V_CK = 96
    V_RC = 152
    V_SC = 164
    VX = 124
    V_L8 = V_T2
    DPPS = ["quad_perm:[1,0,3,2]", "quad_perm:[2,3,0,1]", "row_half_mirror", "row_mirror"]
    A2 = V_ACC2
    e("s_waitcnt vmcnt(0)")
    e(f"v_max3_f32 v{V_M}, |v{A2}|, |v{A2+1}|, |v{A2+2}|")
    e(f"v_max3_f32 v{V_M2}, |v{A2+3}|, |v{A2+4}|, |v{A2+5}|")
    for i in range(6, 30, 4):
        e(f"v_max3_f32 v{V_M}, v{V_M}, |v{A2+i}|, |v{A2+i+1}|")
        e(f"v_max3_f32 v{V_M2}, v{V_M2}, |v{A2+i+2}|, |v{A2+i+3}|")
    e(f"v_max3_f32 v{V_M}, v{V_M}, |v{A2+30}|, |v{A2+31}|")
    e(f"v_max_f32 v{V_M}, v{V_M}, v{V_M2}")
    sal = [f"s_andn2_b32 s{S_BASE}, s2, 3", f"s_lshl_b32 s{S_BASE}, s{S_BASE}, 2",
           f"s_add_u32 s{S_BASE}, s{S_BASE}, s{S_G4}", f"s_lshl_b32 s{S_BASE}, s{S_BASE}, 2",
           f"s_add_u32 s{S_BASE}, s{S_BASE}, s{S_WV}", f"s_lshl_b32 s{S_LO}, s{S_BASE}, 6",
           f"s_add_u32 s{S_LO}, s{S_LO}, {CK_OFF}", f"s_lshl_b32 s{S_BASE}, s{S_BASE}, 10"]
    for i, d in enumerate(DPPS):
        e(sal[2 * i]); e(sal[2 * i + 1])
        e(f"v_max_u32_dpp v{V_M}, v{V_M}, v{V_M} {d} row_mask:0xf bank_mask:0xf")
    e(f"s_add_u32 s{S_BASE}, s{S_BASE}, {PX_OFF}")
    e(f"v_lshrrev_b32 v{V_M}, 23, v{V_M}")
    e(f"v_max_u32 v{V_M}, 15, v{V_M}")
    e(f"v_sub_u32 v{V_SC}, 0x10c, v{V_M}")
    e(f"v_lshlrev_b32 v{V_SC}, 23, v{V_SC}")
    e(f"v_mov_b32 v{V_SC+1}, v{V_SC}")
    e(f"v_subrev_u32 v{V_SC+2}, 14, v{V_M}")
    e(f"v_lshlrev_b32 v{V_SC+2}, 23, v{V_SC+2}")
    e(f"v_lshrrev_b32 v{V_L8}, 4, v{V_LANE}")
    e(f"v_lshlrev_b32 v{V_L8}, 4, v{V_L8}")
    for qd in range(4):
        a = A2 + 8 * qd
        h = V_ENC + 4 * qd
        e(f"s_cmp_eq_u32 s{S_G4}, {qd}")
        e(f"s_cbranch_scc1 F_SK{qd}")
        e(f"s_add_u32 s{S_TMP}, s{S_BASE}, {qd * 16384}")
        for i in range(4):
            e(f"v_pk_mul_f32 v[{a+2*i}:{a+2*i+1}], v[{a+2*i}:{a+2*i+1}], v[{V_SC}:{V_SC+1}]")
        for i in range(4):
            e(f"v_cvt_pk_f16_f32 v{h+i}, v{a+2*i}, v{a+2*i+1}")
        e(f"buffer_store_dwordx4 v[{h}:{h+3}], v{V_ST}, s[{S_A}:{S_A+3}], s{S_TMP} offen sc1")
        e(f"s_branch F_SE{qd}")
        e(f"F_SK{qd}:")
        for i in range(8):
            e(f"v_mov_b32 v{V_FIN+i}, v{a+i}")
        e(f"F_SE{qd}:")
    for qd in range(4):
        h = V_ENC + 4 * qd
        c = V_CK + 4 * qd
        e(f"v_bitop3_b32 v{c}, v{h}, v{h+1}, v{h+2} bitop3:0x96")
        e(f"v_xor_b32 v{c}, v{c}, v{h+3}")
        e(f"v_mov_b32 v{c+1}, s{S_TOK}")
        e(f"v_mov_b32 v{c+2}, v{V_SC+2}")
    for d in DPPS:
        for qd in range(4):
            c = V_CK + 4 * qd
            e(f"v_xor_b32_dpp v{c}, v{c}, v{c} {d} row_mask:0xf bank_mask:0xf")
    for qd in range(4):
        c = V_CK + 4 * qd
        e(f"v_bitop3_b32 v{c}, v{c}, v{c+2}, s{S_TOK+1} bitop3:0x96")
    e("s_mov_b32 exec_lo, 0x00010001")
    e("s_mov_b32 exec_hi, 0x00010001")
    for qd in range(4):
        c = V_CK + 4 * qd
        e(f"buffer_store_dwordx3 v[{c}:{c+2}], v{V_L8}, s[{S_A}:{S_A+3}], s{S_LO} offen offset:{qd*1024} sc1")
    e("s_mov_b64 exec, -1")
    stamp()
    e(f"s_lshl_b32 s{S_BASE}, s2, 4")
    e(f"s_add_u32 s{S_BASE}, s{S_BASE}, s{S_WV}")
    e(f"s_lshl_b32 s{S_LO}, s{S_BASE}, 6")
    e(f"s_add_u32 s{S_LO}, s{S_LO}, {CK_OFF}")
    e(f"s_lshl_b32 s{S_BASE}, s{S_BASE}, 10")
    e(f"s_add_u32 s{S_BASE}, s{S_BASE}, {PX_OFF}")
    SD = (32, 33, 34); SC = (36, 37, 38)
    for n in range(3):
        e(f"s_add_u32 s{S_TMP}, s{S_G4}, {n+1}")
        e(f"s_and_b32 s{S_TMP}, s{S_TMP}, 3")
        e(f"s_lshl_b32 s{SC[n]}, s{S_TMP}, 8")
        e(f"s_add_u32 s{SC[n]}, s{SC[n]}, s{S_LO}")
        e(f"s_lshl_b32 s{SD[n]}, s{S_TMP}, 12")
        e(f"s_add_u32 s{SD[n]}, s{SD[n]}, s{S_BASE}")
    e(f"v_add_u32 v{V_T3}, s{S_G4}, v{V_LANE}")
    e(f"v_add_u32 v{V_T3}, 1, v{V_T3}")
    e(f"v_and_b32 v{V_T3}, 3, v{V_T3}")
    e(f"v_lshlrev_b32 v{V_T3}, 8, v{V_T3}")
    e(f"s_mov_b32 s{S_CNT}, 0")
    e("s_mov_b64 exec, 7")
    e("F_P2:")
    e(f"buffer_load_dword v{V_FV}, v{V_T3}, s[{S_A}:{S_A+3}], s{S_LO} offen offset:52 sc0 sc1")
    e(f"s_add_u32 s{S_CNT}, s{S_CNT}, 1")
    e("s_waitcnt vmcnt(0)")
    e(f"v_cmp_ne_u32 vcc, s{S_TOK}, v{V_FV}")
    e(f"s_cmp_gt_u32 s{S_CNT}, {SPIN}")
    e("s_cbranch_scc1 F_P2X")
    e("s_nop 2")
    e("s_cbranch_vccnz F_P2")
    e("F_P2X:")
    e("s_mov_b64 exec, -1")
    stamp()
    if STAMPS: e(f"v_writelane_b32 v231, s{S_CNT}, 12")
    def rx_all(rf):
        for n in range(3):
            b = V_PR + 4 * n
            e(f"buffer_load_dwordx4 v[{b}:{b+3}], v{V_ST}, s[{S_A}:{S_A+3}], s{SD[n]} offen {rf}")
            e(f"buffer_load_dwordx3 v[{V_RC+4*n}:{V_RC+4*n+2}], v{V_L8}, s[{S_A}:{S_A+3}], s{SC[n]} offen {rf}")
    rx_all(opt("rxflags", "sc1"))
    e("s_branch F_RV")
    e("F_RX:")
    rx_all("sc0 sc1")
    e("F_RV:")
    e(f"s_add_u32 s{S_CNT}, s{S_CNT}, 1")
    for n in range(3):
        e(f"s_waitcnt vmcnt({2*(2-n)})")
        b = V_PR + 4 * n
        c = VX + n
        e(f"v_bitop3_b32 v{c}, v{b}, v{b+1}, v{b+2} bitop3:0x96")
        e(f"v_xor_b32 v{c}, v{c}, v{b+3}")
    e("s_nop 1")
    for d in DPPS:
        for n in range(3):
            c = VX + n
            e(f"v_xor_b32_dpp v{c}, v{c}, v{c} {d} row_mask:0xf bank_mask:0xf")
    for n in range(3):
        c = VX + n
        r = V_RC + 4 * n
        e(f"v_bitop3_b32 v{c}, v{c}, v{r}, s{S_TOK+1} bitop3:0x96")
        e(f"v_xor_b32 v{c}, v{c}, v{r+2}")
        e(f"v_xor_b32 v{r+1}, s{S_TOK}, v{r+1}")
    e(f"v_or3_b32 v{V_T3}, v{VX}, v{VX+1}, v{VX+2}")
    e(f"v_or3_b32 v{V_T3}, v{V_T3}, v{V_RC+1}, v{V_RC+5}")
    e(f"v_or_b32 v{V_T3}, v{V_T3}, v{V_RC+9}")
    e(f"v_cmp_ne_u32 vcc, 0, v{V_T3}")
    e(f"s_cmp_gt_u32 s{S_CNT}, {SPIN}")
    e("s_cbranch_scc1 F_RXX")
    e("s_nop 2")
    e("s_cbranch_vccnz F_RX")
    e("F_RXX:")
    if STAMPS:
        e(f"v_writelane_b32 v231, s{S_CNT}, 13")
        stamp()
    e(f"s_lshl_b32 s{S_TMP}, s{S_RB}, 17")
    e(f"s_lshl_b32 s{S_TMP+1}, s{S_HL}, 7")
    e(f"s_add_u32 s{S_TMP}, s{S_TMP}, s{S_TMP+1}")
    e(f"s_lshl_b32 s{S_TMP+1}, s{S_G4}, 5")
    e(f"s_add_u32 s{S_TMP}, s{S_TMP}, s{S_TMP+1}")
    for n in range(3):
        b = V_PR + 4 * n
        inv = V_RC + 4 * n + 2
        for i in range(4):
            e(f"v_fma_mix_f32 v{V_FIN+2*i}, v{b+i}, v{inv}, v{V_FIN+2*i} op_sel_hi:[1,0,0]")
            e(f"v_fma_mix_f32 v{V_FIN+2*i+1}, v{b+i}, v{inv}, v{V_FIN+2*i+1} op_sel:[1,0,0] op_sel_hi:[1,0,0]")
    for i in range(4):
        e(f"v_cvt_pk_bf16_f32 v{V_FIN+8+i}, v{V_FIN+2*i}, v{V_FIN+2*i+1}")
    e(f"buffer_store_dwordx4 v[{V_FIN+8}:{V_FIN+11}], v{V_OUT}, s[{S_C}:{S_C+3}], s{S_TMP} offen")
    stamp_flush()
    e("F_DONE:")
    e("s_endpgm")
    L.append(kd(name, NVGPR))


def main():
    out = sys.argv[1]
    hdr = HEADER
    hdr += "; @launch grid=(256,1,1) block=(512,1,1) lds=163840\n"
    hdr += '.amdgcn_target "amdgcn-amd-amdhsa--gfx950"\n'
    fused()
    open(out, "w").write(hdr + "\n".join(L) + "\n")

main()
```

```python
import sys

HEADER = """; Kernarg layout for this problem (64 bytes, ptrs only, base s[0:1]):
"""
KNAME = "standalone__gqa_block_cached__near_ridge_kernel"
ARGS = sys.argv[2:]
def opt(name, default):
    for a in ARGS:
        if a.startswith(name + "="):
            return a.split("=", 1)[1].replace("_", " ")
    return default

L = []
def e(s=""):
    L.append("    " + s if s and not s.endswith(":") else s)

def kd(name, vgpr, sgpr=100):
    acc = (vgpr + 3) // 4 * 4
    return f""".section .rodata,"a"
.p2align 6
.amdhsa_kernel {name}
  .amdhsa_next_free_vgpr {vgpr}
  .amdhsa_next_free_sgpr {sgpr}
  .amdhsa_accum_offset {acc}
  .amdhsa_group_segment_fixed_size 0
  .amdhsa_kernarg_size 64
  .amdhsa_user_sgpr_count 2
  .amdhsa_user_sgpr_kernarg_segment_ptr 1
  .amdhsa_system_sgpr_workgroup_id_x 1
.end_amdhsa_kernel
"""

def srd(d, b, nbytes, extra_off=None):
    if extra_off:
        e(f"s_add_u32 s{d}, s{b}, {extra_off}")
        e(f"s_addc_u32 s{d+1}, s{b+1}, 0")
    else:
        e(f"s_mov_b32 s{d}, s{b}")
        e(f"s_mov_b32 s{d+1}, s{b+1}")
    e(f"s_mov_b32 s{d+2}, {nbytes}")
    e(f"s_mov_b32 s{d+3}, 0x00020000")

STAMPS = "--stamps" in ARGS
NST = [0]
S_WV = 42
def stamp(real=False):
    if not STAMPS: return
    i = NST[0]; NST[0] += 1
    assert i < 17, "too many stamps"
    e(f"{'s_memrealtime' if real else 's_memtime'} s[{62+2*i}:{63+2*i}]")

def stamp_flush():
    if not STAMPS: return
    e("s_waitcnt vmcnt(0) lgkmcnt(0)")
    stamp(False)
    stamp(True)
    n = NST[0]
    e("s_waitcnt lgkmcnt(0)")
    srd(20, 18, 1 << 20, extra_off=(64 << 20))
    e(f"s_lshl_b32 s3, s2, 3")
    e(f"s_add_u32 s3, s3, s{S_WV}")
    e(f"s_lshl_b32 s3, s3, 8")
    e("v_and_b32 v2, 63, v0")
    e("v_lshlrev_b32 v2, 2, v2")
    e("s_mov_b64 exec, 0xffff")
    e("buffer_store_dword v231, v2, s[20:23], s3 offen offset:192")
    e("s_mov_b64 exec, -1")
    e("v_mov_b32 v2, 0")
    e("s_mov_b64 exec, 1")
    for i in range(n):
        e(f"v_mov_b32 v4, s{62+2*i}")
        e(f"v_mov_b32 v5, s{63+2*i}")
        e(f"buffer_store_dwordx2 v[4:5], v2, s[20:23], s3 offen offset:{8*i}")
        e("s_nop 1")

def bar(st=False):
    if st: stamp()
    e("s_barrier")

def lend(rem=0):
    if STAMPS:
        for _ in range(rem):
            e("s_barrier")
    stamp_flush()
    NST[0] = 2
    e("s_endpgm")

PX_OFF = 8 << 20
F1_OFF = 16 << 20
F1A_OFF = F1_OFF + (512 << 10)
F2_OFF = 17 << 20
CK_OFF = 18 << 20
WS_BYTES = 20 << 20
WQ_BASE, X_BASE, K_BASE, V_BASE = 0, 49152, 98304, 131072

V_LANE = 1
V_T0, V_T1, V_T2, V_T3 = 2, 3, 4, 5
V_ST = 6
V_OUT = 7
V_AX = 8
V_AW = 12
V_AK = 16
V_AV = 24
V_AO = 28
V_ZERO = 30
V_FX = 32
V_FW = 40
V_ACC = 72
V_S = 136
V_QB = 168
V_KF = 200
V_PB = 168
V_VF = 32
V_M, V_M2, V_SUM, V_SUM2 = 216, 217, 218, 219
V_TOK = 220
V_FA1 = 222
V_FA2 = 223
V_FV = 224
V_FA1A = 226
V_BX = 136
V_BY = 32
V_BZ = 64
V_BW = 96
V_ACC2 = 168
V_FO = 64
V_PR = 72
V_FIN = 112
V_MM = 228
V_RS = 228
NVGPR = 232

S_A, S_B, S_C, S_D = 20, 24, 28, 32
S_H, S_RB = 40, 41
S_HL, S_G4 = 43, 44
S_DRY = 45
S_TMP = 46
S_ROT = 48
S_BASE = 49
S_CNT = 50
S_LO = 51
S_TOK = 52
S_T2 = 54
S_I = 55
S_X0, S_X1 = 56, 57
S_J = 58
S_DEL = 59
S_SK0 = 39

SPIN = int(opt('spin', '200000'))
SIBF = opt('sibflags', 'sc1')


def poll_loop(label, vaddr, srd_reg, flags="sc1", vaddr2=None, mask=255):
    e(f"s_mov_b32 s{S_CNT}, 0")
    e(f"s_mov_b64 exec, {mask}")
    e(f"{label}:")
    if vaddr2 is not None:
        e(f"s_and_b32 s{S_TMP}, s{S_CNT}, 7")
        e(f"s_cmp_eq_u32 s{S_TMP}, 7")
        e(f"s_cbranch_scc1 {label}_B")
    e(f"buffer_load_dwordx2 v[{V_FV}:{V_FV+1}], v{vaddr}, s[{srd_reg}:{srd_reg+3}], 0 offen {flags}")
    if vaddr2 is not None:
        e(f"s_branch {label}_C")
        e(f"{label}_B:")
        e(f"buffer_load_dwordx2 v[{V_FV}:{V_FV+1}], v{vaddr2}, s[{srd_reg}:{srd_reg+3}], 0 offen sc0 sc1")
        e(f"{label}_C:")
    e(f"s_add_u32 s{S_CNT}, s{S_CNT}, 1")
    e("s_waitcnt vmcnt(0)")
    e(f"v_cmp_ne_u64 vcc, s[{S_TOK}:{S_TOK+1}], v[{V_FV}:{V_FV+1}]")
    e(f"s_cmp_gt_u32 s{S_CNT}, {SPIN}")
    e(f"s_cbranch_scc1 {label}_X")
    e("s_nop 2")
    e(f"s_cbranch_vccz {label}_X")
    if opt("psleep", "0") != "0":
        e(f"s_sleep {opt('psleep', '0')}")
    e(f"s_branch {label}")
    e(f"{label}_X:")
    e("s_mov_b64 exec, -1")


def issue8(vbase, srd_reg, soff, flags):
    e(f"s_mov_b32 m0, s{S_LO}")
    e(f"s_add_u32 s{S_TMP+1}, s{S_LO}, 4096")
    for j in range(4):
        e(f"buffer_load_dwordx4 v{vbase+j}, s[{srd_reg}:{srd_reg+3}], s{soff} offen offset:{1024*j} {flags} lds")
    e(f"s_mov_b32 m0, s{S_TMP+1}")
    e("s_nop 0")
    for j in range(4):
        e(f"buffer_load_dwordx4 v{vbase+4+j}, s[{srd_reg}:{srd_reg+3}], s{soff} offen offset:{1024*j} {flags} lds")


def ring_adv(base):
    e(f"s_add_u32 s{S_LO}, s{S_LO}, 8192")
    e(f"s_cmp_eq_u32 s{S_LO}, {base + 49152}")
    e(f"s_cselect_b32 s{S_LO}, {base}, s{S_LO}")


def wo_loader(half, tag):
    e(f"v_lshrrev_b32 v{V_T1}, 3, v{V_LANE}")
    e(f"v_and_b32 v{V_T2}, 7, v{V_LANE}")
    e(f"v_bfe_u32 v{V_T3}, v{V_LANE}, 4, 1")
    e(f"v_lshlrev_b32 v{V_T3}, 2, v{V_T3}")
    e(f"v_xor_b32 v{V_T2}, v{V_T2}, v{V_T3}")
    e(f"v_lshlrev_b32 v{V_T2}, 4, v{V_T2}")
    e(f"v_lshl_add_u32 v24, v{V_T1}, 10, v{V_T2}")
    for i in range(1, 8):
        e(f"v_add_u32 v{24+i}, {8*i*1024 - 1024*(i&3)}, v24")
    srd(S_B, 12, 4 << 20)
    e(f"s_lshl_b32 s{S_BASE}, s{S_G4}, 20")
    e(f"s_lshl_b32 s{S_TMP}, s{S_HL}, 7")
    e(f"s_add_u32 s{S_BASE}, s{S_BASE}, s{S_TMP}")
    if half:
        e(f"s_add_u32 s{S_BASE}, s{S_BASE}, 65536")
    e(f"s_mov_b32 s{S_LO}, {half * 8192}")
    e(f"s_mov_b32 s{S_J}, 0")
    bar()
    bar(True)
    e(f"WO_L{tag}:")
    e(f"s_add_u32 s{S_TMP}, s{S_HL}, s{S_J}")
    e(f"s_and_b32 s{S_TMP}, s{S_TMP}, 7")
    e(f"s_lshl_b32 s{S_TMP}, s{S_TMP}, 17")
    e(f"s_add_u32 s{S_TMP}, s{S_TMP}, s{S_BASE}")
    e(f"s_waitcnt vmcnt({int(opt('wothr', '16'))})")
    issue8(24, S_B, S_TMP, opt("woflags", ""))
    e(f"s_add_u32 s{S_LO}, s{S_LO}, 16384")
    e(f"s_add_u32 s{S_J}, s{S_J}, 1")
    e(f"s_cmp_lg_u32 s{S_J}, 6")
    e(f"s_cbranch_scc1 WO_N{tag}")
    bar(True)
    e(f"WO_N{tag}:")
    e(f"s_cmp_lt_u32 s{S_J}, 8")
    e(f"s_cbranch_scc1 WO_L{tag}")
    e("s_waitcnt vmcnt(0)")
    bar(True)
    lend()


def fused():
    name = KNAME
    NST[0] = 0
    e(".text")
    e(f".globl {name}")
    e(".p2align 8")
    e(f".type {name},@function")
    e(f"{name}:")
    e("s_cmp_ge_u32 s2, 256")
    e("s_cbranch_scc1 F_DONE")
    stamp(True)
    stamp()
    e("s_load_dwordx16 s[4:19], s[0:1], 0")
    e(f"v_and_b32 v{V_LANE}, 63, v0")
    if STAMPS: e("v_mov_b32 v231, 0")
    e(f"v_lshrrev_b32 v{V_T0}, 6, v0")
    e(f"s_and_b32 s{S_G4}, s2, 3")
    e(f"v_readfirstlane_b32 s{S_WV}, v{V_T0}")
    e(f"s_lshr_b32 s{S_I}, s2, 3")
    e(f"s_and_b32 s{S_HL}, s{S_I}, 7")
    e(f"s_lshl_b32 s{S_H}, s{S_G4}, 3")
    e(f"s_add_u32 s{S_H}, s{S_H}, s{S_HL}")
    e(f"s_lshr_b32 s{S_TMP}, s2, 6")
    e(f"s_and_b32 s{S_RB}, s2, 4")
    e(f"s_add_u32 s{S_RB}, s{S_RB}, s{S_TMP}")
    e(f"s_lshl_b32 s{S_ROT}, s{S_TMP}, 1")
    e(f"s_add_u32 s{S_ROT}, s{S_ROT}, s{S_HL}")
    e(f"s_and_b32 s{S_ROT}, s{S_ROT}, 7")
    e(f"s_lshl_b32 s{S_ROT}, s{S_ROT}, 1")
    if opt("rot", "0") == "0":
        e(f"s_mov_b32 s{S_ROT}, 0")
    e(f"s_cmp_lt_u32 s{S_WV}, 4")
    e("s_cbranch_scc1 F_COMPUTE")
    e(f"s_cmp_eq_u32 s{S_WV}, 5")
    e("s_cbranch_scc1 F_LX")
    e(f"s_cmp_gt_u32 s{S_WV}, 5")
    e("s_cbranch_scc1 F_LKV")

    e(f"s_lshl_b32 s{S_BASE}, s{S_H}, 8")
    e(f"v_lshrrev_b32 v{V_T1}, 4, v{V_LANE}")
    e(f"v_and_b32 v{V_T2}, 15, v{V_LANE}")
    e(f"v_lshlrev_b32 v{V_T3}, 2, v{V_T1}")
    e(f"v_xor_b32 v{V_T2}, v{V_T2}, v{V_T3}")
    e(f"v_lshlrev_b32 v{V_T2}, 4, v{V_T2}")
    e(f"v_lshl_add_u32 v8, v{V_T1}, 13, v{V_T2}")
    for j in range(1, 8):
        e(f"v_add_u32 v{8+j}, {(4*j << 13) - 1024*(j & 3)}, v8")
    e(f"s_mov_b32 s{S_LO}, {WQ_BASE}")
    e(f"s_mov_b32 s{S_J}, 0")
    e("s_waitcnt lgkmcnt(0)")
    stamp()
    srd(S_A, 10, 4 << 20)
    DW = int(opt("dw", "3"))
    wqf = opt("wqflags", "")
    def w_issue():
        e(f"s_add_u32 s{S_TMP}, s{S_ROT}, s{S_J}")
        e(f"s_and_b32 s{S_TMP}, s{S_TMP}, 15")
        e(f"s_lshl_b32 s{S_TMP}, s{S_TMP}, 18")
        e(f"s_add_u32 s{S_TMP}, s{S_TMP}, s{S_BASE}")
        issue8(8, S_A, S_TMP, wqf)
        ring_adv(WQ_BASE)
        e(f"s_add_u32 s{S_J}, s{S_J}, 1")
    def ring_loader(tag, issue, D, need_of, free_ok):
        for J in range(D, 16):
            assert free_ok(J, J - D - 1), (tag, J)
        waits = set()
        for J in range(D, 16):
            r = J - D - 1
            waits.add(8 * (J - 1 - need_of(r)))
        w = min(waits)
        e(f"{tag}_L:")
        e(f"s_cmp_lt_u32 s{S_J}, {D}")
        e(f"s_cbranch_scc1 {tag}_I")
        e(f"s_waitcnt vmcnt({w})")
        e("s_barrier")
        e(f"{tag}_I:")
        issue()
        e(f"s_cmp_lt_u32 s{S_J}, 16")
        e(f"s_cbranch_scc1 {tag}_L")
        for r in range(16 - D - 1, 15):
            e(f"s_waitcnt vmcnt({8 * max(0, 15 - need_of(r))})")
            bar(r == 16 - D - 1)
    ring_loader("LW", w_issue, DW, lambda r: r + 1, lambda J, r: J <= max(r - 1, -1) + 6)
    wo_loader(0, "A")

    e("F_LX:")
    e(f"v_lshrrev_b32 v{V_T1}, 3, v{V_LANE}")
    e(f"v_and_b32 v{V_T2}, 7, v{V_LANE}")
    e(f"v_lshrrev_b32 v{V_T3}, 4, v{V_LANE}")
    e(f"v_xor_b32 v{V_T3}, v{V_T3}, v{V_T2}")
    e(f"v_lshlrev_b32 v{V_T3}, 4, v{V_T3}")
    e(f"v_lshl_add_u32 v8, v{V_T1}, 10, v{V_T3}")
    e(f"v_xor_b32 v9, 64, v8")
    e(f"v_add_u32 v9, {8*1024 - 1024}, v9")
    for i in range(2, 8):
        e(f"v_add_u32 v{8+i}, {(8*i*1024 - 1024*(i&3)) - (8*(i&1)*1024 - 1024*(i&1))}, v{8 + (i & 1)}")
    e(f"s_lshl_b32 s{S_BASE}, s{S_RB}, 17")
    e(f"s_mov_b32 s{S_LO}, {X_BASE}")
    e(f"s_mov_b32 s{S_J}, 0")
    e("s_waitcnt lgkmcnt(0)")
    stamp()
    srd(S_A, 4, 1 << 20)
    xf = opt("xflags", "")
    def x_issue():
        e(f"s_add_u32 s{S_TMP}, s{S_ROT}, s{S_J}")
        e(f"s_and_b32 s{S_TMP+1}, s{S_TMP}, 1")
        e(f"s_lshl_b32 s{S_TMP+1}, s{S_TMP+1}, 16")
        e(f"s_and_b32 s{S_TMP}, s{S_TMP}, 14")
        e(f"s_lshl_b32 s{S_TMP}, s{S_TMP}, 6")
        e(f"s_add_u32 s{S_TMP}, s{S_TMP}, s{S_TMP+1}")
        e(f"s_add_u32 s{S_TMP}, s{S_TMP}, s{S_BASE}")
        issue8(8, S_A, S_TMP, xf)
        ring_adv(X_BASE)
        e(f"s_add_u32 s{S_J}, s{S_J}, 1")
    DX = int(opt("dx", "3"))
    ring_loader("LX", x_issue, DX, lambda r: 2 * ((r + 1) >> 1) + 1,
                lambda n, r: (n >> 1) - 3 <= ((r - 2) >> 1 if r >= 2 else -1))
    wo_loader(1, "B")

    e("F_LKV:")
    e(f"v_lshrrev_b32 v{V_T1}, 4, v{V_LANE}")
    e(f"v_and_b32 v{V_T2}, 15, v{V_LANE}")
    e(f"v_lshlrev_b32 v{V_T0}, 8, v{V_T1}")
    e(f"s_lshl_b32 s{S_BASE}, s{S_RB}, 6")
    e(f"s_add_u32 s{S_BASE}, s{S_BASE}, s{S_H}")
    e(f"s_lshl_b32 s{S_BASE}, s{S_BASE}, 14")
    e(f"v_lshlrev_b32 v18, 7, v{V_LANE}")
    e(f"s_mov_b32 s{S_J}, 0")
    e(f"s_mov_b32 s{S_CNT}, 0")
    e(f"s_cmp_eq_u32 s{S_WV}, 7")
    e("s_cbranch_scc1 F_LV")
    kvf = opt("kvflags", "")
    def kv_group(srd_reg, lds_base, vo):
        e(f"s_lshl_b32 s{S_TMP}, s{S_J}, 12")
        e(f"s_add_u32 m0, s{S_TMP}, {lds_base}")
        e(f"s_and_b32 s{S_TMP}, s{S_TMP}, 0x3000")
        e(f"s_lshr_b32 s{S_TMP+1}, s{S_J}, 2")
        e(f"s_lshl_b32 s{S_TMP+1}, s{S_TMP+1}, 19")
        e(f"s_add_u32 s{S_TMP}, s{S_TMP}, s{S_TMP+1}")
        e(f"s_add_u32 s{S_TMP}, s{S_TMP}, s{S_BASE}")
        for j in range(4):
            e(f"buffer_load_dwordx4 v{vo(j)}, s[{srd_reg}:{srd_reg+3}], s{S_TMP} offen offset:{1024*j} {kvf} lds")
        e(f"s_add_u32 s{S_J}, s{S_J}, 1")
    for j in range(4):
        e(f"v_add_u32 v{V_T3}, {4*j}, v{V_T1}")
        e(f"v_xor_b32 v{V_T3}, v{V_T3}, v{V_T2}")
        e(f"v_lshl_add_u32 v{8+j}, v{V_T3}, 4, v{V_T0}")
    e("s_waitcnt lgkmcnt(0)")
    srd(S_A, 6, 8 << 20)
    SG0 = int(opt("sg0", "0")); SGS = int(opt("sgs", "2")); SGM = int(opt("sgm", "7")); SGH = int(opt("sgh", "2"))
    def slot_calc(extra):
        e(f"s_lshr_b32 s{S_X0}, s{S_I}, {SGH}")
        e(f"s_add_u32 s{S_X0}, s{S_X0}, {int(opt('sga', '4'))}")
        e(f"s_and_b32 s{S_X0}, s{S_X0}, {SGM}")
        e(f"s_mul_i32 s{S_X0}, s{S_X0}, {SGS}")
        e(f"s_add_u32 s{S_X0}, s{S_X0}, {SG0 + extra}")
    def burst_loop(tag, body, nbar, extra=None):
        e(f"{tag}_L:")
        if extra:
            e(f"s_cmp_lg_u32 s{S_CNT}, s{S_X1}")
            e(f"s_cbranch_scc1 {tag}_E")
            extra()
            e(f"{tag}_E:")
        e(f"s_cmp_lg_u32 s{S_CNT}, s{S_X0}")
        e(f"s_cbranch_scc1 {tag}_S")
        e(f"{tag}_G:")
        body()
        e(f"s_cmp_lt_u32 s{S_J}, 8")
        e(f"s_cbranch_scc1 {tag}_G")
        e(f"{tag}_S:")
        e("s_barrier")
        e(f"s_add_u32 s{S_CNT}, s{S_CNT}, 1")
        e(f"s_cmp_lt_u32 s{S_CNT}, {nbar}")
        e(f"s_cbranch_scc1 {tag}_L")
    assert SG0 + SGS * SGM + int(opt("vex", "0")) <= 15
    slot_calc(0)
    PF = opt("pf", "1") == "1"
    xw_pf = None
    if PF:
        PC0 = int(opt("pc0", "2")); PLEAD = int(opt("plead", "4"))
        srd(S_B, 4, 1 << 20)
        srd(S_C, 10, 4 << 20)
        e(f"v_lshlrev_b32 v16, 10, v{V_LANE}")
        e(f"v_lshlrev_b32 v17, 13, v{V_T1}")
        e(f"v_lshl_add_u32 v17, v{V_T2}, 7, v17")
        e(f"s_lshr_b32 s36, s{S_I}, 2")
        e(f"s_and_b32 s37, s{S_I}, 3")
        e(f"s_max_u32 s{S_X1}, s36, {PLEAD}")
        e(f"s_sub_u32 s{S_X1}, s{S_X1}, {PLEAD}")
        e(f"s_lshl_b32 s{S_X1}, s{S_X1}, 1")
        e(f"s_cmp_lt_u32 s36, {PC0}")
        e(f"s_cselect_b32 s{S_X1}, 99, s{S_X1}")
        e(f"s_and_b32 s38, s2, 4")
        e(f"s_add_u32 s38, s38, s37")
        e(f"s_lshl_b32 s38, s38, 17")
        e(f"s_lshl_b32 s{S_TMP}, s36, 7")
        e(f"s_add_u32 s38, s38, s{S_TMP}")
        e(f"s_lshl_b32 s39, s{S_I}, 17")
        e(f"s_lshl_b32 s{S_TMP}, s{S_G4}, 11")
        e(f"s_add_u32 s39, s39, s{S_TMP}")
        def xw_pf():
            e(f"buffer_load_dword v20, v16, s[{S_B}:{S_B+3}], s38 offen")
            e(f"s_add_u32 s38, s38, 65536")
            e(f"buffer_load_dword v20, v16, s[{S_B}:{S_B+3}], s38 offen")
            for _ in range(4):
                e(f"buffer_load_dword v21, v17, s[{S_C}:{S_C+3}], s39 offen")
                e(f"s_add_u32 s39, s39, 32768")
    burst_loop("LK", lambda: kv_group(S_A, K_BASE, lambda j: 8 + j), 16, xw_pf)
    e("s_waitcnt vmcnt(0)")
    bar(True)
    lend(3)

    e("F_LV:")
    if opt("cpf", "0") == "1":
        e(f"s_cmp_ge_u32 s{S_I}, {opt('cpfn', '2')}")
        e("s_cbranch_scc1 F_NOCPF")
        e("s_getpc_b64 s[36:37]")
        e("F_PCREF:")
        e(f"s_sub_u32 s36, s36, F_PCREF-{KNAME}")
        e("s_subb_u32 s37, s37, 0")
        e(f"s_mov_b32 s38, F_DONE-{KNAME}")
        for i in range(2):
            e(f"v_add_u32 v29, {8192*i}, v18")
            e("v_min_u32 v29, s38, v29")
            e("v_mov_b32 v31, s37")
            e("v_add_co_u32 v30, vcc, s36, v29")
            e("s_nop 1")
            e("v_addc_co_u32 v31, vcc, 0, v31, vcc")
            e(f"global_load_dword v{32+i}, v[30:31], off")
        e("F_NOCPF:")
    e(f"v_lshlrev_b32 v{V_T3}, 2, v{V_T1}")
    e(f"v_xor_b32 v{V_T3}, v{V_T3}, v{V_T2}")
    e(f"v_lshl_add_u32 v8, v{V_T3}, 4, v{V_T0}")
    e(f"s_memrealtime s[{S_TOK}:{S_TOK+1}]")
    e("s_waitcnt lgkmcnt(0)")
    srd(S_A, 8, 8 << 20)
    srd(S_D, 12, 4 << 20)
    e("s_cmp_lg_u32 s2, 0")
    e("s_cbranch_scc1 F_NOTOK")
    srd(S_B, 16, 256)
    e(f"s_or_b32 s{S_TOK}, s{S_TOK}, 1")
    e(f"v_mov_b32 v10, s{S_TOK}")
    e(f"v_mov_b32 v11, s{S_TOK+1}")
    e("v_mov_b32 v12, 0")
    e(f"buffer_store_dwordx2 v[10:11], v12, s[{S_B}:{S_B+3}], 0 offen sc0 sc1")
    e("F_NOTOK:")
    if opt("tlbw", "0") == "1":
        tf = opt("tlbflags", "sc0 sc1")
        srd(S_B, 6, 8 << 20)
        srd(S_C, 18, WS_BYTES)
        e(f"v_lshlrev_b32 v24, 19, v{V_LANE}")
        e(f"v_lshlrev_b32 v25, 20, v{V_LANE}")
        e("s_mov_b64 exec, 3")
        e(f"buffer_load_dword v26, v24, s[{S_B}:{S_B+3}], s{S_BASE} offen {tf}")
        e(f"buffer_load_dword v26, v24, s[{S_A}:{S_A+3}], s{S_BASE} offen {tf}")
        e(f"s_lshl_b32 s{S_TMP}, s{S_G4}, 20")
        e(f"buffer_load_dword v26, v24, s[{S_D}:{S_D+3}], s{S_TMP} offen {tf}")
        e("s_mov_b64 exec, 0x3ffff")
        e(f"buffer_load_dword v26, v25, s[{S_C}:{S_C+3}], 0 offen {tf}")
        srd(S_B, 14, 1 << 20)
        srd(S_C, 16, 256)
        e("s_mov_b64 exec, 1")
        e(f"buffer_load_dword v26, v25, s[{S_B}:{S_B+3}], 0 offen {tf}")
        e(f"buffer_load_dword v26, v25, s[{S_C}:{S_C+3}], 0 offen offset:128 {tf}")
        e("s_mov_b64 exec, -1")
    slot_calc(int(opt("vex", "0")))
    burst_loop("LV", lambda: kv_group(S_A, V_BASE, lambda j: 8), 16)
    done = 16
    pof = opt("poflags", "")
    npf = 0
    if opt("wopf", "1") == "1":
        e(f"s_lshl_b32 s{S_TMP}, s{S_G4}, 20")
        e(f"s_lshl_b32 s{S_TMP+1}, s{S_I}, 15")
        e(f"s_add_u32 s{S_TMP}, s{S_TMP}, s{S_TMP+1}")
        for qq in range(4):
            if qq: e(f"s_add_u32 s{S_TMP}, s{S_TMP}, 8192")
            e(f"buffer_load_dword v23, v18, s[{S_D}:{S_D+3}], s{S_TMP} offen {pof}")
        npf = 4
    assert done <= 17
    for _ in range(17 - done):
        e("s_barrier")
    e(f"s_waitcnt vmcnt({npf})")
    bar(True)
    lend(2)

    e("F_COMPUTE:")
    if opt("prio", "0") != "0":
        e(f"s_setprio {opt('prio', '0')}")
    e(f"v_and_b32 v{V_T1}, 31, v{V_LANE}")
    e(f"v_bfe_u32 v{V_T2}, v{V_T1}, 1, 3")
    e(f"v_lshrrev_b32 v{V_T3}, 5, v{V_LANE}")
    e(f"v_xor_b32 v{V_T2}, v{V_T2}, v{V_T3}")
    e(f"v_lshlrev_b32 v{V_T2}, 4, v{V_T2}")
    e(f"v_lshl_add_u32 v{V_T1}, v{V_T0}, 5, v{V_T1}")
    e(f"v_lshl_add_u32 v{V_T1}, v{V_T1}, 7, v{V_T2}")
    e(f"v_add_u32 v{V_T1}, {X_BASE}, v{V_T1}")
    for s in range(4):
        e(f"v_xor_b32 v{V_AX+s}, {32*s}, v{V_T1}")
    e(f"v_bfe_u32 v{V_T1}, v{V_LANE}, 2, 2")
    e(f"v_bfe_u32 v{V_T2}, v{V_LANE}, 4, 1")
    e(f"v_lshlrev_b32 v{V_T2}, 2, v{V_T2}")
    e(f"v_and_b32 v{V_T3}, 1, v{V_LANE}")
    e(f"v_lshl_or_b32 v{V_T2}, v{V_T3}, 1, v{V_T2}")
    e(f"v_bfe_u32 v{V_T3}, v{V_LANE}, 1, 1")
    e(f"v_or_b32 v{V_T2}, v{V_T2}, v{V_T3}")
    e(f"v_lshlrev_b32 v{V_T2}, 3, v{V_T2}")
    e(f"v_lshrrev_b32 v{V_T3}, 5, v{V_LANE}")
    e(f"v_lshl_add_u32 v{V_AO}, v{V_T1}, 7, v{V_T2}")
    e(f"v_lshl_add_u32 v{V_AO}, v{V_T3}, 10, v{V_AO}")
    e(f"v_bfe_u32 v{V_AO+1}, v{V_LANE}, 3, 1")
    e(f"v_lshl_add_u32 v{V_AO}, v{V_AO+1}, 6, v{V_AO}")
    e(f"v_xor_b32 v{V_AO+1}, 64, v{V_AO}")
    e(f"v_lshl_add_u32 v{V_T2}, v{V_T1}, 8, v{V_T2}")
    e(f"v_lshl_add_u32 v{V_T2}, v{V_T1}, 6, v{V_T2}")
    for T in range(4):
        e(f"v_xor_b32 v{V_AV+T}, {64*T}, v{V_T2}")
        e(f"v_lshl_add_u32 v{V_AW+T}, v{V_T3}, 11, v{V_AV+T}")
    e(f"v_lshrrev_b32 v{V_T0}, 7, v0")
    e(f"v_and_b32 v{V_T1}, 31, v{V_LANE}")
    e(f"v_and_b32 v{V_T2}, 15, v{V_LANE}")
    e(f"v_xor_b32 v{V_T2}, v{V_T2}, v{V_T3}")
    e(f"v_lshlrev_b32 v{V_T2}, 4, v{V_T2}")
    e(f"v_lshl_add_u32 v{V_T2}, v{V_T1}, 8, v{V_T2}")
    e(f"v_lshl_add_u32 v{V_T2}, v{V_T0}, 14, v{V_T2}")
    e(f"v_add_u32 v{V_T2}, {K_BASE}, v{V_T2}")
    for s in range(8):
        e(f"v_xor_b32 v{V_AK+s}, {32*s}, v{V_T2}")
    e(f"v_lshlrev_b32 v{V_T0}, 14, v{V_T0}")
    e(f"v_lshl_add_u32 v{V_T0}, v{V_T3}, 10, v{V_T0}")
    e(f"v_add_u32 v{V_T0}, {V_BASE}, v{V_T0}")
    for T in range(4):
        e(f"v_add_u32 v{V_AV+T}, v{V_AV+T}, v{V_T0}")
    e(f"v_lshlrev_b32 v{V_ST}, 4, v{V_LANE}")
    e(f"v_lshrrev_b32 v{V_T0}, 6, v0")
    e(f"v_lshl_add_u32 v{V_T0}, v{V_T0}, 5, v{V_T1}")
    e(f"v_lshlrev_b32 v{V_T0}, 10, v{V_T0}")
    e(f"v_lshl_add_u32 v{V_OUT}, v{V_T3}, 4, v{V_T0}")
    e(f"v_and_b32 v{V_T0}, 7, v{V_LANE}")
    e(f"s_andn2_b32 s{S_TMP}, s2, 0x38")
    e(f"s_lshl_b32 s{S_TMP}, s{S_TMP}, 2")
    e(f"s_add_u32 s{S_TMP}, s{S_TMP}, s{S_WV}")
    e(f"s_lshl_b32 s{S_X0}, s{S_TMP}, 13")
    e(f"s_lshl_b32 s{S_TMP}, s{S_TMP}, 6")
    e(f"s_add_u32 s{S_TMP}, s{S_TMP}, {F1_OFF}")
    e(f"v_lshlrev_b32 v{V_T0}, 11, v{V_T0}")
    e(f"v_add_u32 v{V_FA1}, s{S_TMP}, v{V_T0}")
    e(f"v_add_u32 v{V_FA1A}, {F1A_OFF - F1_OFF}, v{V_FA1}")
    e(f"v_and_b32 v{V_T0}, 3, v{V_LANE}")
    e(f"s_andn2_b32 s{S_TMP}, s2, 3")
    e(f"s_lshl_b32 s{S_TMP}, s{S_TMP}, 2")
    e(f"s_add_u32 s{S_TMP}, s{S_TMP}, s{S_WV}")
    e(f"s_lshl_b32 s{S_TMP}, s{S_TMP}, 6")
    e(f"s_add_u32 s{S_TMP}, s{S_TMP}, {F2_OFF}")
    e(f"v_lshlrev_b32 v{V_T0}, 8, v{V_T0}")
    e(f"v_add_u32 v{V_FA2}, s{S_TMP}, v{V_T0}")
    e(f"v_mov_b32 v{V_ZERO}, 0")
    e(f"s_lshl_b32 s{S_TMP}, s2, 2")
    e(f"s_add_u32 s{S_TMP}, s{S_TMP}, s{S_WV}")
    e(f"s_lshl_b32 s{S_T2}, s{S_TMP}, 6")
    e(f"s_lshl_b32 s{S_X1}, s{S_TMP}, 13")
    e("s_waitcnt lgkmcnt(0)")
    srd(S_A, 18, WS_BYTES)
    srd(S_B, 16, 256)
    srd(S_C, 14, 1 << 20)
    DRY = opt("dry", "0") == "1"
    if DRY:
        e(f"s_mov_b32 s{S_DRY}, 1")
        e(f"s_mov_b32 s{S_SK0}, 6")
        e("s_mov_b32 s36, 0x40000000")
        e(f"v_mov_b32 v{V_T1}, 0")
        e(f"s_mov_b32 s{S_J}, 6")
        e("s_mov_b64 exec, 0")
        e(f"s_cmp_eq_u32 s{S_WV}, 0")
        e("s_cbranch_scc1 F_ATT")
        e(f"s_cmp_eq_u32 s{S_WV}, 1")
        e("s_cbranch_scc1 F_SEG1")
        e(f"s_cmp_eq_u32 s{S_WV}, 2")
        e("s_cbranch_scc1 F_SEG2")
        e("s_branch P2_L")
        e("F_REAL:")
        e("s_mov_b64 exec, -1")
        e("s_waitcnt lgkmcnt(0)")
        e("s_nop 7")
        e("s_nop 7")
    e(f"s_mov_b32 s{S_DRY}, 0")
    e(f"s_mov_b32 s{S_SK0}, 0")
    for i in range(64):
        e(f"v_mov_b32 v{V_ACC+i}, 0")

    def rd_x(s, buf):
        e(f"ds_read_b128 v[{V_FX+4*buf}:{V_FX+4*buf+3}], v{V_AX+s}")
    def rd_w(p, buf, T):
        off = p * 4096
        r = V_FW + 16 * buf + 4 * T
        e(f"ds_read_b64_tr_b16 v[{r}:{r+1}], v{V_AW+T} offset:{off}")
        e(f"ds_read_b64_tr_b16 v[{r+2}:{r+3}], v{V_AW+T} offset:{off + 1024}")

    bar(True)
    rd_x(0, 0)
    for T in range(4):
        rd_w(0, 0, T)
    e(f"s_mov_b32 s{S_CNT}, 0")
    e(f"s_mov_b32 s{S_LO}, 0")
    e("s_mov_b32 s60, -32768")
    e("s_mov_b32 s61, 16384")
    if STAMPS:
        e("v_mov_b32 v231, 0")
        e("s_mov_b32 s96, 0")
    e("QP_L:")
    if STAMPS:
        e(f"s_mov_b32 m0, s{S_CNT}")
        e("s_nop 0")
        e(f"v_writelane_b32 v231, s96, m0")
        e("s_memtime s[96:97]")
    e(f"s_add_u32 s{S_LO}, s{S_LO}, 16384")
    e(f"s_cmp_eq_u32 s{S_LO}, 49152")
    e(f"s_cselect_b32 s{S_DEL}, s60, s61")
    e(f"s_cselect_b32 s{S_LO}, 0, s{S_LO}")
    for p in range(4):
        buf = p & 1
        nb = buf ^ 1
        if p & 1:
            e("s_barrier")
        for T in range(4):
            nxt = 0 if T == 0 else 1 + 2 * T
            e(f"s_waitcnt lgkmcnt({2*(3-T) + nxt})")
            a = V_FW + 16 * buf + 4 * T
            b = V_FX + 4 * buf
            acc = V_ACC + 16 * T
            e(f"v_mfma_f32_32x32x16_bf16 v[{acc}:{acc+15}], v[{a}:{a+3}], v[{b}:{b+3}], v[{acc}:{acc+15}]")
            if T == 0:
                rd_x((p + 1) & 3, nb)
            rd_w((p + 1) & 3, nb, T)
            if p == 2:
                e(f"v_add_u32 v{V_AW+T}, s{S_DEL}, v{V_AW+T}")
            if p == 0 and T == 1:
                e(f"v_add_u32 v{V_AX}, s{S_DEL}, v{V_AX}")
            if p == 3 and T >= 1:
                e(f"v_add_u32 v{V_AX+T}, s{S_DEL}, v{V_AX+T}")
    e(f"s_add_u32 s{S_CNT}, s{S_CNT}, 1")
    e(f"s_cmp_lt_u32 s{S_CNT}, 8")
    e("s_cbranch_scc1 QP_L")
    e("s_waitcnt lgkmcnt(0)")
    bar(True)

    e("F_ATT:")
    def dry_exit():
        if DRY:
            e(f"s_cmp_eq_u32 s{S_DRY}, 1")
            e("s_cbranch_scc1 F_REAL")
    def rd_k(i):
        t, s_ = i // 8, i % 8
        r = V_KF + 4 * (i % 4)
        e(f"ds_read_b128 v[{r}:{r+3}], v{V_AK+s_} offset:{8192*t}")
    def cvt_q(s_, lo, hi):
        for qq in range(lo, hi):
            a = V_ACC + 8 * s_ + 2 * qq
            e(f"v_cvt_pk_bf16_f32 v{V_QB + 4*s_ + qq}, v{a}, v{a+1}")
    for i in range(4):
        rd_k(i)
    e(f"s_mov_b32 s{S_TMP}, 0x3e0293ee")
    e(f"s_mov_b32 s{S_TMP+1}, 0x3e0293ee")
    e("s_nop 7")
    cvt_q(0, 0, 4)
    cvt_q(1, 0, 2)
    for i in range(16):
        t, s_ = i // 8, i % 8
        r = V_KF + 4 * (i % 4)
        rem = min(3, 15 - i)
        e(f"s_waitcnt lgkmcnt({rem})")
        acc = V_S + 16 * t
        cc = "0" if s_ == 0 else f"v[{acc}:{acc+15}]"
        b = V_QB + 4 * s_
        e(f"v_mfma_f32_32x32x16_bf16 v[{acc}:{acc+15}], v[{r}:{r+3}], v[{b}:{b+3}], {cc}")
        if i + 4 < 16:
            rd_k(i + 4)
        if i < 7:
            cvt_q(i + 1, 2, 4)
            if i + 2 < 8:
                cvt_q(i + 2, 0, 2)
            else:
                e("s_nop 1")
        if i == 12:
            e(f"v_max3_f32 v{V_M}, v{V_S}, v{V_S+1}, v{V_S+2}")
            e(f"v_max3_f32 v{V_M2}, v{V_S+3}, v{V_S+4}, v{V_S+5}")
        if i == 13:
            e(f"v_max3_f32 v{V_M}, v{V_M}, v{V_S+6}, v{V_S+7}")
            e(f"v_max3_f32 v{V_M2}, v{V_M2}, v{V_S+8}, v{V_S+9}")
        if i == 14:
            e(f"v_max3_f32 v{V_M}, v{V_M}, v{V_S+10}, v{V_S+11}")
            e(f"v_max3_f32 v{V_M2}, v{V_M2}, v{V_S+12}, v{V_S+13}")
        if i == 15:
            e(f"v_max3_f32 v{V_M}, v{V_M}, v{V_S+14}, v{V_S+15}")
    dry_exit()
    stamp()
    e("F_SEG1:")
    def rd_v(u, buf):
        for T in range(4):
            r = V_VF + 16 * buf + 4 * T
            e(f"ds_read_b64_tr_b16 v[{r}:{r+1}], v{V_AV+T} offset:{u*4096}")
            e(f"ds_read_b64_tr_b16 v[{r+2}:{r+3}], v{V_AV+T} offset:{u*4096+2048}")
    if opt("tmaj", "0") == "1":
        for u in range(4):
            r = V_VF + 4 * u
            e(f"ds_read_b64_tr_b16 v[{r}:{r+1}], v{V_AV} offset:{u*4096}")
            e(f"ds_read_b64_tr_b16 v[{r+2}:{r+3}], v{V_AV} offset:{u*4096+2048}")
    else:
        rd_v(0, 0)
    e("s_nop 5")
    for i in range(16, 32, 4):
        e(f"v_max3_f32 v{V_M}, v{V_M}, v{V_S+i}, v{V_S+i+1}")
        e(f"v_max3_f32 v{V_M2}, v{V_M2}, v{V_S+i+2}, v{V_S+i+3}")
    e(f"v_max_f32 v{V_M}, v{V_M}, v{V_M2}")
    e(f"v_mov_b32 v{V_M2}, v{V_M}")
    e("s_nop 1")
    e(f"v_permlane32_swap_b32 v{V_M}, v{V_M2}")
    e("s_nop 1")
    e(f"v_max_f32 v{V_M}, v{V_M}, v{V_M2}")
    e(f"v_mul_f32 v{V_M}, s{S_TMP}, v{V_M}")
    def sm_group(u):
        o = []
        for i in range(8 * u, 8 * u + 8):
            o.append(f"v_fma_f32 v{V_S+i}, v{V_S+i}, s{S_TMP}, -v{V_M}")
        for i in range(8 * u, 8 * u + 8):
            o.append(f"v_exp_f32 v{V_S+i}, v{V_S+i}")
        o.append("s_nop 0")
        for i in range(4):
            o.append(f"v_cvt_pk_bf16_f32 v{V_PB+4*u+i}, v{V_S+8*u+2*i}, v{V_S+8*u+2*i+1}")
        return o
    def sum_group(u):
        o = []
        b = V_S + 8 * u
        if u == 0:
            o.append(f"v_add_f32 v{V_SUM}, v{b}, v{b+1}")
            o.append(f"v_add_f32 v{V_SUM2}, v{b+2}, v{b+3}")
            rest = range(4, 8, 2)
        else:
            rest = range(0, 8, 2)
        for i in rest:
            o.append(f"v_add_f32 v{V_SUM}, v{V_SUM}, v{b+i}")
            o.append(f"v_add_f32 v{V_SUM2}, v{V_SUM2}, v{b+i+1}")
        return o
    if opt("tmaj", "0") == "1":
        def rd_vT(T, buf):
            for u in range(4):
                r = V_VF + 16 * buf + 4 * u
                e(f"ds_read_b64_tr_b16 v[{r}:{r+1}], v{V_AV+T} offset:{u*4096}")
                e(f"ds_read_b64_tr_b16 v[{r+2}:{r+3}], v{V_AV+T} offset:{u*4096+2048}")
        for u in range(4):
            for x in sm_group(u): e(x)
            for x in sum_group(u): e(x)
        for x in [f"v_add_f32 v{V_SUM}, v{V_SUM}, v{V_SUM2}", f"v_mov_b32 v{V_SUM2}, v{V_SUM}", "s_nop 1",
                  f"v_permlane32_swap_b32 v{V_SUM}, v{V_SUM2}", "s_nop 1",
                  f"v_add_f32 v{V_SUM}, v{V_SUM}, v{V_SUM2}", f"v_rcp_f32 v{V_RS}, v{V_SUM}", "s_nop 0",
                  f"v_mov_b32 v{V_RS+1}, v{V_RS}"]:
            e(x)
        e(f"s_add_u32 s{S_TMP+1}, s{S_X1}, 4096")
        def fin_tile(T):
            o = []
            for ks in (2 * T, 2 * T + 1):
                a = V_ACC + 8 * ks
                d = V_BX + 4 * ks
                for i in range(4):
                    o.append(f"v_pk_mul_f32 v[{a+2*i}:{a+2*i+1}], v[{a+2*i}:{a+2*i+1}], v[{V_RS}:{V_RS+1}]")
                for i in range(4):
                    o.append(f"v_cvt_pk_bf16_f32 v{d+i}, v{a+2*i}, v{a+2*i+1}")
                so = S_X1 if ks < 4 else S_TMP + 1
                o.append(f"buffer_store_dwordx4 v[{d}:{d+3}], v{V_ST}, s[{S_A}:{S_A+3}], s{so} offen offset:{1024*(ks&3)} sc1")
            return o
        for T in range(4):
            buf = T & 1
            e("s_waitcnt lgkmcnt(0)")
            fill = fin_tile(T - 1) if T >= 1 else []
            for u in range(4):
                a = V_VF + 16 * buf + 4 * u
                b = V_PB + 4 * u
                acc = V_ACC + 16 * T
                cc = "0" if u == 0 else f"v[{acc}:{acc+15}]"
                e(f"v_mfma_f32_32x32x16_bf16 v[{acc}:{acc+15}], v[{a}:{a+3}], v[{b}:{b+3}], {cc}")
                if u == 0:
                    if T + 1 < 4:
                        rd_vT(T + 1, buf ^ 1)
                    else:
                        e("s_nop 7")
                    e("s_nop 1")
                elif fill:
                    n = 6
                    for x in fill[(u - 1) * n:u * n]:
                        e(x)
        e("s_nop 7")
        e("s_nop 3")
        for x in fin_tile(3): e(x)
        for i in range(8):
            e(f"v_mov_b32 v{V_ACC2+24+i}, 0")
        stamp()
    else:
        for x in sm_group(0): e(x)
        e("s_nop 0")
        for u in range(4):
            buf = u & 1
            if u == 2:
                dry_exit()
                e("F_SEG2:")
            e("s_waitcnt lgkmcnt(0)")
            fill = []
            if u + 1 < 4:
                fill = sm_group(u + 1) + sum_group(u)
            else:
                fill = sum_group(u) + [f"v_add_f32 v{V_SUM}, v{V_SUM}, v{V_SUM2}", f"v_mov_b32 v{V_SUM2}, v{V_SUM}", "s_nop 1",
                                       f"v_permlane32_swap_b32 v{V_SUM}, v{V_SUM2}", "s_nop 1",
                                       f"v_add_f32 v{V_SUM}, v{V_SUM}, v{V_SUM2}", f"v_rcp_f32 v{V_RS}, v{V_SUM}", "s_nop 0",
                                       f"v_mov_b32 v{V_RS+1}, v{V_RS}"]
            per = (len(fill) + 3) // 4
            for T in range(4):
                a = V_VF + 16 * buf + 4 * T
                b = V_PB + 4 * u
                acc = V_ACC + 16 * T
                cc = "0" if u == 0 else f"v[{acc}:{acc+15}]"
                e(f"v_mfma_f32_32x32x16_bf16 v[{acc}:{acc+15}], v[{a}:{a+3}], v[{b}:{b+3}], {cc}")
                if T == 0 and u + 1 < 4:
                    rd_v(u + 1, buf ^ 1)
                for x in fill[T * per:(T + 1) * per]:
                    e(x)
            if u + 1 < 4:
                e("s_nop 1")
        e("s_nop 3")
        for i in range(8):
            e(f"v_mov_b32 v{V_ACC2+24+i}, 0")
        for ks in range(8):
            a = V_ACC + 8 * ks
            d = V_BX + 4 * ks
            for i in range(4):
                e(f"v_pk_mul_f32 v[{a+2*i}:{a+2*i+1}], v[{a+2*i}:{a+2*i+1}], v[{V_RS}:{V_RS+1}]")
            for i in range(4):
                e(f"v_cvt_pk_bf16_f32 v{d+i}, v{a+2*i}, v{a+2*i+1}")
        dry_exit()
        stamp()
        if int(opt("xdel", "0")):
            nd = int(opt("xdel", "0"))
            e(f"s_lshr_b32 s{S_TMP}, s2, {opt('xsh', '7')}")
            e(f"s_mul_i32 s{S_TMP}, s{S_TMP}, {nd}")
            e("XD_L:")
            e(f"s_cmp_eq_u32 s{S_TMP}, 0")
            e("s_cbranch_scc1 XD_X")
            e("s_sleep 2")
            e(f"s_sub_u32 s{S_TMP}, s{S_TMP}, 1")
            e("s_branch XD_L")
            e("XD_X:")
        e(f"s_add_u32 s{S_TMP+1}, s{S_X1}, 4096")
        for ks in range(8):
            d = V_BX + 4 * ks
            so = S_X1 if ks < 4 else S_TMP + 1
            e(f"buffer_store_dwordx4 v[{d}:{d+3}], v{V_ST}, s[{S_A}:{S_A+3}], s{so} offen offset:{1024*(ks&3)} sc1")
    e(f"s_mov_b32 s{S_CNT}, 0")
    bar()
    for i in range(24):
        e(f"v_mov_b32 v{V_ACC2+i}, 0")
    e("s_mov_b64 exec, 1")
    e("F_TOKL:")
    e(f"buffer_load_dwordx2 v[{V_TOK}:{V_TOK+1}], v{V_ZERO}, s[{S_B}:{S_B+3}], 0 offen sc0 sc1")
    e("s_waitcnt vmcnt(0)")
    e(f"v_readfirstlane_b32 s{S_TOK}, v{V_TOK}")
    e(f"v_readfirstlane_b32 s{S_TOK+1}, v{V_TOK+1}")
    e(f"s_add_u32 s{S_CNT}, s{S_CNT}, 1")
    e(f"s_cmp_gt_u32 s{S_CNT}, {SPIN}")
    e("s_cbranch_scc1 F_TOKX")
    e(f"s_cmp_eq_u32 s{S_TOK}, 0")
    e("s_cbranch_scc1 F_TOKL")
    e("F_TOKX:")
    stamp()
    e(f"s_add_u32 s{S_TMP}, s{S_T2}, {F1_OFF}")
    e(f"s_add_u32 s{S_TMP+1}, s{S_T2}, {F1A_OFF}")
    e("s_mov_b64 exec, 1")
    e(f"buffer_store_dwordx2 v[{V_TOK}:{V_TOK+1}], v{V_ZERO}, s[{S_A}:{S_A+3}], s{S_TMP+1} offen")
    e(f"buffer_store_dwordx2 v[{V_TOK}:{V_TOK+1}], v{V_ZERO}, s[{S_A}:{S_A+3}], s{S_TMP} offen sc1")
    e("s_mov_b64 exec, -1")
    if opt("opf", "0") == "1":
        e(f"v_lshlrev_b32 v{V_T2}, 7, v{V_LANE}")
        e(f"buffer_load_dword v{V_T3}, v{V_T2}, s[{S_A}:{S_A+3}], s{S_X1} offen {opt('opfflags', '')}")
    bar()
    poll_loop("F_P1", V_FA1A, S_A, "sc1", V_FA1)
    stamp()

    D = int(opt("p2d", "12"))
    def slot_reg(sl):
        return (V_BX if sl < 8 else V_BY) + 4 * (sl & 7)
    def blk_base(sreg, jadd):
        e(f"s_add_u32 s{sreg}, s{S_HL}, s{S_J}")
        e(f"s_add_u32 s{sreg}, s{sreg}, {jadd}")
        e(f"s_and_b32 s{sreg}, s{sreg}, 7")
        e(f"s_lshl_b32 s{sreg}, s{sreg}, 18")
        e(f"s_add_u32 s{sreg}, s{sreg}, s{S_X0}")
        if jadd >= 2:
            e(f"s_cmp_ge_u32 s{S_J}, 6")
            e(f"s_cselect_b32 s{sreg}, 0x40000000, s{sreg}")
    def ld(sl, sreg, ks):
        b = slot_reg(sl)
        vo = V_ST if ks < 4 else V_T1
        e(f"buffer_load_dwordx4 v[{b}:{b+3}], v{vo}, s[{S_A}:{S_A+3}], s{sreg} offen offset:{1024*(ks&3)} {SIBF}")
    def rd_o(step, buf):
        off = step * 2048
        for T in range(2):
            r = V_FO + 8 * buf + 4 * T
            e(f"ds_read_b64_tr_b16 v[{r}:{r+1}], v{V_AO+T} offset:{off}")
            e(f"ds_read_b64_tr_b16 v[{r+2}:{r+3}], v{V_AO+T} offset:{off + 512}")
    SB = (36, 37, 38)
    e(f"s_mov_b32 s{S_J}, 0")
    e(f"v_add_u32 v{V_T1}, 4096, v{V_ST}")
    blk_base(SB[0], 1)
    for ks in range(D - 8):
        ld(8 + ks, SB[0], ks)
    PD = int(opt("pd", "3"))
    for i in range(PD):
        rd_o(i, i)
    e("P2_L:")
    blk_base(SB[1], 2)
    blk_base(SB[2], 3)
    LA = D
    def rd_o1(step, buf, T):
        off = step * 2048
        r = V_FO + 8 * buf + 4 * T
        e(f"ds_read_b64_tr_b16 v[{r}:{r+1}], v{V_AO+T} offset:{off}")
        e(f"ds_read_b64_tr_b16 v[{r+2}:{r+3}], v{V_AO+T} offset:{off + 512}")
    for l in range(16):
        buf = l & 3
        e(f"s_waitcnt vmcnt({LA - 1}) lgkmcnt({4 * (PD - 1)})")
        for T in range(2):
            a = V_FO + 8 * buf + 4 * T
            b = slot_reg(l)
            acc = V_ACC2 + 16 * T
            e(f"v_mfma_f32_32x32x16_bf16 v[{acc}:{acc+15}], v[{a}:{a+3}], v[{b}:{b+3}], v[{acc}:{acc+15}]")
            rd_o1(l + PD, (l + PD) & 3, T)
            if T == 0:
                e(f"__LOAD{l}__")
    e(f"v_add_u32 v{V_AO}, 0x8000, v{V_AO}")
    e(f"v_add_u32 v{V_AO+1}, 0x8000, v{V_AO+1}")
    e(f"s_mov_b32 s{SB[0]}, s{SB[2]}")
    e(f"s_add_u32 s{S_J}, s{S_J}, 2")
    e(f"s_cmp_lt_u32 s{S_J}, 8")
    e("s_cbranch_scc1 P2_L")
    if DRY:
        e(f"s_cmp_eq_u32 s{S_DRY}, 0")
        e("s_cbranch_scc1 F_X2")
        e(f"v_subrev_u32 v{V_AO}, 0x8000, v{V_AO}")
        e(f"v_subrev_u32 v{V_AO+1}, 0x8000, v{V_AO+1}")
        e("s_branch F_REAL")
        e("F_X2:")
    e("s_waitcnt lgkmcnt(0)")
    e("s_nop 7")
    e("s_nop 3")
    stamp()
    out = []
    for line in L:
        t = line.strip()
        if t.startswith("__LOAD"):
            l = int(t[6:-2])
            tgt = l + LA
            sl = tgt & 15
            blk = tgt >> 3
            sreg = SB[blk - 1]
            ks = tgt & 7
            b = slot_reg(sl)
            vo = V_ST if ks < 4 else V_T1
            ins = f"    buffer_load_dwordx4 v[{b}:{b+3}], v{vo}, s[{S_A}:{S_A+3}], s{sreg} offen offset:{1024*(ks&3)} {SIBF}"
            out.append(ins)
        elif t.startswith("__WAITB"):
            out += [f"    s_waitcnt vmcnt({LA - 1})"]
        else:
            out.append(line)
    L[:] = out
    V_ENC = 136
    V_CK = 96
    V_RC = 152
    V_SC = 164
    VX = 124
    V_L8 = V_T2
    DPPS = ["quad_perm:[1,0,3,2]", "quad_perm:[2,3,0,1]", "row_half_mirror", "row_mirror"]
    A2 = V_ACC2
    e("s_waitcnt vmcnt(0)")
    e(f"v_max3_f32 v{V_M}, |v{A2}|, |v{A2+1}|, |v{A2+2}|")
    e(f"v_max3_f32 v{V_M2}, |v{A2+3}|, |v{A2+4}|, |v{A2+5}|")
    for i in range(6, 30, 4):
        e(f"v_max3_f32 v{V_M}, v{V_M}, |v{A2+i}|, |v{A2+i+1}|")
        e(f"v_max3_f32 v{V_M2}, v{V_M2}, |v{A2+i+2}|, |v{A2+i+3}|")
    e(f"v_max3_f32 v{V_M}, v{V_M}, |v{A2+30}|, |v{A2+31}|")
    e(f"v_max_f32 v{V_M}, v{V_M}, v{V_M2}")
    sal = [f"s_andn2_b32 s{S_BASE}, s2, 3", f"s_lshl_b32 s{S_BASE}, s{S_BASE}, 2",
           f"s_add_u32 s{S_BASE}, s{S_BASE}, s{S_G4}", f"s_lshl_b32 s{S_BASE}, s{S_BASE}, 2",
           f"s_add_u32 s{S_BASE}, s{S_BASE}, s{S_WV}", f"s_lshl_b32 s{S_LO}, s{S_BASE}, 6",
           f"s_add_u32 s{S_LO}, s{S_LO}, {CK_OFF}", f"s_lshl_b32 s{S_BASE}, s{S_BASE}, 10"]
    for i, d in enumerate(DPPS):
        e(sal[2 * i]); e(sal[2 * i + 1])
        e(f"v_max_u32_dpp v{V_M}, v{V_M}, v{V_M} {d} row_mask:0xf bank_mask:0xf")
    e(f"s_add_u32 s{S_BASE}, s{S_BASE}, {PX_OFF}")
    e(f"v_lshrrev_b32 v{V_M}, 23, v{V_M}")
    e(f"v_max_u32 v{V_M}, 15, v{V_M}")
    e(f"v_sub_u32 v{V_SC}, 0x10c, v{V_M}")
    e(f"v_lshlrev_b32 v{V_SC}, 23, v{V_SC}")
    e(f"v_mov_b32 v{V_SC+1}, v{V_SC}")
    e(f"v_subrev_u32 v{V_SC+2}, 14, v{V_M}")
    e(f"v_lshlrev_b32 v{V_SC+2}, 23, v{V_SC+2}")
    e(f"v_lshrrev_b32 v{V_L8}, 4, v{V_LANE}")
    e(f"v_lshlrev_b32 v{V_L8}, 4, v{V_L8}")
    for qd in range(4):
        a = A2 + 8 * qd
        h = V_ENC + 4 * qd
        e(f"s_cmp_eq_u32 s{S_G4}, {qd}")
        e(f"s_cbranch_scc1 F_SK{qd}")
        e(f"s_add_u32 s{S_TMP}, s{S_BASE}, {qd * 16384}")
        for i in range(4):
            e(f"v_pk_mul_f32 v[{a+2*i}:{a+2*i+1}], v[{a+2*i}:{a+2*i+1}], v[{V_SC}:{V_SC+1}]")
        for i in range(4):
            e(f"v_cvt_pk_f16_f32 v{h+i}, v{a+2*i}, v{a+2*i+1}")
        e(f"buffer_store_dwordx4 v[{h}:{h+3}], v{V_ST}, s[{S_A}:{S_A+3}], s{S_TMP} offen sc1")
        e(f"s_branch F_SE{qd}")
        e(f"F_SK{qd}:")
        for i in range(8):
            e(f"v_mov_b32 v{V_FIN+i}, v{a+i}")
        e(f"F_SE{qd}:")
    for qd in range(4):
        h = V_ENC + 4 * qd
        c = V_CK + 4 * qd
        e(f"v_bitop3_b32 v{c}, v{h}, v{h+1}, v{h+2} bitop3:0x96")
        e(f"v_xor_b32 v{c}, v{c}, v{h+3}")
        e(f"v_mov_b32 v{c+1}, s{S_TOK}")
        e(f"v_mov_b32 v{c+2}, v{V_SC+2}")
    for d in DPPS:
        for qd in range(4):
            c = V_CK + 4 * qd
            e(f"v_xor_b32_dpp v{c}, v{c}, v{c} {d} row_mask:0xf bank_mask:0xf")
    for qd in range(4):
        c = V_CK + 4 * qd
        e(f"v_bitop3_b32 v{c}, v{c}, v{c+2}, s{S_TOK+1} bitop3:0x96")
    e("s_mov_b32 exec_lo, 0x00010001")
    e("s_mov_b32 exec_hi, 0x00010001")
    for qd in range(4):
        c = V_CK + 4 * qd
        e(f"buffer_store_dwordx3 v[{c}:{c+2}], v{V_L8}, s[{S_A}:{S_A+3}], s{S_LO} offen offset:{qd*1024} sc1")
    e("s_mov_b64 exec, -1")
    stamp()
    e(f"s_lshl_b32 s{S_BASE}, s2, 4")
    e(f"s_add_u32 s{S_BASE}, s{S_BASE}, s{S_WV}")
    e(f"s_lshl_b32 s{S_LO}, s{S_BASE}, 6")
    e(f"s_add_u32 s{S_LO}, s{S_LO}, {CK_OFF}")
    e(f"s_lshl_b32 s{S_BASE}, s{S_BASE}, 10")
    e(f"s_add_u32 s{S_BASE}, s{S_BASE}, {PX_OFF}")
    SD = (32, 33, 34); SC = (36, 37, 38)
    for n in range(3):
        e(f"s_add_u32 s{S_TMP}, s{S_G4}, {n+1}")
        e(f"s_and_b32 s{S_TMP}, s{S_TMP}, 3")
        e(f"s_lshl_b32 s{SC[n]}, s{S_TMP}, 8")
        e(f"s_add_u32 s{SC[n]}, s{SC[n]}, s{S_LO}")
        e(f"s_lshl_b32 s{SD[n]}, s{S_TMP}, 12")
        e(f"s_add_u32 s{SD[n]}, s{SD[n]}, s{S_BASE}")
    e(f"v_add_u32 v{V_T3}, s{S_G4}, v{V_LANE}")
    e(f"v_add_u32 v{V_T3}, 1, v{V_T3}")
    e(f"v_and_b32 v{V_T3}, 3, v{V_T3}")
    e(f"v_lshlrev_b32 v{V_T3}, 8, v{V_T3}")
    e(f"s_mov_b32 s{S_CNT}, 0")
    e("s_mov_b64 exec, 7")
    e("F_P2:")
    e(f"buffer_load_dword v{V_FV}, v{V_T3}, s[{S_A}:{S_A+3}], s{S_LO} offen offset:52 sc0 sc1")
    e(f"s_add_u32 s{S_CNT}, s{S_CNT}, 1")
    e("s_waitcnt vmcnt(0)")
    e(f"v_cmp_ne_u32 vcc, s{S_TOK}, v{V_FV}")
    e(f"s_cmp_gt_u32 s{S_CNT}, {SPIN}")
    e("s_cbranch_scc1 F_P2X")
    e("s_nop 2")
    e("s_cbranch_vccnz F_P2")
    e("F_P2X:")
    e("s_mov_b64 exec, -1")
    stamp()
    if STAMPS: e(f"v_writelane_b32 v231, s{S_CNT}, 12")
    def rx_all(rf):
        for n in range(3):
            b = V_PR + 4 * n
            e(f"buffer_load_dwordx4 v[{b}:{b+3}], v{V_ST}, s[{S_A}:{S_A+3}], s{SD[n]} offen {rf}")
            e(f"buffer_load_dwordx3 v[{V_RC+4*n}:{V_RC+4*n+2}], v{V_L8}, s[{S_A}:{S_A+3}], s{SC[n]} offen {rf}")
    rx_all(opt("rxflags", "sc1"))
    e("s_branch F_RV")
    e("F_RX:")
    rx_all("sc0 sc1")
    e("F_RV:")
    e(f"s_add_u32 s{S_CNT}, s{S_CNT}, 1")
    for n in range(3):
        e(f"s_waitcnt vmcnt({2*(2-n)})")
        b = V_PR + 4 * n
        c = VX + n
        e(f"v_bitop3_b32 v{c}, v{b}, v{b+1}, v{b+2} bitop3:0x96")
        e(f"v_xor_b32 v{c}, v{c}, v{b+3}")
    e("s_nop 1")
    for d in DPPS:
        for n in range(3):
            c = VX + n
            e(f"v_xor_b32_dpp v{c}, v{c}, v{c} {d} row_mask:0xf bank_mask:0xf")
    for n in range(3):
        c = VX + n
        r = V_RC + 4 * n
        e(f"v_bitop3_b32 v{c}, v{c}, v{r}, s{S_TOK+1} bitop3:0x96")
        e(f"v_xor_b32 v{c}, v{c}, v{r+2}")
        e(f"v_xor_b32 v{r+1}, s{S_TOK}, v{r+1}")
    e(f"v_or3_b32 v{V_T3}, v{VX}, v{VX+1}, v{VX+2}")
    e(f"v_or3_b32 v{V_T3}, v{V_T3}, v{V_RC+1}, v{V_RC+5}")
    e(f"v_or_b32 v{V_T3}, v{V_T3}, v{V_RC+9}")
    e(f"v_cmp_ne_u32 vcc, 0, v{V_T3}")
    e(f"s_cmp_gt_u32 s{S_CNT}, {SPIN}")
    e("s_cbranch_scc1 F_RXX")
    e("s_nop 2")
    e("s_cbranch_vccnz F_RX")
    e("F_RXX:")
    if STAMPS:
        e(f"v_writelane_b32 v231, s{S_CNT}, 13")
        stamp()
    e(f"s_lshl_b32 s{S_TMP}, s{S_RB}, 17")
    e(f"s_lshl_b32 s{S_TMP+1}, s{S_HL}, 7")
    e(f"s_add_u32 s{S_TMP}, s{S_TMP}, s{S_TMP+1}")
    e(f"s_lshl_b32 s{S_TMP+1}, s{S_G4}, 5")
    e(f"s_add_u32 s{S_TMP}, s{S_TMP}, s{S_TMP+1}")
    for n in range(3):
        b = V_PR + 4 * n
        inv = V_RC + 4 * n + 2
        for i in range(4):
            e(f"v_fma_mix_f32 v{V_FIN+2*i}, v{b+i}, v{inv}, v{V_FIN+2*i} op_sel_hi:[1,0,0]")
            e(f"v_fma_mix_f32 v{V_FIN+2*i+1}, v{b+i}, v{inv}, v{V_FIN+2*i+1} op_sel:[1,0,0] op_sel_hi:[1,0,0]")
    for i in range(4):
        e(f"v_cvt_pk_bf16_f32 v{V_FIN+8+i}, v{V_FIN+2*i}, v{V_FIN+2*i+1}")
    e(f"buffer_store_dwordx4 v[{V_FIN+8}:{V_FIN+11}], v{V_OUT}, s[{S_C}:{S_C+3}], s{S_TMP} offen")
    stamp_flush()
    e("F_DONE:")
    e("s_endpgm")
    L.append(kd(name, NVGPR))


DESC = """; ---------------------------------------------------------------------------------------------
; ---------------------------------------------------------------------------------------------
"""

def main():
    out = sys.argv[1]
    hdr = HEADER
    hdr += "; @launch grid=(256,1,1) block=(512,1,1) lds=163840\n"
    hdr += '.amdgcn_target "amdgcn-amd-amdhsa--gfx950"\n'
    hdr += DESC
    fused()
    open(out, "w").write(hdr + "\n".join(L) + "\n")

main()
```

```python
import sys

HEADER = """; Kernarg layout for this problem (64 bytes, ptrs only, base s[0:1]):
"""
KNAME = "standalone__gqa_block_cached__near_ridge_kernel"
ARGS = sys.argv[2:]
def opt(name, default):
    for a in ARGS:
        if a.startswith(name + "="):
            return a.split("=", 1)[1].replace("_", " ")
    return default

L = []
def e(s=""):
    L.append("    " + s if s and not s.endswith(":") else s)

def kd(name, vgpr, sgpr=100):
    acc = (vgpr + 3) // 4 * 4
    return f""".section .rodata,"a"
.p2align 6
.amdhsa_kernel {name}
  .amdhsa_next_free_vgpr {vgpr}
  .amdhsa_next_free_sgpr {sgpr}
  .amdhsa_accum_offset {acc}
  .amdhsa_group_segment_fixed_size 0
  .amdhsa_kernarg_size 64
  .amdhsa_user_sgpr_count 2
  .amdhsa_user_sgpr_kernarg_segment_ptr 1
  .amdhsa_system_sgpr_workgroup_id_x 1
.end_amdhsa_kernel
"""

def srd(d, b, nbytes, extra_off=None):
    if extra_off:
        e(f"s_add_u32 s{d}, s{b}, {extra_off}")
        e(f"s_addc_u32 s{d+1}, s{b+1}, 0")
    else:
        e(f"s_mov_b32 s{d}, s{b}")
        e(f"s_mov_b32 s{d+1}, s{b+1}")
    e(f"s_mov_b32 s{d+2}, {nbytes}")
    e(f"s_mov_b32 s{d+3}, 0x00020000")

STAMPS = "--stamps" in ARGS
NST = [0]
S_WV = 42
def stamp(real=False):
    if not STAMPS: return
    i = NST[0]; NST[0] += 1
    assert i < 17, "too many stamps"
    e(f"{'s_memrealtime' if real else 's_memtime'} s[{62+2*i}:{63+2*i}]")

def stamp_flush():
    if not STAMPS: return
    e("s_waitcnt vmcnt(0) lgkmcnt(0)")
    stamp(False)
    stamp(True)
    n = NST[0]
    e("s_waitcnt lgkmcnt(0)")
    srd(20, 18, 1 << 20, extra_off=(64 << 20))
    e(f"s_lshl_b32 s3, s2, 3")
    e(f"s_add_u32 s3, s3, s{S_WV}")
    e(f"s_lshl_b32 s3, s3, 8")
    e("v_and_b32 v2, 63, v0")
    e("v_lshlrev_b32 v2, 2, v2")
    e("s_mov_b64 exec, 0xffff")
    e("buffer_store_dword v231, v2, s[20:23], s3 offen offset:192")
    e("s_mov_b64 exec, -1")
    e("v_mov_b32 v2, 0")
    e("s_mov_b64 exec, 1")
    for i in range(n):
        e(f"v_mov_b32 v4, s{62+2*i}")
        e(f"v_mov_b32 v5, s{63+2*i}")
        e(f"buffer_store_dwordx2 v[4:5], v2, s[20:23], s3 offen offset:{8*i}")
        e("s_nop 1")

def bar(st=False):
    if st: stamp()
    e("s_barrier")

def lend(rem=0):
    if STAMPS:
        for _ in range(rem):
            e("s_barrier")
    stamp_flush()
    NST[0] = 2
    e("s_endpgm")

PX_OFF = 8 << 20
F1_OFF = 16 << 20
F1A_OFF = F1_OFF + (512 << 10)
F2_OFF = 17 << 20
CK_OFF = 18 << 20
WS_BYTES = 20 << 20
WQ_BASE, X_BASE, K_BASE, V_BASE = 0, 49152, 98304, 131072

V_LANE = 1
V_T0, V_T1, V_T2, V_T3 = 2, 3, 4, 5
V_ST = 6
V_OUT = 7
V_AX = 8
V_AW = 12
V_AK = 16
V_AV = 24
V_AO = 28
V_ZERO = 30
V_FX = 32
V_FW = 40
V_ACC = 72
V_S = 136
V_QB = 168
V_KF = 200
V_PB = 168
V_VF = 32
V_M, V_M2, V_SUM, V_SUM2 = 216, 217, 218, 219
V_TOK = 220
V_FA1 = 222
V_FA2 = 223
V_FV = 224
V_FA1A = 226
V_BX = 136
V_BY = 32
V_BZ = 64
V_BW = 96
V_ACC2 = 168
V_FO = 64
V_PR = 72
V_FIN = 112
V_MM = 228
V_RS = 228
NVGPR = 232

S_A, S_B, S_C, S_D = 20, 24, 28, 32
S_H, S_RB = 40, 41
S_HL, S_G4 = 43, 44
S_DRY = 45
S_TMP = 46
S_ROT = 48
S_BASE = 49
S_CNT = 50
S_LO = 51
S_TOK = 52
S_T2 = 54
S_I = 55
S_X0, S_X1 = 56, 57
S_J = 58
S_DEL = 59
S_SK0 = 39

SPIN = int(opt('spin', '200000'))
SIBF = opt('sibflags', 'sc1')


def poll_loop(label, vaddr, srd_reg, flags="sc1", vaddr2=None, mask=255):
    e(f"s_mov_b32 s{S_CNT}, 0")
    e(f"s_mov_b64 exec, {mask}")
    e(f"{label}:")
    if vaddr2 is not None:
        e(f"s_and_b32 s{S_TMP}, s{S_CNT}, 7")
        e(f"s_cmp_eq_u32 s{S_TMP}, 7")
        e(f"s_cbranch_scc1 {label}_B")
    e(f"buffer_load_dwordx2 v[{V_FV}:{V_FV+1}], v{vaddr}, s[{srd_reg}:{srd_reg+3}], 0 offen {flags}")
    if vaddr2 is not None:
        e(f"s_branch {label}_C")
        e(f"{label}_B:")
        e(f"buffer_load_dwordx2 v[{V_FV}:{V_FV+1}], v{vaddr2}, s[{srd_reg}:{srd_reg+3}], 0 offen sc0 sc1")
        e(f"{label}_C:")
    e(f"s_add_u32 s{S_CNT}, s{S_CNT}, 1")
    e("s_waitcnt vmcnt(0)")
    e(f"v_cmp_ne_u64 vcc, s[{S_TOK}:{S_TOK+1}], v[{V_FV}:{V_FV+1}]")
    e(f"s_cmp_gt_u32 s{S_CNT}, {SPIN}")
    e(f"s_cbranch_scc1 {label}_X")
    e("s_nop 2")
    e(f"s_cbranch_vccz {label}_X")
    if opt("psleep", "0") != "0":
        e(f"s_sleep {opt('psleep', '0')}")
    e(f"s_branch {label}")
    e(f"{label}_X:")
    e("s_mov_b64 exec, -1")


def issue8(vbase, srd_reg, soff, flags):
    e(f"s_mov_b32 m0, s{S_LO}")
    e(f"s_add_u32 s{S_TMP+1}, s{S_LO}, 4096")
    for j in range(4):
        e(f"buffer_load_dwordx4 v{vbase+j}, s[{srd_reg}:{srd_reg+3}], s{soff} offen offset:{1024*j} {flags} lds")
    e(f"s_mov_b32 m0, s{S_TMP+1}")
    e("s_nop 0")
    for j in range(4):
        e(f"buffer_load_dwordx4 v{vbase+4+j}, s[{srd_reg}:{srd_reg+3}], s{soff} offen offset:{1024*j} {flags} lds")


def ring_adv(base):
    e(f"s_add_u32 s{S_LO}, s{S_LO}, 8192")
    e(f"s_cmp_eq_u32 s{S_LO}, {base + 49152}")
    e(f"s_cselect_b32 s{S_LO}, {base}, s{S_LO}")


def wo_loader(half, tag):
    e(f"v_lshrrev_b32 v{V_T1}, 3, v{V_LANE}")
    e(f"v_and_b32 v{V_T2}, 7, v{V_LANE}")
    e(f"v_bfe_u32 v{V_T3}, v{V_LANE}, 4, 1")
    e(f"v_lshlrev_b32 v{V_T3}, 2, v{V_T3}")
    e(f"v_xor_b32 v{V_T2}, v{V_T2}, v{V_T3}")
    e(f"v_lshlrev_b32 v{V_T2}, 4, v{V_T2}")
    e(f"v_lshl_add_u32 v24, v{V_T1}, 10, v{V_T2}")
    for i in range(1, 8):
        e(f"v_add_u32 v{24+i}, {8*i*1024 - 1024*(i&3)}, v24")
    srd(S_B, 12, 4 << 20)
    e(f"s_lshl_b32 s{S_BASE}, s{S_G4}, 20")
    e(f"s_lshl_b32 s{S_TMP}, s{S_HL}, 7")
    e(f"s_add_u32 s{S_BASE}, s{S_BASE}, s{S_TMP}")
    if half:
        e(f"s_add_u32 s{S_BASE}, s{S_BASE}, 65536")
    e(f"s_mov_b32 s{S_LO}, {half * 8192}")
    e(f"s_mov_b32 s{S_J}, 0")
    bar()
    bar(True)
    e(f"WO_L{tag}:")
    e(f"s_add_u32 s{S_TMP}, s{S_HL}, s{S_J}")
    e(f"s_and_b32 s{S_TMP}, s{S_TMP}, 7")
    e(f"s_lshl_b32 s{S_TMP}, s{S_TMP}, 17")
    e(f"s_add_u32 s{S_TMP}, s{S_TMP}, s{S_BASE}")
    e(f"s_waitcnt vmcnt({int(opt('wothr', '16'))})")
    issue8(24, S_B, S_TMP, opt("woflags", ""))
    e(f"s_add_u32 s{S_LO}, s{S_LO}, 16384")
    e(f"s_add_u32 s{S_J}, s{S_J}, 1")
    e(f"s_cmp_lg_u32 s{S_J}, 6")
    e(f"s_cbranch_scc1 WO_N{tag}")
    bar(True)
    e(f"WO_N{tag}:")
    e(f"s_cmp_lt_u32 s{S_J}, 8")
    e(f"s_cbranch_scc1 WO_L{tag}")
    e("s_waitcnt vmcnt(0)")
    bar(True)
    lend()


def fused():
    name = KNAME
    NST[0] = 0
    e(".text")
    e(f".globl {name}")
    e(".p2align 8")
    e(f".type {name},@function")
    e(f"{name}:")
    e("s_cmp_ge_u32 s2, 256")
    e("s_cbranch_scc1 F_DONE")
    stamp(True)
    stamp()
    e("s_load_dwordx16 s[4:19], s[0:1], 0")
    e(f"v_and_b32 v{V_LANE}, 63, v0")
    if STAMPS: e("v_mov_b32 v231, 0")
    e(f"v_lshrrev_b32 v{V_T0}, 6, v0")
    e(f"s_and_b32 s{S_G4}, s2, 3")
    e(f"v_readfirstlane_b32 s{S_WV}, v{V_T0}")
    e(f"s_lshr_b32 s{S_I}, s2, 3")
    e(f"s_and_b32 s{S_HL}, s{S_I}, 7")
    e(f"s_lshl_b32 s{S_H}, s{S_G4}, 3")
    e(f"s_add_u32 s{S_H}, s{S_H}, s{S_HL}")
    e(f"s_lshr_b32 s{S_TMP}, s2, 6")
    e(f"s_and_b32 s{S_RB}, s2, 4")
    e(f"s_add_u32 s{S_RB}, s{S_RB}, s{S_TMP}")
    e(f"s_lshl_b32 s{S_ROT}, s{S_TMP}, 1")
    e(f"s_add_u32 s{S_ROT}, s{S_ROT}, s{S_HL}")
    e(f"s_and_b32 s{S_ROT}, s{S_ROT}, 7")
    e(f"s_lshl_b32 s{S_ROT}, s{S_ROT}, 1")
    if opt("rot", "0") == "0":
        e(f"s_mov_b32 s{S_ROT}, 0")
    e(f"s_cmp_lt_u32 s{S_WV}, 4")
    e("s_cbranch_scc1 F_COMPUTE")
    e(f"s_cmp_eq_u32 s{S_WV}, 5")
    e("s_cbranch_scc1 F_LX")
    e(f"s_cmp_gt_u32 s{S_WV}, 5")
    e("s_cbranch_scc1 F_LKV")

    e(f"s_lshl_b32 s{S_BASE}, s{S_H}, 8")
    e(f"v_lshrrev_b32 v{V_T1}, 4, v{V_LANE}")
    e(f"v_and_b32 v{V_T2}, 15, v{V_LANE}")
    e(f"v_lshlrev_b32 v{V_T3}, 2, v{V_T1}")
    e(f"v_xor_b32 v{V_T2}, v{V_T2}, v{V_T3}")
    e(f"v_lshlrev_b32 v{V_T2}, 4, v{V_T2}")
    e(f"v_lshl_add_u32 v8, v{V_T1}, 13, v{V_T2}")
    for j in range(1, 8):
        e(f"v_add_u32 v{8+j}, {(4*j << 13) - 1024*(j & 3)}, v8")
    e(f"s_mov_b32 s{S_LO}, {WQ_BASE}")
    e(f"s_mov_b32 s{S_J}, 0")
    e("s_waitcnt lgkmcnt(0)")
    stamp()
    srd(S_A, 10, 4 << 20)
    DW = int(opt("dw", "3"))
    wqf = opt("wqflags", "")
    def w_issue():
        e(f"s_add_u32 s{S_TMP}, s{S_ROT}, s{S_J}")
        e(f"s_and_b32 s{S_TMP}, s{S_TMP}, 15")
        e(f"s_lshl_b32 s{S_TMP}, s{S_TMP}, 18")
        e(f"s_add_u32 s{S_TMP}, s{S_TMP}, s{S_BASE}")
        issue8(8, S_A, S_TMP, wqf)
        ring_adv(WQ_BASE)
        e(f"s_add_u32 s{S_J}, s{S_J}, 1")
    def ring_loader(tag, issue, D, need_of, free_ok):
        for J in range(D, 16):
            assert free_ok(J, J - D - 1), (tag, J)
        waits = set()
        for J in range(D, 16):
            r = J - D - 1
            waits.add(8 * (J - 1 - need_of(r)))
        w = min(waits)
        e(f"{tag}_L:")
        e(f"s_cmp_lt_u32 s{S_J}, {D}")
        e(f"s_cbranch_scc1 {tag}_I")
        e(f"s_waitcnt vmcnt({w})")
        e("s_barrier")
        e(f"{tag}_I:")
        issue()
        e(f"s_cmp_lt_u32 s{S_J}, 16")
        e(f"s_cbranch_scc1 {tag}_L")
        for r in range(16 - D - 1, 15):
            e(f"s_waitcnt vmcnt({8 * max(0, 15 - need_of(r))})")
            bar(r == 16 - D - 1)
    ring_loader("LW", w_issue, DW, lambda r: r + 1, lambda J, r: J <= max(r - 1, -1) + 6)
    wo_loader(0, "A")

    e("F_LX:")
    e(f"v_lshrrev_b32 v{V_T1}, 3, v{V_LANE}")
    e(f"v_and_b32 v{V_T2}, 7, v{V_LANE}")
    e(f"v_lshrrev_b32 v{V_T3}, 4, v{V_LANE}")
    e(f"v_xor_b32 v{V_T3}, v{V_T3}, v{V_T2}")
    e(f"v_lshlrev_b32 v{V_T3}, 4, v{V_T3}")
    e(f"v_lshl_add_u32 v8, v{V_T1}, 10, v{V_T3}")
    e(f"v_xor_b32 v9, 64, v8")
    e(f"v_add_u32 v9, {8*1024 - 1024}, v9")
    for i in range(2, 8):
        e(f"v_add_u32 v{8+i}, {(8*i*1024 - 1024*(i&3)) - (8*(i&1)*1024 - 1024*(i&1))}, v{8 + (i & 1)}")
    e(f"s_lshl_b32 s{S_BASE}, s{S_RB}, 17")
    e(f"s_mov_b32 s{S_LO}, {X_BASE}")
    e(f"s_mov_b32 s{S_J}, 0")
    e("s_waitcnt lgkmcnt(0)")
    stamp()
    srd(S_A, 4, 1 << 20)
    xf = opt("xflags", "")
    def x_issue():
        e(f"s_add_u32 s{S_TMP}, s{S_ROT}, s{S_J}")
        e(f"s_and_b32 s{S_TMP+1}, s{S_TMP}, 1")
        e(f"s_lshl_b32 s{S_TMP+1}, s{S_TMP+1}, 16")
        e(f"s_and_b32 s{S_TMP}, s{S_TMP}, 14")
        e(f"s_lshl_b32 s{S_TMP}, s{S_TMP}, 6")
        e(f"s_add_u32 s{S_TMP}, s{S_TMP}, s{S_TMP+1}")
        e(f"s_add_u32 s{S_TMP}, s{S_TMP}, s{S_BASE}")
        issue8(8, S_A, S_TMP, xf)
        ring_adv(X_BASE)
        e(f"s_add_u32 s{S_J}, s{S_J}, 1")
    DX = int(opt("dx", "3"))
    ring_loader("LX", x_issue, DX, lambda r: 2 * ((r + 1) >> 1) + 1,
                lambda n, r: (n >> 1) - 3 <= ((r - 2) >> 1 if r >= 2 else -1))
    wo_loader(1, "B")

    e("F_LKV:")
    e(f"v_lshrrev_b32 v{V_T1}, 4, v{V_LANE}")
    e(f"v_and_b32 v{V_T2}, 15, v{V_LANE}")
    e(f"v_lshlrev_b32 v{V_T0}, 8, v{V_T1}")
    e(f"s_lshl_b32 s{S_BASE}, s{S_RB}, 6")
    e(f"s_add_u32 s{S_BASE}, s{S_BASE}, s{S_H}")
    e(f"s_lshl_b32 s{S_BASE}, s{S_BASE}, 14")
    e(f"v_lshlrev_b32 v18, 7, v{V_LANE}")
    e(f"s_mov_b32 s{S_J}, 0")
    e(f"s_mov_b32 s{S_CNT}, 0")
    e(f"s_cmp_eq_u32 s{S_WV}, 7")
    e("s_cbranch_scc1 F_LV")
    kvf = opt("kvflags", "")
    def kv_group(srd_reg, lds_base, vo):
        e(f"s_lshl_b32 s{S_TMP}, s{S_J}, 12")
        e(f"s_add_u32 m0, s{S_TMP}, {lds_base}")
        e(f"s_and_b32 s{S_TMP}, s{S_TMP}, 0x3000")
        e(f"s_lshr_b32 s{S_TMP+1}, s{S_J}, 2")
        e(f"s_lshl_b32 s{S_TMP+1}, s{S_TMP+1}, 19")
        e(f"s_add_u32 s{S_TMP}, s{S_TMP}, s{S_TMP+1}")
        e(f"s_add_u32 s{S_TMP}, s{S_TMP}, s{S_BASE}")
        for j in range(4):
            e(f"buffer_load_dwordx4 v{vo(j)}, s[{srd_reg}:{srd_reg+3}], s{S_TMP} offen offset:{1024*j} {kvf} lds")
        e(f"s_add_u32 s{S_J}, s{S_J}, 1")
    for j in range(4):
        e(f"v_add_u32 v{V_T3}, {4*j}, v{V_T1}")
        e(f"v_xor_b32 v{V_T3}, v{V_T3}, v{V_T2}")
        e(f"v_lshl_add_u32 v{8+j}, v{V_T3}, 4, v{V_T0}")
    e("s_waitcnt lgkmcnt(0)")
    srd(S_A, 6, 8 << 20)
    SG0 = int(opt("sg0", "0")); SGS = int(opt("sgs", "2")); SGM = int(opt("sgm", "7")); SGH = int(opt("sgh", "2"))
    def slot_calc(extra):
        e(f"s_lshr_b32 s{S_X0}, s{S_I}, {SGH}")
        e(f"s_add_u32 s{S_X0}, s{S_X0}, {int(opt('sga', '4'))}")
        e(f"s_and_b32 s{S_X0}, s{S_X0}, {SGM}")
        e(f"s_mul_i32 s{S_X0}, s{S_X0}, {SGS}")
        e(f"s_add_u32 s{S_X0}, s{S_X0}, {SG0 + extra}")
    def burst_loop(tag, body, nbar, extra=None):
        e(f"{tag}_L:")
        if extra:
            e(f"s_cmp_lg_u32 s{S_CNT}, s{S_X1}")
            e(f"s_cbranch_scc1 {tag}_E")
            extra()
            e(f"{tag}_E:")
        e(f"s_cmp_lg_u32 s{S_CNT}, s{S_X0}")
        e(f"s_cbranch_scc1 {tag}_S")
        e(f"{tag}_G:")
        body()
        e(f"s_cmp_lt_u32 s{S_J}, 8")
        e(f"s_cbranch_scc1 {tag}_G")
        e(f"{tag}_S:")
        e("s_barrier")
        e(f"s_add_u32 s{S_CNT}, s{S_CNT}, 1")
        e(f"s_cmp_lt_u32 s{S_CNT}, {nbar}")
        e(f"s_cbranch_scc1 {tag}_L")
    assert SG0 + SGS * SGM + int(opt("vex", "0")) <= 15
    slot_calc(0)
    PF = opt("pf", "1") == "1"
    xw_pf = None
    if PF:
        PC0 = int(opt("pc0", "2")); PLEAD = int(opt("plead", "4"))
        srd(S_B, 4, 1 << 20)
        srd(S_C, 10, 4 << 20)
        e(f"v_lshlrev_b32 v16, 10, v{V_LANE}")
        e(f"v_lshlrev_b32 v17, 13, v{V_T1}")
        e(f"v_lshl_add_u32 v17, v{V_T2}, 7, v17")
        e(f"s_lshr_b32 s36, s{S_I}, 2")
        e(f"s_and_b32 s37, s{S_I}, 3")
        e(f"s_max_u32 s{S_X1}, s36, {PLEAD}")
        e(f"s_sub_u32 s{S_X1}, s{S_X1}, {PLEAD}")
        e(f"s_lshl_b32 s{S_X1}, s{S_X1}, 1")
        e(f"s_cmp_lt_u32 s36, {PC0}")
        e(f"s_cselect_b32 s{S_X1}, 99, s{S_X1}")
        e(f"s_and_b32 s38, s2, 4")
        e(f"s_add_u32 s38, s38, s37")
        e(f"s_lshl_b32 s38, s38, 17")
        e(f"s_lshl_b32 s{S_TMP}, s36, 7")
        e(f"s_add_u32 s38, s38, s{S_TMP}")
        e(f"s_lshl_b32 s39, s{S_I}, 17")
        e(f"s_lshl_b32 s{S_TMP}, s{S_G4}, 11")
        e(f"s_add_u32 s39, s39, s{S_TMP}")
        def xw_pf():
            e(f"buffer_load_dword v20, v16, s[{S_B}:{S_B+3}], s38 offen")
            e(f"s_add_u32 s38, s38, 65536")
            e(f"buffer_load_dword v20, v16, s[{S_B}:{S_B+3}], s38 offen")
            for _ in range(4):
                e(f"buffer_load_dword v21, v17, s[{S_C}:{S_C+3}], s39 offen")
                e(f"s_add_u32 s39, s39, 32768")
    burst_loop("LK", lambda: kv_group(S_A, K_BASE, lambda j: 8 + j), 16, xw_pf)
    e("s_waitcnt vmcnt(0)")
    bar(True)
    lend(3)

    e("F_LV:")
    if opt("cpf", "0") == "1":
        e(f"s_cmp_ge_u32 s{S_I}, {opt('cpfn', '2')}")
        e("s_cbranch_scc1 F_NOCPF")
        e("s_getpc_b64 s[36:37]")
        e("F_PCREF:")
        e(f"s_sub_u32 s36, s36, F_PCREF-{KNAME}")
        e("s_subb_u32 s37, s37, 0")
        e(f"s_mov_b32 s38, F_DONE-{KNAME}")
        for i in range(2):
            e(f"v_add_u32 v29, {8192*i}, v18")
            e("v_min_u32 v29, s38, v29")
            e("v_mov_b32 v31, s37")
            e("v_add_co_u32 v30, vcc, s36, v29")
            e("s_nop 1")
            e("v_addc_co_u32 v31, vcc, 0, v31, vcc")
            e(f"global_load_dword v{32+i}, v[30:31], off")
        e("F_NOCPF:")
    e(f"v_lshlrev_b32 v{V_T3}, 2, v{V_T1}")
    e(f"v_xor_b32 v{V_T3}, v{V_T3}, v{V_T2}")
    e(f"v_lshl_add_u32 v8, v{V_T3}, 4, v{V_T0}")
    e(f"s_memrealtime s[{S_TOK}:{S_TOK+1}]")
    e("s_waitcnt lgkmcnt(0)")
    srd(S_A, 8, 8 << 20)
    srd(S_D, 12, 4 << 20)
    e("s_cmp_lg_u32 s2, 0")
    e("s_cbranch_scc1 F_NOTOK")
    srd(S_B, 16, 256)
    e(f"s_or_b32 s{S_TOK}, s{S_TOK}, 1")
    e(f"v_mov_b32 v10, s{S_TOK}")
    e(f"v_mov_b32 v11, s{S_TOK+1}")
    e("v_mov_b32 v12, 0")
    e(f"buffer_store_dwordx2 v[10:11], v12, s[{S_B}:{S_B+3}], 0 offen sc0 sc1")
    e("F_NOTOK:")
    if opt("tlbw", "0") == "1":
        tf = opt("tlbflags", "sc0 sc1")
        srd(S_B, 6, 8 << 20)
        srd(S_C, 18, WS_BYTES)
        e(f"v_lshlrev_b32 v24, 19, v{V_LANE}")
        e(f"v_lshlrev_b32 v25, 20, v{V_LANE}")
        e("s_mov_b64 exec, 3")
        e(f"buffer_load_dword v26, v24, s[{S_B}:{S_B+3}], s{S_BASE} offen {tf}")
        e(f"buffer_load_dword v26, v24, s[{S_A}:{S_A+3}], s{S_BASE} offen {tf}")
        e(f"s_lshl_b32 s{S_TMP}, s{S_G4}, 20")
        e(f"buffer_load_dword v26, v24, s[{S_D}:{S_D+3}], s{S_TMP} offen {tf}")
        e("s_mov_b64 exec, 0x3ffff")
        e(f"buffer_load_dword v26, v25, s[{S_C}:{S_C+3}], 0 offen {tf}")
        srd(S_B, 14, 1 << 20)
        srd(S_C, 16, 256)
        e("s_mov_b64 exec, 1")
        e(f"buffer_load_dword v26, v25, s[{S_B}:{S_B+3}], 0 offen {tf}")
        e(f"buffer_load_dword v26, v25, s[{S_C}:{S_C+3}], 0 offen offset:128 {tf}")
        e("s_mov_b64 exec, -1")
    slot_calc(int(opt("vex", "0")))
    burst_loop("LV", lambda: kv_group(S_A, V_BASE, lambda j: 8), 16)
    done = 16
    pof = opt("poflags", "")
    npf = 0
    if opt("wopf", "1") == "1":
        e(f"s_lshl_b32 s{S_TMP}, s{S_G4}, 20")
        e(f"s_lshl_b32 s{S_TMP+1}, s{S_I}, 15")
        e(f"s_add_u32 s{S_TMP}, s{S_TMP}, s{S_TMP+1}")
        for qq in range(4):
            if qq: e(f"s_add_u32 s{S_TMP}, s{S_TMP}, 8192")
            e(f"buffer_load_dword v23, v18, s[{S_D}:{S_D+3}], s{S_TMP} offen {pof}")
        npf = 4
    assert done <= 17
    for _ in range(17 - done):
        e("s_barrier")
    e(f"s_waitcnt vmcnt({npf})")
    bar(True)
    lend(2)

    e("F_COMPUTE:")
    if opt("prio", "0") != "0":
        e(f"s_setprio {opt('prio', '0')}")
    e(f"v_and_b32 v{V_T1}, 31, v{V_LANE}")
    e(f"v_bfe_u32 v{V_T2}, v{V_T1}, 1, 3")
    e(f"v_lshrrev_b32 v{V_T3}, 5, v{V_LANE}")
    e(f"v_xor_b32 v{V_T2}, v{V_T2}, v{V_T3}")
    e(f"v_lshlrev_b32 v{V_T2}, 4, v{V_T2}")
    e(f"v_lshl_add_u32 v{V_T1}, v{V_T0}, 5, v{V_T1}")
    e(f"v_lshl_add_u32 v{V_T1}, v{V_T1}, 7, v{V_T2}")
    e(f"v_add_u32 v{V_T1}, {X_BASE}, v{V_T1}")
    for s in range(4):
        e(f"v_xor_b32 v{V_AX+s}, {32*s}, v{V_T1}")
    e(f"v_bfe_u32 v{V_T1}, v{V_LANE}, 2, 2")
    e(f"v_bfe_u32 v{V_T2}, v{V_LANE}, 4, 1")
    e(f"v_lshlrev_b32 v{V_T2}, 2, v{V_T2}")
    e(f"v_and_b32 v{V_T3}, 1, v{V_LANE}")
    e(f"v_lshl_or_b32 v{V_T2}, v{V_T3}, 1, v{V_T2}")
    e(f"v_bfe_u32 v{V_T3}, v{V_LANE}, 1, 1")
    e(f"v_or_b32 v{V_T2}, v{V_T2}, v{V_T3}")
    e(f"v_lshlrev_b32 v{V_T2}, 3, v{V_T2}")
    e(f"v_lshrrev_b32 v{V_T3}, 5, v{V_LANE}")
    e(f"v_lshl_add_u32 v{V_AO}, v{V_T1}, 7, v{V_T2}")
    e(f"v_lshl_add_u32 v{V_AO}, v{V_T3}, 10, v{V_AO}")
    e(f"v_bfe_u32 v{V_AO+1}, v{V_LANE}, 3, 1")
    e(f"v_lshl_add_u32 v{V_AO}, v{V_AO+1}, 6, v{V_AO}")
    e(f"v_xor_b32 v{V_AO+1}, 64, v{V_AO}")
    e(f"v_lshl_add_u32 v{V_T2}, v{V_T1}, 8, v{V_T2}")
    e(f"v_lshl_add_u32 v{V_T2}, v{V_T1}, 6, v{V_T2}")
    for T in range(4):
        e(f"v_xor_b32 v{V_AV+T}, {64*T}, v{V_T2}")
        e(f"v_lshl_add_u32 v{V_AW+T}, v{V_T3}, 11, v{V_AV+T}")
    e(f"v_lshrrev_b32 v{V_T0}, 7, v0")
    e(f"v_and_b32 v{V_T1}, 31, v{V_LANE}")
    e(f"v_and_b32 v{V_T2}, 15, v{V_LANE}")
    e(f"v_xor_b32 v{V_T2}, v{V_T2}, v{V_T3}")
    e(f"v_lshlrev_b32 v{V_T2}, 4, v{V_T2}")
    e(f"v_lshl_add_u32 v{V_T2}, v{V_T1}, 8, v{V_T2}")
    e(f"v_lshl_add_u32 v{V_T2}, v{V_T0}, 14, v{V_T2}")
    e(f"v_add_u32 v{V_T2}, {K_BASE}, v{V_T2}")
    for s in range(8):
        e(f"v_xor_b32 v{V_AK+s}, {32*s}, v{V_T2}")
    e(f"v_lshlrev_b32 v{V_T0}, 14, v{V_T0}")
    e(f"v_lshl_add_u32 v{V_T0}, v{V_T3}, 10, v{V_T0}")
    e(f"v_add_u32 v{V_T0}, {V_BASE}, v{V_T0}")
    for T in range(4):
        e(f"v_add_u32 v{V_AV+T}, v{V_AV+T}, v{V_T0}")
    e(f"v_lshlrev_b32 v{V_ST}, 4, v{V_LANE}")
    e(f"v_lshrrev_b32 v{V_T0}, 6, v0")
    e(f"v_lshl_add_u32 v{V_T0}, v{V_T0}, 5, v{V_T1}")
    e(f"v_lshlrev_b32 v{V_T0}, 10, v{V_T0}")
    e(f"v_lshl_add_u32 v{V_OUT}, v{V_T3}, 4, v{V_T0}")
    e(f"v_and_b32 v{V_T0}, 7, v{V_LANE}")
    e(f"s_andn2_b32 s{S_TMP}, s2, 0x38")
    e(f"s_lshl_b32 s{S_TMP}, s{S_TMP}, 2")
    e(f"s_add_u32 s{S_TMP}, s{S_TMP}, s{S_WV}")
    e(f"s_lshl_b32 s{S_X0}, s{S_TMP}, 13")
    e(f"s_lshl_b32 s{S_TMP}, s{S_TMP}, 6")
    e(f"s_add_u32 s{S_TMP}, s{S_TMP}, {F1_OFF}")
    e(f"v_lshlrev_b32 v{V_T0}, 11, v{V_T0}")
    e(f"v_add_u32 v{V_FA1}, s{S_TMP}, v{V_T0}")
    e(f"v_add_u32 v{V_FA1A}, {F1A_OFF - F1_OFF}, v{V_FA1}")
    e(f"v_and_b32 v{V_T0}, 3, v{V_LANE}")
    e(f"s_andn2_b32 s{S_TMP}, s2, 3")
    e(f"s_lshl_b32 s{S_TMP}, s{S_TMP}, 2")
    e(f"s_add_u32 s{S_TMP}, s{S_TMP}, s{S_WV}")
    e(f"s_lshl_b32 s{S_TMP}, s{S_TMP}, 6")
    e(f"s_add_u32 s{S_TMP}, s{S_TMP}, {F2_OFF}")
    e(f"v_lshlrev_b32 v{V_T0}, 8, v{V_T0}")
    e(f"v_add_u32 v{V_FA2}, s{S_TMP}, v{V_T0}")
    e(f"v_mov_b32 v{V_ZERO}, 0")
    e(f"s_lshl_b32 s{S_TMP}, s2, 2")
    e(f"s_add_u32 s{S_TMP}, s{S_TMP}, s{S_WV}")
    e(f"s_lshl_b32 s{S_T2}, s{S_TMP}, 6")
    e(f"s_lshl_b32 s{S_X1}, s{S_TMP}, 13")
    e("s_waitcnt lgkmcnt(0)")
    srd(S_A, 18, WS_BYTES)
    srd(S_B, 16, 256)
    srd(S_C, 14, 1 << 20)
    DRY = opt("dry", "0") == "1"
    if DRY:
        e(f"s_mov_b32 s{S_DRY}, 1")
        e(f"s_mov_b32 s{S_SK0}, 6")
        e("s_mov_b32 s36, 0x40000000")
        e(f"v_mov_b32 v{V_T1}, 0")
        e(f"s_mov_b32 s{S_J}, 6")
        e("s_mov_b64 exec, 0")
        e(f"s_cmp_eq_u32 s{S_WV}, 0")
        e("s_cbranch_scc1 F_ATT")
        e(f"s_cmp_eq_u32 s{S_WV}, 1")
        e("s_cbranch_scc1 F_SEG1")
        e(f"s_cmp_eq_u32 s{S_WV}, 2")
        e("s_cbranch_scc1 F_SEG2")
        e("s_branch P2_L")
        e("F_REAL:")
        e("s_mov_b64 exec, -1")
        e("s_waitcnt lgkmcnt(0)")
        e("s_nop 7")
        e("s_nop 7")
    e(f"s_mov_b32 s{S_DRY}, 0")
    e(f"s_mov_b32 s{S_SK0}, 0")
    for i in range(64):
        e(f"v_mov_b32 v{V_ACC+i}, 0")

    def rd_x(s, buf):
        e(f"ds_read_b128 v[{V_FX+4*buf}:{V_FX+4*buf+3}], v{V_AX+s}")
    def rd_w(p, buf, T):
        off = p * 4096
        r = V_FW + 16 * buf + 4 * T
        e(f"ds_read_b64_tr_b16 v[{r}:{r+1}], v{V_AW+T} offset:{off}")
        e(f"ds_read_b64_tr_b16 v[{r+2}:{r+3}], v{V_AW+T} offset:{off + 1024}")

    bar(True)
    rd_x(0, 0)
    for T in range(4):
        rd_w(0, 0, T)
    e(f"s_mov_b32 s{S_CNT}, 0")
    e(f"s_mov_b32 s{S_LO}, 0")
    e("s_mov_b32 s60, -32768")
    e("s_mov_b32 s61, 16384")
    if STAMPS:
        e("v_mov_b32 v231, 0")
        e("s_mov_b32 s96, 0")
    e("QP_L:")
    if STAMPS:
        e(f"s_mov_b32 m0, s{S_CNT}")
        e("s_nop 0")
        e(f"v_writelane_b32 v231, s96, m0")
        e("s_memtime s[96:97]")
    e(f"s_add_u32 s{S_LO}, s{S_LO}, 16384")
    e(f"s_cmp_eq_u32 s{S_LO}, 49152")
    e(f"s_cselect_b32 s{S_DEL}, s60, s61")
    e(f"s_cselect_b32 s{S_LO}, 0, s{S_LO}")
    for p in range(4):
        buf = p & 1
        nb = buf ^ 1
        if p & 1:
            e("s_barrier")
        for T in range(4):
            nxt = 0 if T == 0 else 1 + 2 * T
            e(f"s_waitcnt lgkmcnt({2*(3-T) + nxt})")
            a = V_FW + 16 * buf + 4 * T
            b = V_FX + 4 * buf
            acc = V_ACC + 16 * T
            e(f"v_mfma_f32_32x32x16_bf16 v[{acc}:{acc+15}], v[{a}:{a+3}], v[{b}:{b+3}], v[{acc}:{acc+15}]")
            if T == 0:
                rd_x((p + 1) & 3, nb)
            rd_w((p + 1) & 3, nb, T)
            if p == 2:
                e(f"v_add_u32 v{V_AW+T}, s{S_DEL}, v{V_AW+T}")
            if p == 0 and T == 1:
                e(f"v_add_u32 v{V_AX}, s{S_DEL}, v{V_AX}")
            if p == 3 and T >= 1:
                e(f"v_add_u32 v{V_AX+T}, s{S_DEL}, v{V_AX+T}")
    e(f"s_add_u32 s{S_CNT}, s{S_CNT}, 1")
    e(f"s_cmp_lt_u32 s{S_CNT}, 8")
    e("s_cbranch_scc1 QP_L")
    e("s_waitcnt lgkmcnt(0)")
    bar(True)

    e("F_ATT:")
    def dry_exit():
        if DRY:
            e(f"s_cmp_eq_u32 s{S_DRY}, 1")
            e("s_cbranch_scc1 F_REAL")
    def rd_k(i):
        t, s_ = i // 8, i % 8
        r = V_KF + 4 * (i % 4)
        e(f"ds_read_b128 v[{r}:{r+3}], v{V_AK+s_} offset:{8192*t}")
    def cvt_q(s_, lo, hi):
        for qq in range(lo, hi):
            a = V_ACC + 8 * s_ + 2 * qq
            e(f"v_cvt_pk_bf16_f32 v{V_QB + 4*s_ + qq}, v{a}, v{a+1}")
    for i in range(4):
        rd_k(i)
    e(f"s_mov_b32 s{S_TMP}, 0x3e0293ee")
    e(f"s_mov_b32 s{S_TMP+1}, 0x3e0293ee")
    e("s_nop 7")
    cvt_q(0, 0, 4)
    cvt_q(1, 0, 2)
    for i in range(16):
        t, s_ = i // 8, i % 8
        r = V_KF + 4 * (i % 4)
        rem = min(3, 15 - i)
        e(f"s_waitcnt lgkmcnt({rem})")
        acc = V_S + 16 * t
        cc = "0" if s_ == 0 else f"v[{acc}:{acc+15}]"
        b = V_QB + 4 * s_
        e(f"v_mfma_f32_32x32x16_bf16 v[{acc}:{acc+15}], v[{r}:{r+3}], v[{b}:{b+3}], {cc}")
        if i + 4 < 16:
            rd_k(i + 4)
        if i < 7:
            cvt_q(i + 1, 2, 4)
            if i + 2 < 8:
                cvt_q(i + 2, 0, 2)
            else:
                e("s_nop 1")
        if i == 12:
            e(f"v_max3_f32 v{V_M}, v{V_S}, v{V_S+1}, v{V_S+2}")
            e(f"v_max3_f32 v{V_M2}, v{V_S+3}, v{V_S+4}, v{V_S+5}")
        if i == 13:
            e(f"v_max3_f32 v{V_M}, v{V_M}, v{V_S+6}, v{V_S+7}")
            e(f"v_max3_f32 v{V_M2}, v{V_M2}, v{V_S+8}, v{V_S+9}")
        if i == 14:
            e(f"v_max3_f32 v{V_M}, v{V_M}, v{V_S+10}, v{V_S+11}")
            e(f"v_max3_f32 v{V_M2}, v{V_M2}, v{V_S+12}, v{V_S+13}")
        if i == 15:
            e(f"v_max3_f32 v{V_M}, v{V_M}, v{V_S+14}, v{V_S+15}")
    dry_exit()
    stamp()
    e("F_SEG1:")
    def rd_v(u, buf):
        for T in range(4):
            r = V_VF + 16 * buf + 4 * T
            e(f"ds_read_b64_tr_b16 v[{r}:{r+1}], v{V_AV+T} offset:{u*4096}")
            e(f"ds_read_b64_tr_b16 v[{r+2}:{r+3}], v{V_AV+T} offset:{u*4096+2048}")
    if opt("tmaj", "0") == "1":
        for u in range(4):
            r = V_VF + 4 * u
            e(f"ds_read_b64_tr_b16 v[{r}:{r+1}], v{V_AV} offset:{u*4096}")
            e(f"ds_read_b64_tr_b16 v[{r+2}:{r+3}], v{V_AV} offset:{u*4096+2048}")
    else:
        rd_v(0, 0)
    e("s_nop 5")
    for i in range(16, 32, 4):
        e(f"v_max3_f32 v{V_M}, v{V_M}, v{V_S+i}, v{V_S+i+1}")
        e(f"v_max3_f32 v{V_M2}, v{V_M2}, v{V_S+i+2}, v{V_S+i+3}")
    e(f"v_max_f32 v{V_M}, v{V_M}, v{V_M2}")
    e(f"v_mov_b32 v{V_M2}, v{V_M}")
    e("s_nop 1")
    e(f"v_permlane32_swap_b32 v{V_M}, v{V_M2}")
    e("s_nop 1")
    e(f"v_max_f32 v{V_M}, v{V_M}, v{V_M2}")
    e(f"v_mul_f32 v{V_M}, s{S_TMP}, v{V_M}")
    def sm_group(u):
        o = []
        for i in range(8 * u, 8 * u + 8):
            o.append(f"v_fma_f32 v{V_S+i}, v{V_S+i}, s{S_TMP}, -v{V_M}")
        for i in range(8 * u, 8 * u + 8):
            o.append(f"v_exp_f32 v{V_S+i}, v{V_S+i}")
        o.append("s_nop 0")
        for i in range(4):
            o.append(f"v_cvt_pk_bf16_f32 v{V_PB+4*u+i}, v{V_S+8*u+2*i}, v{V_S+8*u+2*i+1}")
        return o
    def sum_group(u):
        o = []
        b = V_S + 8 * u
        if u == 0:
            o.append(f"v_add_f32 v{V_SUM}, v{b}, v{b+1}")
            o.append(f"v_add_f32 v{V_SUM2}, v{b+2}, v{b+3}")
            rest = range(4, 8, 2)
        else:
            rest = range(0, 8, 2)
        for i in rest:
            o.append(f"v_add_f32 v{V_SUM}, v{V_SUM}, v{b+i}")
            o.append(f"v_add_f32 v{V_SUM2}, v{V_SUM2}, v{b+i+1}")
        return o
    if opt("tmaj", "0") == "1":
        def rd_vT(T, buf):
            for u in range(4):
                r = V_VF + 16 * buf + 4 * u
                e(f"ds_read_b64_tr_b16 v[{r}:{r+1}], v{V_AV+T} offset:{u*4096}")
                e(f"ds_read_b64_tr_b16 v[{r+2}:{r+3}], v{V_AV+T} offset:{u*4096+2048}")
        for u in range(4):
            for x in sm_group(u): e(x)
            for x in sum_group(u): e(x)
        for x in [f"v_add_f32 v{V_SUM}, v{V_SUM}, v{V_SUM2}", f"v_mov_b32 v{V_SUM2}, v{V_SUM}", "s_nop 1",
                  f"v_permlane32_swap_b32 v{V_SUM}, v{V_SUM2}", "s_nop 1",
                  f"v_add_f32 v{V_SUM}, v{V_SUM}, v{V_SUM2}", f"v_rcp_f32 v{V_RS}, v{V_SUM}", "s_nop 0",
                  f"v_mov_b32 v{V_RS+1}, v{V_RS}"]:
            e(x)
        e(f"s_add_u32 s{S_TMP+1}, s{S_X1}, 4096")
        def fin_tile(T):
            o = []
            for ks in (2 * T, 2 * T + 1):
                a = V_ACC + 8 * ks
                d = V_BX + 4 * ks
                for i in range(4):
                    o.append(f"v_pk_mul_f32 v[{a+2*i}:{a+2*i+1}], v[{a+2*i}:{a+2*i+1}], v[{V_RS}:{V_RS+1}]")
                for i in range(4):
                    o.append(f"v_cvt_pk_bf16_f32 v{d+i}, v{a+2*i}, v{a+2*i+1}")
                so = S_X1 if ks < 4 else S_TMP + 1
                o.append(f"buffer_store_dwordx4 v[{d}:{d+3}], v{V_ST}, s[{S_A}:{S_A+3}], s{so} offen offset:{1024*(ks&3)} sc1")
            return o
        for T in range(4):
            buf = T & 1
            e("s_waitcnt lgkmcnt(0)")
            fill = fin_tile(T - 1) if T >= 1 else []
            for u in range(4):
                a = V_VF + 16 * buf + 4 * u
                b = V_PB + 4 * u
                acc = V_ACC + 16 * T
                cc = "0" if u == 0 else f"v[{acc}:{acc+15}]"
                e(f"v_mfma_f32_32x32x16_bf16 v[{acc}:{acc+15}], v[{a}:{a+3}], v[{b}:{b+3}], {cc}")
                if u == 0:
                    if T + 1 < 4:
                        rd_vT(T + 1, buf ^ 1)
                    else:
                        e("s_nop 7")
                    e("s_nop 1")
                elif fill:
                    n = 6
                    for x in fill[(u - 1) * n:u * n]:
                        e(x)
        e("s_nop 7")
        e("s_nop 3")
        for x in fin_tile(3): e(x)
        for i in range(8):
            e(f"v_mov_b32 v{V_ACC2+24+i}, 0")
        stamp()
    else:
        for x in sm_group(0): e(x)
        e("s_nop 0")
        for u in range(4):
            buf = u & 1
            if u == 2:
                dry_exit()
                e("F_SEG2:")
            e("s_waitcnt lgkmcnt(0)")
            fill = []
            if u + 1 < 4:
                fill = sm_group(u + 1) + sum_group(u)
            else:
                fill = sum_group(u) + [f"v_add_f32 v{V_SUM}, v{V_SUM}, v{V_SUM2}", f"v_mov_b32 v{V_SUM2}, v{V_SUM}", "s_nop 1",
                                       f"v_permlane32_swap_b32 v{V_SUM}, v{V_SUM2}", "s_nop 1",
                                       f"v_add_f32 v{V_SUM}, v{V_SUM}, v{V_SUM2}", f"v_rcp_f32 v{V_RS}, v{V_SUM}", "s_nop 0",
                                       f"v_mov_b32 v{V_RS+1}, v{V_RS}"]
            per = (len(fill) + 3) // 4
            for T in range(4):
                a = V_VF + 16 * buf + 4 * T
                b = V_PB + 4 * u
                acc = V_ACC + 16 * T
                cc = "0" if u == 0 else f"v[{acc}:{acc+15}]"
                e(f"v_mfma_f32_32x32x16_bf16 v[{acc}:{acc+15}], v[{a}:{a+3}], v[{b}:{b+3}], {cc}")
                if T == 0 and u + 1 < 4:
                    rd_v(u + 1, buf ^ 1)
                for x in fill[T * per:(T + 1) * per]:
                    e(x)
            if u + 1 < 4:
                e("s_nop 1")
        e("s_nop 3")
        for i in range(8):
            e(f"v_mov_b32 v{V_ACC2+24+i}, 0")
        for ks in range(8):
            a = V_ACC + 8 * ks
            d = V_BX + 4 * ks
            for i in range(4):
                e(f"v_pk_mul_f32 v[{a+2*i}:{a+2*i+1}], v[{a+2*i}:{a+2*i+1}], v[{V_RS}:{V_RS+1}]")
            for i in range(4):
                e(f"v_cvt_pk_bf16_f32 v{d+i}, v{a+2*i}, v{a+2*i+1}")
        dry_exit()
        stamp()
        if int(opt("xdel", "0")):
            nd = int(opt("xdel", "0"))
            e(f"s_lshr_b32 s{S_TMP}, s2, {opt('xsh', '7')}")
            e(f"s_mul_i32 s{S_TMP}, s{S_TMP}, {nd}")
            e("XD_L:")
            e(f"s_cmp_eq_u32 s{S_TMP}, 0")
            e("s_cbranch_scc1 XD_X")
            e("s_sleep 2")
            e(f"s_sub_u32 s{S_TMP}, s{S_TMP}, 1")
            e("s_branch XD_L")
            e("XD_X:")
        e(f"s_add_u32 s{S_TMP+1}, s{S_X1}, 4096")
        for ks in range(8):
            d = V_BX + 4 * ks
            so = S_X1 if ks < 4 else S_TMP + 1
            e(f"buffer_store_dwordx4 v[{d}:{d+3}], v{V_ST}, s[{S_A}:{S_A+3}], s{so} offen offset:{1024*(ks&3)} sc1")
    e(f"s_mov_b32 s{S_CNT}, 0")
    bar()
    for i in range(24):
        e(f"v_mov_b32 v{V_ACC2+i}, 0")
    e("s_mov_b64 exec, 1")
    e("F_TOKL:")
    e(f"buffer_load_dwordx2 v[{V_TOK}:{V_TOK+1}], v{V_ZERO}, s[{S_B}:{S_B+3}], 0 offen sc0 sc1")
    e("s_waitcnt vmcnt(0)")
    e(f"v_readfirstlane_b32 s{S_TOK}, v{V_TOK}")
    e(f"v_readfirstlane_b32 s{S_TOK+1}, v{V_TOK+1}")
    e(f"s_add_u32 s{S_CNT}, s{S_CNT}, 1")
    e(f"s_cmp_gt_u32 s{S_CNT}, {SPIN}")
    e("s_cbranch_scc1 F_TOKX")
    e(f"s_cmp_eq_u32 s{S_TOK}, 0")
    e("s_cbranch_scc1 F_TOKL")
    e("F_TOKX:")
    stamp()
    e(f"s_add_u32 s{S_TMP}, s{S_T2}, {F1_OFF}")
    e(f"s_add_u32 s{S_TMP+1}, s{S_T2}, {F1A_OFF}")
    e("s_mov_b64 exec, 1")
    e(f"buffer_store_dwordx2 v[{V_TOK}:{V_TOK+1}], v{V_ZERO}, s[{S_A}:{S_A+3}], s{S_TMP+1} offen")
    e(f"buffer_store_dwordx2 v[{V_TOK}:{V_TOK+1}], v{V_ZERO}, s[{S_A}:{S_A+3}], s{S_TMP} offen sc1")
    e("s_mov_b64 exec, -1")
    if opt("opf", "0") == "1":
        e(f"v_lshlrev_b32 v{V_T2}, 7, v{V_LANE}")
        e(f"buffer_load_dword v{V_T3}, v{V_T2}, s[{S_A}:{S_A+3}], s{S_X1} offen {opt('opfflags', '')}")
    bar()
    poll_loop("F_P1", V_FA1A, S_A, "sc1", V_FA1)
    stamp()

    D = int(opt("p2d", "12"))
    def slot_reg(sl):
        return (V_BX if sl < 8 else V_BY) + 4 * (sl & 7)
    def blk_base(sreg, jadd):
        e(f"s_add_u32 s{sreg}, s{S_HL}, s{S_J}")
        e(f"s_add_u32 s{sreg}, s{sreg}, {jadd}")
        e(f"s_and_b32 s{sreg}, s{sreg}, 7")
        e(f"s_lshl_b32 s{sreg}, s{sreg}, 18")
        e(f"s_add_u32 s{sreg}, s{sreg}, s{S_X0}")
        if jadd >= 2:
            e(f"s_cmp_ge_u32 s{S_J}, 6")
            e(f"s_cselect_b32 s{sreg}, 0x40000000, s{sreg}")
    def ld(sl, sreg, ks):
        b = slot_reg(sl)
        vo = V_ST if ks < 4 else V_T1
        e(f"buffer_load_dwordx4 v[{b}:{b+3}], v{vo}, s[{S_A}:{S_A+3}], s{sreg} offen offset:{1024*(ks&3)} {SIBF}")
    def rd_o(step, buf):
        off = step * 2048
        for T in range(2):
            r = V_FO + 8 * buf + 4 * T
            e(f"ds_read_b64_tr_b16 v[{r}:{r+1}], v{V_AO+T} offset:{off}")
            e(f"ds_read_b64_tr_b16 v[{r+2}:{r+3}], v{V_AO+T} offset:{off + 512}")
    SB = (36, 37, 38)
    e(f"s_mov_b32 s{S_J}, 0")
    e(f"v_add_u32 v{V_T1}, 4096, v{V_ST}")
    blk_base(SB[0], 1)
    for ks in range(D - 8):
        ld(8 + ks, SB[0], ks)
    PD = int(opt("pd", "3"))
    for i in range(PD):
        rd_o(i, i)
    e("P2_L:")
    blk_base(SB[1], 2)
    blk_base(SB[2], 3)
    LA = D
    def rd_o1(step, buf, T):
        off = step * 2048
        r = V_FO + 8 * buf + 4 * T
        e(f"ds_read_b64_tr_b16 v[{r}:{r+1}], v{V_AO+T} offset:{off}")
        e(f"ds_read_b64_tr_b16 v[{r+2}:{r+3}], v{V_AO+T} offset:{off + 512}")
    for l in range(16):
        buf = l & 3
        e(f"s_waitcnt vmcnt({LA - 1}) lgkmcnt({4 * (PD - 1)})")
        for T in range(2):
            a = V_FO + 8 * buf + 4 * T
            b = slot_reg(l)
            acc = V_ACC2 + 16 * T
            e(f"v_mfma_f32_32x32x16_bf16 v[{acc}:{acc+15}], v[{a}:{a+3}], v[{b}:{b+3}], v[{acc}:{acc+15}]")
            rd_o1(l + PD, (l + PD) & 3, T)
            if T == 0:
                e(f"__LOAD{l}__")
    e(f"v_add_u32 v{V_AO}, 0x8000, v{V_AO}")
    e(f"v_add_u32 v{V_AO+1}, 0x8000, v{V_AO+1}")
    e(f"s_mov_b32 s{SB[0]}, s{SB[2]}")
    e(f"s_add_u32 s{S_J}, s{S_J}, 2")
    e(f"s_cmp_lt_u32 s{S_J}, 8")
    e("s_cbranch_scc1 P2_L")
    if DRY:
        e(f"s_cmp_eq_u32 s{S_DRY}, 0")
        e("s_cbranch_scc1 F_X2")
        e(f"v_subrev_u32 v{V_AO}, 0x8000, v{V_AO}")
        e(f"v_subrev_u32 v{V_AO+1}, 0x8000, v{V_AO+1}")
        e("s_branch F_REAL")
        e("F_X2:")
    e("s_waitcnt lgkmcnt(0)")
    e("s_nop 7")
    e("s_nop 3")
    stamp()
    out = []
    for line in L:
        t = line.strip()
        if t.startswith("__LOAD"):
            l = int(t[6:-2])
            tgt = l + LA
            sl = tgt & 15
            blk = tgt >> 3
            sreg = SB[blk - 1]
            ks = tgt & 7
            b = slot_reg(sl)
            vo = V_ST if ks < 4 else V_T1
            ins = f"    buffer_load_dwordx4 v[{b}:{b+3}], v{vo}, s[{S_A}:{S_A+3}], s{sreg} offen offset:{1024*(ks&3)} {SIBF}"
            out.append(ins)
        elif t.startswith("__WAITB"):
            out += [f"    s_waitcnt vmcnt({LA - 1})"]
        else:
            out.append(line)
    L[:] = out
    V_ENC = 136
    V_CK = 96
    V_RC = 152
    V_DA, V_RA, V_LA, V_RR = 164, 165, 166, 167
    VX = 124
    S_SCL = 32
    S_MK = 36
    A2 = V_ACC2
    D3 = ["quad_perm:[1,0,3,2]", "quad_perm:[2,3,0,1]", "row_half_mirror"]
    e("s_waitcnt vmcnt(0)")
    e(f"v_max3_f32 v{V_M}, |v{A2}|, |v{A2+1}|, |v{A2+2}|")
    e(f"v_max3_f32 v{V_M2}, |v{A2+3}|, |v{A2+4}|, |v{A2+5}|")
    for i in range(6, 30, 4):
        e(f"v_max3_f32 v{V_M}, v{V_M}, |v{A2+i}|, |v{A2+i+1}|")
        e(f"v_max3_f32 v{V_M2}, v{V_M2}, |v{A2+i+2}|, |v{A2+i+3}|")
    e(f"v_max3_f32 v{V_M}, v{V_M}, |v{A2+30}|, |v{A2+31}|")
    e(f"v_max_f32 v{V_M}, v{V_M}, v{V_M2}")
    fill = [f"v_bfe_u32 v{V_T0}, v{V_LANE}, 3, 2", f"v_and_b32 v{V_T1}, 7, v{V_LANE}",
            f"v_lshrrev_b32 v{V_T2}, 5, v{V_LANE}", f"v_lshl_add_u32 v{V_T1}, v{V_T2}, 3, v{V_T1}",
            f"v_lshlrev_b32 v{V_DA}, 14, v{V_T0}", f"v_lshl_add_u32 v{V_DA}, v{V_T1}, 4, v{V_DA}",
            f"v_lshlrev_b32 v{V_RA}, 11, v{V_T0}", f"v_lshl_add_u32 v{V_RA}, v{V_T2}, 4, v{V_RA}"]
    for i, d in enumerate(D3 + ["row_mirror"]):
        e(fill[2 * i]); e(fill[2 * i + 1])
        e(f"v_max_u32_dpp v{V_M}, v{V_M}, v{V_M} {d} row_mask:0xf bank_mask:0xf")
    e(f"v_cmp_eq_u32 s[{S_MK+2}:{S_MK+3}], s{S_G4}, v{V_T0}")
    e(f"v_lshlrev_b32 v{V_LA}, 5, v{V_T1}")
    for i in range(4):
        e(f"v_readlane_b32 s{S_SCL+i}, v{V_M}, {16*i}")
    e(f"s_lshl_b32 s{S_TMP}, s{S_WV}, 11")
    e(f"s_add_u32 s{S_TMP}, s{S_TMP}, {V_BASE}")
    e(f"v_add_u32 v{V_LA}, s{S_TMP}, v{V_LA}")
    e(f"s_not_b64 s[{S_MK}:{S_MK+1}], s[{S_MK+2}:{S_MK+3}]")
    e(f"s_max_u32 s{S_SCL}, s{S_SCL}, s{S_SCL+1}")
    e(f"s_max_u32 s{S_SCL+2}, s{S_SCL+2}, s{S_SCL+3}")
    e(f"s_max_u32 s{S_SCL}, s{S_SCL}, s{S_SCL+2}")
    e(f"s_lshr_b32 s{S_SCL}, s{S_SCL}, 23")
    e(f"s_max_u32 s{S_SCL}, s{S_SCL}, 15")
    e(f"s_sub_u32 s{S_SCL+2}, s{S_SCL}, 14")
    e(f"s_lshl_b32 s{S_SCL+2}, s{S_SCL+2}, 23")
    e(f"s_sub_u32 s{S_SCL}, 0x10c, s{S_SCL}")
    e(f"s_lshl_b32 s{S_SCL}, s{S_SCL}, 23")
    e(f"s_mov_b32 s{S_SCL+1}, s{S_SCL}")
    e(f"s_andn2_b32 s{S_BASE}, s2, 3")
    e(f"s_lshl_b32 s{S_BASE}, s{S_BASE}, 2")
    e(f"s_add_u32 s{S_BASE}, s{S_BASE}, s{S_G4}")
    e(f"s_lshl_b32 s{S_BASE}, s{S_BASE}, 2")
    e(f"s_add_u32 s{S_BASE}, s{S_BASE}, s{S_WV}")
    e(f"s_lshl_b32 s{S_LO}, s{S_BASE}, 7")
    e(f"s_add_u32 s{S_LO}, s{S_LO}, {CK_OFF}")
    e(f"s_lshl_b32 s{S_BASE}, s{S_BASE}, 10")
    e(f"s_add_u32 s{S_BASE}, s{S_BASE}, {PX_OFF}")
    TMPR = 72
    for k in range(4):
        a = A2 + 8 * k
        h = V_ENC + 4 * k
        t = TMPR + 8 * (k & 1)
        for i in range(4):
            e(f"v_pk_mul_f32 v[{t+2*i}:{t+2*i+1}], v[{a+2*i}:{a+2*i+1}], s[{S_SCL}:{S_SCL+1}]")
        for i in range(4):
            e(f"v_cvt_pk_f16_f32 v{h+i}, v{t+2*i}, v{t+2*i+1}")
        e(f"s_mov_b64 exec, s[{S_MK}:{S_MK+1}]")
        e(f"buffer_store_dwordx4 v[{h}:{h+3}], v{V_DA}, s[{S_A}:{S_A+3}], s{S_BASE} offen offset:{256*k} sc1")
        e("s_mov_b64 exec, -1")
    for k in range(4):
        h = V_ENC + 4 * k
        c = V_CK + 4 * k
        e(f"v_bitop3_b32 v{c}, v{h}, v{h+1}, v{h+2} bitop3:0x96")
        e(f"v_xor_b32 v{c}, v{c}, v{h+3}")
        e(f"v_mov_b32 v{c+1}, s{S_TOK}")
        e(f"v_mov_b32 v{c+2}, s{S_SCL+2}")
    for d in D3:
        for k in range(4):
            c = V_CK + 4 * k
            e(f"v_xor_b32_dpp v{c}, v{c}, v{c} {d} row_mask:0xf bank_mask:0xf")
    for k in range(4):
        c = V_CK + 4 * k
        e(f"v_bitop3_b32 v{c}, v{c}, v{c+2}, s{S_TOK+1} bitop3:0x96")
    e("s_mov_b32 exec_lo, 0x01010101")
    e("s_mov_b32 exec_hi, 0x01010101")
    for k in range(4):
        c = V_CK + 4 * k
        e(f"buffer_store_dwordx3 v[{c}:{c+2}], v{V_RA}, s[{S_A}:{S_A+3}], s{S_LO} offen offset:{32*k} sc1")
    stamp()
    e(f"s_mov_b64 exec, s[{S_MK+2}:{S_MK+3}]")
    for k in range(4):
        a = A2 + 8 * k
        e(f"ds_write_b128 v{V_LA}, v[{a}:{a+3}] offset:{512*k}")
        e(f"ds_write_b128 v{V_LA}, v[{a+4}:{a+7}] offset:{512*k+16}")
    e("s_mov_b64 exec, -1")
    e(f"v_lshlrev_b32 v{V_LA}, 5, v{V_LANE}")
    e(f"v_add_u32 v{V_LA}, s{S_TMP}, v{V_LA}")
    e(f"s_lshl_b32 s{S_BASE}, s2, 4")
    e(f"s_add_u32 s{S_BASE}, s{S_BASE}, s{S_WV}")
    e(f"s_lshl_b32 s{S_LO}, s{S_BASE}, 7")
    e(f"s_add_u32 s{S_LO}, s{S_LO}, {CK_OFF}")
    e(f"s_lshl_b32 s{S_BASE}, s{S_BASE}, 10")
    e(f"s_add_u32 s{S_BASE}, s{S_BASE}, {PX_OFF}")
    SD = (32, 33, 34); SC = (36, 37, 38)
    for n in range(3):
        e(f"s_add_u32 s{S_TMP}, s{S_G4}, {n+1}")
        e(f"s_and_b32 s{S_TMP}, s{S_TMP}, 3")
        e(f"s_lshl_b32 s{SC[n]}, s{S_TMP}, 9")
        e(f"s_add_u32 s{SC[n]}, s{SC[n]}, s{S_LO}")
        e(f"s_lshl_b32 s{SD[n]}, s{S_TMP}, 12")
        e(f"s_add_u32 s{SD[n]}, s{SD[n]}, s{S_BASE}")
    e("s_waitcnt lgkmcnt(0)")
    e(f"ds_read_b128 v[{V_FIN}:{V_FIN+3}], v{V_LA}")
    e(f"ds_read_b128 v[{V_FIN+4}:{V_FIN+7}], v{V_LA} offset:16")
    e(f"v_lshrrev_b32 v{V_RR}, 3, v{V_LANE}")
    e(f"v_lshlrev_b32 v{V_RR}, 4, v{V_RR}")
    e(f"v_and_b32 v{V_OUT}, 7, v{V_LANE}")
    e(f"v_lshl_add_u32 v{V_OUT}, v{V_OUT}, 10, v{V_RR}")
    e(f"v_add_u32 v{V_T3}, s{S_G4}, v{V_LANE}")
    e(f"v_add_u32 v{V_T3}, 1, v{V_T3}")
    e(f"v_and_b32 v{V_T3}, 3, v{V_T3}")
    e(f"v_lshlrev_b32 v{V_T3}, 9, v{V_T3}")
    e(f"s_mov_b32 s{S_CNT}, 0")
    e("s_mov_b64 exec, 7")
    e("F_P2:")
    e(f"buffer_load_dword v{V_FV}, v{V_T3}, s[{S_A}:{S_A+3}], s{S_LO} offen offset:116 sc0 sc1")
    e(f"s_add_u32 s{S_CNT}, s{S_CNT}, 1")
    e("s_waitcnt vmcnt(0)")
    e(f"v_cmp_ne_u32 vcc, s{S_TOK}, v{V_FV}")
    e(f"s_cmp_gt_u32 s{S_CNT}, {SPIN}")
    e("s_cbranch_scc1 F_P2X")
    e("s_nop 2")
    e("s_cbranch_vccnz F_P2")
    e("F_P2X:")
    e("s_mov_b64 exec, -1")
    stamp()
    if STAMPS: e(f"v_writelane_b32 v231, s{S_CNT}, 12")
    def rx_all(rf):
        for n in range(3):
            b = V_PR + 4 * n
            e(f"buffer_load_dwordx4 v[{b}:{b+3}], v{V_ST}, s[{S_A}:{S_A+3}], s{SD[n]} offen {rf}")
            e(f"buffer_load_dwordx3 v[{V_RC+4*n}:{V_RC+4*n+2}], v{V_RR}, s[{S_A}:{S_A+3}], s{SC[n]} offen {rf}")
    rx_all(opt("rxflags", "sc1"))
    e("s_branch F_RV")
    e("F_RX:")
    rx_all("sc0 sc1")
    e("F_RV:")
    e(f"s_add_u32 s{S_CNT}, s{S_CNT}, 1")
    for n in range(3):
        e(f"s_waitcnt vmcnt({2*(2-n)})")
        b = V_PR + 4 * n
        c = VX + n
        e(f"v_bitop3_b32 v{c}, v{b}, v{b+1}, v{b+2} bitop3:0x96")
        e(f"v_xor_b32 v{c}, v{c}, v{b+3}")
    e("s_nop 1")
    for d in D3:
        for n in range(3):
            c = VX + n
            e(f"v_xor_b32_dpp v{c}, v{c}, v{c} {d} row_mask:0xf bank_mask:0xf")
    for n in range(3):
        c = VX + n
        r = V_RC + 4 * n
        e(f"v_bitop3_b32 v{c}, v{c}, v{r}, s{S_TOK+1} bitop3:0x96")
        e(f"v_xor_b32 v{c}, v{c}, v{r+2}")
        e(f"v_xor_b32 v{r+1}, s{S_TOK}, v{r+1}")
    e(f"v_or3_b32 v{V_T3}, v{VX}, v{VX+1}, v{VX+2}")
    e(f"v_or3_b32 v{V_T3}, v{V_T3}, v{V_RC+1}, v{V_RC+5}")
    e(f"v_or_b32 v{V_T3}, v{V_T3}, v{V_RC+9}")
    e(f"v_cmp_ne_u32 vcc, 0, v{V_T3}")
    e(f"s_cmp_gt_u32 s{S_CNT}, {SPIN}")
    e("s_cbranch_scc1 F_RXX")
    e("s_nop 2")
    e("s_cbranch_vccnz F_RX")
    e("F_RXX:")
    if STAMPS:
        e(f"v_writelane_b32 v231, s{S_CNT}, 13")
        stamp()
    e(f"s_lshl_b32 s{S_TMP}, s{S_RB}, 2")
    e(f"s_add_u32 s{S_TMP}, s{S_TMP}, s{S_WV}")
    e(f"s_lshl_b32 s{S_TMP}, s{S_TMP}, 2")
    e(f"s_add_u32 s{S_TMP}, s{S_TMP}, s{S_G4}")
    e(f"s_lshl_b32 s{S_TMP}, s{S_TMP}, 13")
    e(f"s_lshl_b32 s{S_TMP+1}, s{S_HL}, 7")
    e(f"s_add_u32 s{S_TMP}, s{S_TMP}, s{S_TMP+1}")
    e("s_waitcnt lgkmcnt(0)")
    for n in range(3):
        b = V_PR + 4 * n
        inv = V_RC + 4 * n + 2
        for i in range(4):
            e(f"v_fma_mix_f32 v{V_FIN+2*i}, v{b+i}, v{inv}, v{V_FIN+2*i} op_sel_hi:[1,0,0]")
            e(f"v_fma_mix_f32 v{V_FIN+2*i+1}, v{b+i}, v{inv}, v{V_FIN+2*i+1} op_sel:[1,0,0] op_sel_hi:[1,0,0]")
    for i in range(4):
        e(f"v_cvt_pk_bf16_f32 v{V_FIN+8+i}, v{V_FIN+2*i}, v{V_FIN+2*i+1}")
    e(f"buffer_store_dwordx4 v[{V_FIN+8}:{V_FIN+11}], v{V_OUT}, s[{S_C}:{S_C+3}], s{S_TMP} offen")
    stamp_flush()
    e("F_DONE:")
    e("s_endpgm")
    L.append(kd(name, NVGPR))


DESC = """; ---------------------------------------------------------------------------------------------
; ---------------------------------------------------------------------------------------------
"""

def main():
    out = sys.argv[1]
    hdr = HEADER
    hdr += "; @launch grid=(256,1,1) block=(512,1,1) lds=163840\n"
    hdr += '.amdgcn_target "amdgcn-amd-amdhsa--gfx950"\n'
    hdr += DESC
    fused()
    open(out, "w").write(hdr + "\n".join(L) + "\n")

main()
```

```python
import sys

HEADER = """; Kernarg layout for this problem (64 bytes, ptrs only, base s[0:1]):
"""
KNAME = "standalone__gqa_block_cached__near_ridge_kernel"
ARGS = sys.argv[2:]
def opt(name, default):
    for a in ARGS:
        if a.startswith(name + "="):
            return a.split("=", 1)[1].replace("_", " ")
    return default

L = []
def e(s=""):
    L.append("    " + s if s and not s.endswith(":") else s)

def kd(name, vgpr, sgpr=100):
    acc = (vgpr + 3) // 4 * 4
    return f""".section .rodata,"a"
.p2align 6
.amdhsa_kernel {name}
  .amdhsa_next_free_vgpr {vgpr}
  .amdhsa_next_free_sgpr {sgpr}
  .amdhsa_accum_offset {acc}
  .amdhsa_group_segment_fixed_size 0
  .amdhsa_kernarg_size 64
  .amdhsa_user_sgpr_count 2
  .amdhsa_user_sgpr_kernarg_segment_ptr 1
  .amdhsa_system_sgpr_workgroup_id_x 1
.end_amdhsa_kernel
"""

def srd(d, b, nbytes, extra_off=None):
    if extra_off:
        e(f"s_add_u32 s{d}, s{b}, {extra_off}")
        e(f"s_addc_u32 s{d+1}, s{b+1}, 0")
    else:
        e(f"s_mov_b32 s{d}, s{b}")
        e(f"s_mov_b32 s{d+1}, s{b+1}")
    e(f"s_mov_b32 s{d+2}, {nbytes}")
    e(f"s_mov_b32 s{d+3}, 0x00020000")

STAMPS = "--stamps" in ARGS
NST = [0]
S_WV = 42
def stamp(real=False):
    if not STAMPS: return
    i = NST[0]; NST[0] += 1
    assert i < 17, "too many stamps"
    e(f"{'s_memrealtime' if real else 's_memtime'} s[{62+2*i}:{63+2*i}]")

def stamp_flush():
    if not STAMPS: return
    e("s_waitcnt vmcnt(0) lgkmcnt(0)")
    stamp(False)
    stamp(True)
    n = NST[0]
    e("s_waitcnt lgkmcnt(0)")
    srd(20, 18, 1 << 20, extra_off=(64 << 20))
    e(f"s_lshl_b32 s3, s2, 3")
    e(f"s_add_u32 s3, s3, s{S_WV}")
    e(f"s_lshl_b32 s3, s3, 8")
    e("v_and_b32 v2, 63, v0")
    e("v_lshlrev_b32 v2, 2, v2")
    e("s_mov_b64 exec, 0xffff")
    e("buffer_store_dword v231, v2, s[20:23], s3 offen offset:192")
    e("s_mov_b64 exec, -1")
    e("v_mov_b32 v2, 0")
    e("s_mov_b64 exec, 1")
    for i in range(n):
        e(f"v_mov_b32 v4, s{62+2*i}")
        e(f"v_mov_b32 v5, s{63+2*i}")
        e(f"buffer_store_dwordx2 v[4:5], v2, s[20:23], s3 offen offset:{8*i}")
        e("s_nop 1")

def bar(st=False):
    if st: stamp()
    e("s_barrier")

def lend(rem=0):
    if STAMPS:
        for _ in range(rem):
            e("s_barrier")
    stamp_flush()
    NST[0] = 2
    e("s_endpgm")

PX_OFF = 8 << 20
F1_OFF = 16 << 20
F1A_OFF = F1_OFF + (512 << 10)
F2_OFF = 17 << 20
CK_OFF = 18 << 20
WS_BYTES = 20 << 20
WQ_BASE, X_BASE, K_BASE, V_BASE = 0, 49152, 98304, 131072

V_LANE = 1
V_T0, V_T1, V_T2, V_T3 = 2, 3, 4, 5
V_ST = 6
V_OUT = 7
V_AX = 8
V_AW = 12
V_AK = 16
V_AV = 24
V_AO = 28
V_ZERO = 30
V_FX = 32
V_FW = 40
V_ACC = 72
V_S = 136
V_QB = 168
V_KF = 200
V_PB = 168
V_VF = 32
V_M, V_M2, V_SUM, V_SUM2 = 216, 217, 218, 219
V_TOK = 220
V_FA1 = 222
V_FA2 = 223
V_FV = 224
V_FA1A = 226
V_BX = 136
V_BY = 32
V_BZ = 64
V_BW = 96
V_ACC2 = 168
V_FO = 64
V_PR = 72
V_FIN = 112
V_MM = 228
V_RS = 228
NVGPR = 232

S_A, S_B, S_C, S_D = 20, 24, 28, 32
S_H, S_RB = 40, 41
S_HL, S_G4 = 43, 44
S_DRY = 45
S_TMP = 46
S_ROT = 48
S_BASE = 49
S_CNT = 50
S_LO = 51
S_TOK = 52
S_T2 = 54
S_I = 55
S_X0, S_X1 = 56, 57
S_J = 58
S_DEL = 59
S_SK0 = 39

SPIN = int(opt('spin', '200000'))
SIBF = opt('sibflags', 'sc1')


def poll_loop(label, vaddr, srd_reg, flags="sc1", vaddr2=None, mask=255):
    e(f"s_mov_b32 s{S_CNT}, 0")
    e(f"s_mov_b64 exec, {mask}")
    e(f"{label}:")
    if vaddr2 is not None:
        e(f"s_and_b32 s{S_TMP}, s{S_CNT}, 7")
        e(f"s_cmp_eq_u32 s{S_TMP}, 7")
        e(f"s_cbranch_scc1 {label}_B")
    e(f"buffer_load_dwordx2 v[{V_FV}:{V_FV+1}], v{vaddr}, s[{srd_reg}:{srd_reg+3}], 0 offen {flags}")
    if vaddr2 is not None:
        e(f"s_branch {label}_C")
        e(f"{label}_B:")
        e(f"buffer_load_dwordx2 v[{V_FV}:{V_FV+1}], v{vaddr2}, s[{srd_reg}:{srd_reg+3}], 0 offen sc0 sc1")
        e(f"{label}_C:")
    e(f"s_add_u32 s{S_CNT}, s{S_CNT}, 1")
    e("s_waitcnt vmcnt(0)")
    e(f"v_cmp_ne_u64 vcc, s[{S_TOK}:{S_TOK+1}], v[{V_FV}:{V_FV+1}]")
    e(f"s_cmp_gt_u32 s{S_CNT}, {SPIN}")
    e(f"s_cbranch_scc1 {label}_X")
    e("s_nop 2")
    e(f"s_cbranch_vccz {label}_X")
    if opt("psleep", "0") != "0":
        e(f"s_sleep {opt('psleep', '0')}")
    e(f"s_branch {label}")
    e(f"{label}_X:")
    e("s_mov_b64 exec, -1")


def issue8(vbase, srd_reg, soff, flags):
    e(f"s_mov_b32 m0, s{S_LO}")
    e(f"s_add_u32 s{S_TMP+1}, s{S_LO}, 4096")
    for j in range(4):
        e(f"buffer_load_dwordx4 v{vbase+j}, s[{srd_reg}:{srd_reg+3}], s{soff} offen offset:{1024*j} {flags} lds")
    e(f"s_mov_b32 m0, s{S_TMP+1}")
    e("s_nop 0")
    for j in range(4):
        e(f"buffer_load_dwordx4 v{vbase+4+j}, s[{srd_reg}:{srd_reg+3}], s{soff} offen offset:{1024*j} {flags} lds")


def ring_adv(base):
    e(f"s_add_u32 s{S_LO}, s{S_LO}, 8192")
    e(f"s_cmp_eq_u32 s{S_LO}, {base + 49152}")
    e(f"s_cselect_b32 s{S_LO}, {base}, s{S_LO}")


def wo_loader(half, tag):
    e(f"v_lshrrev_b32 v{V_T1}, 3, v{V_LANE}")
    e(f"v_and_b32 v{V_T2}, 7, v{V_LANE}")
    e(f"v_bfe_u32 v{V_T3}, v{V_LANE}, 4, 1")
    e(f"v_lshlrev_b32 v{V_T3}, 2, v{V_T3}")
    e(f"v_xor_b32 v{V_T2}, v{V_T2}, v{V_T3}")
    e(f"v_lshlrev_b32 v{V_T2}, 4, v{V_T2}")
    e(f"v_lshl_add_u32 v24, v{V_T1}, 10, v{V_T2}")
    for i in range(1, 8):
        e(f"v_add_u32 v{24+i}, {8*i*1024 - 1024*(i&3)}, v24")
    srd(S_B, 12, 4 << 20)
    e(f"s_lshl_b32 s{S_BASE}, s{S_G4}, 20")
    e(f"s_lshl_b32 s{S_TMP}, s{S_HL}, 7")
    e(f"s_add_u32 s{S_BASE}, s{S_BASE}, s{S_TMP}")
    if half:
        e(f"s_add_u32 s{S_BASE}, s{S_BASE}, 65536")
    e(f"s_mov_b32 s{S_LO}, {half * 8192}")
    e(f"s_mov_b32 s{S_J}, 0")
    bar()
    bar(True)
    e(f"WO_L{tag}:")
    e(f"s_add_u32 s{S_TMP}, s{S_HL}, s{S_J}")
    e(f"s_and_b32 s{S_TMP}, s{S_TMP}, 7")
    e(f"s_lshl_b32 s{S_TMP}, s{S_TMP}, 17")
    e(f"s_add_u32 s{S_TMP}, s{S_TMP}, s{S_BASE}")
    e(f"s_waitcnt vmcnt({int(opt('wothr', '16'))})")
    issue8(24, S_B, S_TMP, opt("woflags", ""))
    e(f"s_add_u32 s{S_LO}, s{S_LO}, 16384")
    e(f"s_add_u32 s{S_J}, s{S_J}, 1")
    e(f"s_cmp_lg_u32 s{S_J}, 6")
    e(f"s_cbranch_scc1 WO_N{tag}")
    bar(True)
    e(f"WO_N{tag}:")
    e(f"s_cmp_lt_u32 s{S_J}, 8")
    e(f"s_cbranch_scc1 WO_L{tag}")
    e("s_waitcnt vmcnt(0)")
    bar(True)
    lend()


def fused():
    name = KNAME
    NST[0] = 0
    e(".text")
    e(f".globl {name}")
    e(".p2align 8")
    e(f".type {name},@function")
    e(f"{name}:")
    e("s_cmp_ge_u32 s2, 256")
    e("s_cbranch_scc1 F_DONE")
    stamp(True)
    stamp()
    e("s_load_dwordx16 s[4:19], s[0:1], 0")
    e(f"v_and_b32 v{V_LANE}, 63, v0")
    if STAMPS: e("v_mov_b32 v231, 0")
    e(f"v_lshrrev_b32 v{V_T0}, 6, v0")
    e(f"s_and_b32 s{S_G4}, s2, 3")
    e(f"v_readfirstlane_b32 s{S_WV}, v{V_T0}")
    e(f"s_lshr_b32 s{S_I}, s2, 3")
    e(f"s_and_b32 s{S_HL}, s{S_I}, 7")
    e(f"s_lshl_b32 s{S_H}, s{S_G4}, 3")
    e(f"s_add_u32 s{S_H}, s{S_H}, s{S_HL}")
    e(f"s_lshr_b32 s{S_TMP}, s2, 6")
    e(f"s_and_b32 s{S_RB}, s2, 4")
    e(f"s_add_u32 s{S_RB}, s{S_RB}, s{S_TMP}")
    e(f"s_lshl_b32 s{S_ROT}, s{S_TMP}, 1")
    e(f"s_add_u32 s{S_ROT}, s{S_ROT}, s{S_HL}")
    e(f"s_and_b32 s{S_ROT}, s{S_ROT}, 7")
    e(f"s_lshl_b32 s{S_ROT}, s{S_ROT}, 1")
    if opt("rot", "0") == "0":
        e(f"s_mov_b32 s{S_ROT}, 0")
    e(f"s_cmp_lt_u32 s{S_WV}, 4")
    e("s_cbranch_scc1 F_COMPUTE")
    e(f"s_cmp_eq_u32 s{S_WV}, 5")
    e("s_cbranch_scc1 F_LX")
    e(f"s_cmp_gt_u32 s{S_WV}, 5")
    e("s_cbranch_scc1 F_LKV")

    e(f"s_lshl_b32 s{S_BASE}, s{S_H}, 8")
    e(f"v_lshrrev_b32 v{V_T1}, 4, v{V_LANE}")
    e(f"v_and_b32 v{V_T2}, 15, v{V_LANE}")
    e(f"v_lshlrev_b32 v{V_T3}, 2, v{V_T1}")
    e(f"v_xor_b32 v{V_T2}, v{V_T2}, v{V_T3}")
    e(f"v_lshlrev_b32 v{V_T2}, 4, v{V_T2}")
    e(f"v_lshl_add_u32 v8, v{V_T1}, 13, v{V_T2}")
    for j in range(1, 8):
        e(f"v_add_u32 v{8+j}, {(4*j << 13) - 1024*(j & 3)}, v8")
    e(f"s_mov_b32 s{S_LO}, {WQ_BASE}")
    e(f"s_mov_b32 s{S_J}, 0")
    e("s_waitcnt lgkmcnt(0)")
    stamp()
    srd(S_A, 10, 4 << 20)
    DW = int(opt("dw", "3"))
    wqf = opt("wqflags", "")
    def w_issue():
        e(f"s_add_u32 s{S_TMP}, s{S_ROT}, s{S_J}")
        e(f"s_and_b32 s{S_TMP}, s{S_TMP}, 15")
        e(f"s_lshl_b32 s{S_TMP}, s{S_TMP}, 18")
        e(f"s_add_u32 s{S_TMP}, s{S_TMP}, s{S_BASE}")
        issue8(8, S_A, S_TMP, wqf)
        ring_adv(WQ_BASE)
        e(f"s_add_u32 s{S_J}, s{S_J}, 1")
    def ring_loader(tag, issue, D, need_of, free_ok):
        for J in range(D, 16):
            assert free_ok(J, J - D - 1), (tag, J)
        waits = set()
        for J in range(D, 16):
            r = J - D - 1
            waits.add(8 * (J - 1 - need_of(r)))
        w = min(waits)
        e(f"{tag}_L:")
        e(f"s_cmp_lt_u32 s{S_J}, {D}")
        e(f"s_cbranch_scc1 {tag}_I")
        e(f"s_waitcnt vmcnt({w})")
        e("s_barrier")
        e(f"{tag}_I:")
        issue()
        e(f"s_cmp_lt_u32 s{S_J}, 16")
        e(f"s_cbranch_scc1 {tag}_L")
        for r in range(16 - D - 1, 15):
            e(f"s_waitcnt vmcnt({8 * max(0, 15 - need_of(r))})")
            bar(r == 16 - D - 1)
    ring_loader("LW", w_issue, DW, lambda r: r + 1, lambda J, r: J <= max(r - 1, -1) + 6)
    wo_loader(0, "A")

    e("F_LX:")
    e(f"v_lshrrev_b32 v{V_T1}, 3, v{V_LANE}")
    e(f"v_and_b32 v{V_T2}, 7, v{V_LANE}")
    e(f"v_lshrrev_b32 v{V_T3}, 4, v{V_LANE}")
    e(f"v_xor_b32 v{V_T3}, v{V_T3}, v{V_T2}")
    e(f"v_lshlrev_b32 v{V_T3}, 4, v{V_T3}")
    e(f"v_lshl_add_u32 v8, v{V_T1}, 10, v{V_T3}")
    e(f"v_xor_b32 v9, 64, v8")
    e(f"v_add_u32 v9, {8*1024 - 1024}, v9")
    for i in range(2, 8):
        e(f"v_add_u32 v{8+i}, {(8*i*1024 - 1024*(i&3)) - (8*(i&1)*1024 - 1024*(i&1))}, v{8 + (i & 1)}")
    e(f"s_lshl_b32 s{S_BASE}, s{S_RB}, 17")
    e(f"s_mov_b32 s{S_LO}, {X_BASE}")
    e(f"s_mov_b32 s{S_J}, 0")
    e("s_waitcnt lgkmcnt(0)")
    stamp()
    srd(S_A, 4, 1 << 20)
    xf = opt("xflags", "")
    def x_issue():
        e(f"s_add_u32 s{S_TMP}, s{S_ROT}, s{S_J}")
        e(f"s_and_b32 s{S_TMP+1}, s{S_TMP}, 1")
        e(f"s_lshl_b32 s{S_TMP+1}, s{S_TMP+1}, 16")
        e(f"s_and_b32 s{S_TMP}, s{S_TMP}, 14")
        e(f"s_lshl_b32 s{S_TMP}, s{S_TMP}, 6")
        e(f"s_add_u32 s{S_TMP}, s{S_TMP}, s{S_TMP+1}")
        e(f"s_add_u32 s{S_TMP}, s{S_TMP}, s{S_BASE}")
        issue8(8, S_A, S_TMP, xf)
        ring_adv(X_BASE)
        e(f"s_add_u32 s{S_J}, s{S_J}, 1")
    DX = int(opt("dx", "3"))
    ring_loader("LX", x_issue, DX, lambda r: 2 * ((r + 1) >> 1) + 1,
                lambda n, r: (n >> 1) - 3 <= ((r - 2) >> 1 if r >= 2 else -1))
    wo_loader(1, "B")

    e("F_LKV:")
    e(f"v_lshrrev_b32 v{V_T1}, 4, v{V_LANE}")
    e(f"v_and_b32 v{V_T2}, 15, v{V_LANE}")
    e(f"v_lshlrev_b32 v{V_T0}, 8, v{V_T1}")
    e(f"s_lshl_b32 s{S_BASE}, s{S_RB}, 6")
    e(f"s_add_u32 s{S_BASE}, s{S_BASE}, s{S_H}")
    e(f"s_lshl_b32 s{S_BASE}, s{S_BASE}, 14")
    e(f"v_lshlrev_b32 v18, 7, v{V_LANE}")
    e(f"s_mov_b32 s{S_J}, 0")
    e(f"s_mov_b32 s{S_CNT}, 0")
    e(f"s_cmp_eq_u32 s{S_WV}, 7")
    e("s_cbranch_scc1 F_LV")
    kvf = opt("kvflags", "")
    def kv_group(srd_reg, lds_base, vo):
        e(f"s_lshl_b32 s{S_TMP}, s{S_J}, 12")
        e(f"s_add_u32 m0, s{S_TMP}, {lds_base}")
        e(f"s_and_b32 s{S_TMP}, s{S_TMP}, 0x3000")
        e(f"s_lshr_b32 s{S_TMP+1}, s{S_J}, 2")
        e(f"s_lshl_b32 s{S_TMP+1}, s{S_TMP+1}, 19")
        e(f"s_add_u32 s{S_TMP}, s{S_TMP}, s{S_TMP+1}")
        e(f"s_add_u32 s{S_TMP}, s{S_TMP}, s{S_BASE}")
        for j in range(4):
            e(f"buffer_load_dwordx4 v{vo(j)}, s[{srd_reg}:{srd_reg+3}], s{S_TMP} offen offset:{1024*j} {kvf} lds")
        e(f"s_add_u32 s{S_J}, s{S_J}, 1")
    for j in range(4):
        e(f"v_add_u32 v{V_T3}, {4*j}, v{V_T1}")
        e(f"v_xor_b32 v{V_T3}, v{V_T3}, v{V_T2}")
        e(f"v_lshl_add_u32 v{8+j}, v{V_T3}, 4, v{V_T0}")
    e("s_waitcnt lgkmcnt(0)")
    srd(S_A, 6, 8 << 20)
    SG0 = int(opt("sg0", "0")); SGS = int(opt("sgs", "2")); SGM = int(opt("sgm", "7")); SGH = int(opt("sgh", "2"))
    def slot_calc(extra):
        e(f"s_lshr_b32 s{S_X0}, s{S_I}, {SGH}")
        e(f"s_add_u32 s{S_X0}, s{S_X0}, {int(opt('sga', '4'))}")
        e(f"s_and_b32 s{S_X0}, s{S_X0}, {SGM}")
        e(f"s_mul_i32 s{S_X0}, s{S_X0}, {SGS}")
        e(f"s_add_u32 s{S_X0}, s{S_X0}, {SG0 + extra}")
    def burst_loop(tag, body, nbar, extra=None):
        e(f"{tag}_L:")
        if extra:
            e(f"s_cmp_lg_u32 s{S_CNT}, s{S_X1}")
            e(f"s_cbranch_scc1 {tag}_E")
            extra()
            e(f"{tag}_E:")
        e(f"s_cmp_lg_u32 s{S_CNT}, s{S_X0}")
        e(f"s_cbranch_scc1 {tag}_S")
        e(f"{tag}_G:")
        body()
        e(f"s_cmp_lt_u32 s{S_J}, 8")
        e(f"s_cbranch_scc1 {tag}_G")
        e(f"{tag}_S:")
        e("s_barrier")
        e(f"s_add_u32 s{S_CNT}, s{S_CNT}, 1")
        e(f"s_cmp_lt_u32 s{S_CNT}, {nbar}")
        e(f"s_cbranch_scc1 {tag}_L")
    assert SG0 + SGS * SGM + int(opt("vex", "0")) <= 15
    slot_calc(0)
    PF = opt("pf", "1") == "1"
    xw_pf = None
    if PF:
        PC0 = int(opt("pc0", "2")); PLEAD = int(opt("plead", "4"))
        srd(S_B, 4, 1 << 20)
        srd(S_C, 10, 4 << 20)
        e(f"v_lshlrev_b32 v16, 10, v{V_LANE}")
        e(f"v_lshlrev_b32 v17, 13, v{V_T1}")
        e(f"v_lshl_add_u32 v17, v{V_T2}, 7, v17")
        e(f"s_lshr_b32 s36, s{S_I}, 2")
        e(f"s_and_b32 s37, s{S_I}, 3")
        e(f"s_max_u32 s{S_X1}, s36, {PLEAD}")
        e(f"s_sub_u32 s{S_X1}, s{S_X1}, {PLEAD}")
        e(f"s_lshl_b32 s{S_X1}, s{S_X1}, 1")
        e(f"s_cmp_lt_u32 s36, {PC0}")
        e(f"s_cselect_b32 s{S_X1}, 99, s{S_X1}")
        e(f"s_and_b32 s38, s2, 4")
        e(f"s_add_u32 s38, s38, s37")
        e(f"s_lshl_b32 s38, s38, 17")
        e(f"s_lshl_b32 s{S_TMP}, s36, 7")
        e(f"s_add_u32 s38, s38, s{S_TMP}")
        e(f"s_lshl_b32 s39, s{S_I}, 17")
        e(f"s_lshl_b32 s{S_TMP}, s{S_G4}, 11")
        e(f"s_add_u32 s39, s39, s{S_TMP}")
        def xw_pf():
            e(f"buffer_load_dword v20, v16, s[{S_B}:{S_B+3}], s38 offen")
            e(f"s_add_u32 s38, s38, 65536")
            e(f"buffer_load_dword v20, v16, s[{S_B}:{S_B+3}], s38 offen")
            for _ in range(4):
                e(f"buffer_load_dword v21, v17, s[{S_C}:{S_C+3}], s39 offen")
                e(f"s_add_u32 s39, s39, 32768")
    burst_loop("LK", lambda: kv_group(S_A, K_BASE, lambda j: 8 + j), 16, xw_pf)
    e("s_waitcnt vmcnt(0)")
    bar(True)
    lend(3)

    e("F_LV:")
    if opt("cpf", "0") == "1":
        e(f"s_cmp_ge_u32 s{S_I}, {opt('cpfn', '2')}")
        e("s_cbranch_scc1 F_NOCPF")
        e("s_getpc_b64 s[36:37]")
        e("F_PCREF:")
        e(f"s_sub_u32 s36, s36, F_PCREF-{KNAME}")
        e("s_subb_u32 s37, s37, 0")
        e(f"s_mov_b32 s38, F_DONE-{KNAME}")
        for i in range(2):
            e(f"v_add_u32 v29, {8192*i}, v18")
            e("v_min_u32 v29, s38, v29")
            e("v_mov_b32 v31, s37")
            e("v_add_co_u32 v30, vcc, s36, v29")
            e("s_nop 1")
            e("v_addc_co_u32 v31, vcc, 0, v31, vcc")
            e(f"global_load_dword v{32+i}, v[30:31], off")
        e("F_NOCPF:")
    e(f"v_lshlrev_b32 v{V_T3}, 2, v{V_T1}")
    e(f"v_xor_b32 v{V_T3}, v{V_T3}, v{V_T2}")
    e(f"v_lshl_add_u32 v8, v{V_T3}, 4, v{V_T0}")
    e(f"s_memrealtime s[{S_TOK}:{S_TOK+1}]")
    e("s_waitcnt lgkmcnt(0)")
    srd(S_A, 8, 8 << 20)
    srd(S_D, 12, 4 << 20)
    e("s_cmp_lg_u32 s2, 0")
    e("s_cbranch_scc1 F_NOTOK")
    srd(S_B, 16, 256)
    e(f"s_or_b32 s{S_TOK}, s{S_TOK}, 1")
    e(f"v_mov_b32 v10, s{S_TOK}")
    e(f"v_mov_b32 v11, s{S_TOK+1}")
    e("v_mov_b32 v12, 0")
    e(f"buffer_store_dwordx2 v[10:11], v12, s[{S_B}:{S_B+3}], 0 offen sc0 sc1")
    e("F_NOTOK:")
    if opt("tlbw", "0") == "1":
        tf = opt("tlbflags", "sc0 sc1")
        srd(S_B, 6, 8 << 20)
        srd(S_C, 18, WS_BYTES)
        e(f"v_lshlrev_b32 v24, 19, v{V_LANE}")
        e(f"v_lshlrev_b32 v25, 20, v{V_LANE}")
        e("s_mov_b64 exec, 3")
        e(f"buffer_load_dword v26, v24, s[{S_B}:{S_B+3}], s{S_BASE} offen {tf}")
        e(f"buffer_load_dword v26, v24, s[{S_A}:{S_A+3}], s{S_BASE} offen {tf}")
        e(f"s_lshl_b32 s{S_TMP}, s{S_G4}, 20")
        e(f"buffer_load_dword v26, v24, s[{S_D}:{S_D+3}], s{S_TMP} offen {tf}")
        e("s_mov_b64 exec, 0x3ffff")
        e(f"buffer_load_dword v26, v25, s[{S_C}:{S_C+3}], 0 offen {tf}")
        srd(S_B, 14, 1 << 20)
        srd(S_C, 16, 256)
        e("s_mov_b64 exec, 1")
        e(f"buffer_load_dword v26, v25, s[{S_B}:{S_B+3}], 0 offen {tf}")
        e(f"buffer_load_dword v26, v25, s[{S_C}:{S_C+3}], 0 offen offset:128 {tf}")
        e("s_mov_b64 exec, -1")
    slot_calc(int(opt("vex", "0")))
    burst_loop("LV", lambda: kv_group(S_A, V_BASE, lambda j: 8), 16)
    done = 16
    pof = opt("poflags", "")
    npf = 0
    if opt("wopf", "1") == "1":
        e(f"s_lshl_b32 s{S_TMP}, s{S_G4}, 20")
        e(f"s_lshl_b32 s{S_TMP+1}, s{S_I}, 15")
        e(f"s_add_u32 s{S_TMP}, s{S_TMP}, s{S_TMP+1}")
        for qq in range(4):
            if qq: e(f"s_add_u32 s{S_TMP}, s{S_TMP}, 8192")
            e(f"buffer_load_dword v23, v18, s[{S_D}:{S_D+3}], s{S_TMP} offen {pof}")
        npf = 4
    assert done <= 17
    for _ in range(17 - done):
        e("s_barrier")
    e(f"s_waitcnt vmcnt({npf})")
    bar(True)
    lend(2)

    e("F_COMPUTE:")
    if opt("prio", "0") != "0":
        e(f"s_setprio {opt('prio', '0')}")
    e(f"v_and_b32 v{V_T1}, 31, v{V_LANE}")
    e(f"v_bfe_u32 v{V_T2}, v{V_T1}, 1, 3")
    e(f"v_lshrrev_b32 v{V_T3}, 5, v{V_LANE}")
    e(f"v_xor_b32 v{V_T2}, v{V_T2}, v{V_T3}")
    e(f"v_lshlrev_b32 v{V_T2}, 4, v{V_T2}")
    e(f"v_lshl_add_u32 v{V_T1}, v{V_T0}, 5, v{V_T1}")
    e(f"v_lshl_add_u32 v{V_T1}, v{V_T1}, 7, v{V_T2}")
    e(f"v_add_u32 v{V_T1}, {X_BASE}, v{V_T1}")
    for s in range(4):
        e(f"v_xor_b32 v{V_AX+s}, {32*s}, v{V_T1}")
    e(f"v_bfe_u32 v{V_T1}, v{V_LANE}, 2, 2")
    e(f"v_bfe_u32 v{V_T2}, v{V_LANE}, 4, 1")
    e(f"v_lshlrev_b32 v{V_T2}, 2, v{V_T2}")
    e(f"v_and_b32 v{V_T3}, 1, v{V_LANE}")
    e(f"v_lshl_or_b32 v{V_T2}, v{V_T3}, 1, v{V_T2}")
    e(f"v_bfe_u32 v{V_T3}, v{V_LANE}, 1, 1")
    e(f"v_or_b32 v{V_T2}, v{V_T2}, v{V_T3}")
    e(f"v_lshlrev_b32 v{V_T2}, 3, v{V_T2}")
    e(f"v_lshrrev_b32 v{V_T3}, 5, v{V_LANE}")
    e(f"v_lshl_add_u32 v{V_AO}, v{V_T1}, 7, v{V_T2}")
    e(f"v_lshl_add_u32 v{V_AO}, v{V_T3}, 10, v{V_AO}")
    e(f"v_bfe_u32 v{V_AO+1}, v{V_LANE}, 3, 1")
    e(f"v_lshl_add_u32 v{V_AO}, v{V_AO+1}, 6, v{V_AO}")
    e(f"v_xor_b32 v{V_AO+1}, 64, v{V_AO}")
    e(f"v_lshl_add_u32 v{V_T2}, v{V_T1}, 8, v{V_T2}")
    e(f"v_lshl_add_u32 v{V_T2}, v{V_T1}, 6, v{V_T2}")
    for T in range(4):
        e(f"v_xor_b32 v{V_AV+T}, {64*T}, v{V_T2}")
        e(f"v_lshl_add_u32 v{V_AW+T}, v{V_T3}, 11, v{V_AV+T}")
    e(f"v_lshrrev_b32 v{V_T0}, 7, v0")
    e(f"v_and_b32 v{V_T1}, 31, v{V_LANE}")
    e(f"v_and_b32 v{V_T2}, 15, v{V_LANE}")
    e(f"v_xor_b32 v{V_T2}, v{V_T2}, v{V_T3}")
    e(f"v_lshlrev_b32 v{V_T2}, 4, v{V_T2}")
    e(f"v_lshl_add_u32 v{V_T2}, v{V_T1}, 8, v{V_T2}")
    e(f"v_lshl_add_u32 v{V_T2}, v{V_T0}, 14, v{V_T2}")
    e(f"v_add_u32 v{V_T2}, {K_BASE}, v{V_T2}")
    for s in range(8):
        e(f"v_xor_b32 v{V_AK+s}, {32*s}, v{V_T2}")
    e(f"v_lshlrev_b32 v{V_T0}, 14, v{V_T0}")
    e(f"v_lshl_add_u32 v{V_T0}, v{V_T3}, 10, v{V_T0}")
    e(f"v_add_u32 v{V_T0}, {V_BASE}, v{V_T0}")
    for T in range(4):
        e(f"v_add_u32 v{V_AV+T}, v{V_AV+T}, v{V_T0}")
    e(f"v_lshlrev_b32 v{V_ST}, 4, v{V_LANE}")
    e(f"v_lshrrev_b32 v{V_T0}, 6, v0")
    e(f"v_lshl_add_u32 v{V_T0}, v{V_T0}, 5, v{V_T1}")
    e(f"v_lshlrev_b32 v{V_T0}, 10, v{V_T0}")
    e(f"v_lshl_add_u32 v{V_OUT}, v{V_T3}, 4, v{V_T0}")
    e(f"v_and_b32 v{V_T0}, 7, v{V_LANE}")
    e(f"s_andn2_b32 s{S_TMP}, s2, 0x38")
    e(f"s_lshl_b32 s{S_TMP}, s{S_TMP}, 2")
    e(f"s_add_u32 s{S_TMP}, s{S_TMP}, s{S_WV}")
    e(f"s_lshl_b32 s{S_X0}, s{S_TMP}, 13")
    e(f"s_lshl_b32 s{S_TMP}, s{S_TMP}, 6")
    e(f"s_add_u32 s{S_TMP}, s{S_TMP}, {F1_OFF}")
    e(f"v_lshlrev_b32 v{V_T0}, 11, v{V_T0}")
    e(f"v_add_u32 v{V_FA1}, s{S_TMP}, v{V_T0}")
    e(f"v_add_u32 v{V_FA1A}, {F1A_OFF - F1_OFF}, v{V_FA1}")
    e(f"v_and_b32 v{V_T0}, 3, v{V_LANE}")
    e(f"s_andn2_b32 s{S_TMP}, s2, 3")
    e(f"s_lshl_b32 s{S_TMP}, s{S_TMP}, 2")
    e(f"s_add_u32 s{S_TMP}, s{S_TMP}, s{S_WV}")
    e(f"s_lshl_b32 s{S_TMP}, s{S_TMP}, 6")
    e(f"s_add_u32 s{S_TMP}, s{S_TMP}, {F2_OFF}")
    e(f"v_lshlrev_b32 v{V_T0}, 8, v{V_T0}")
    e(f"v_add_u32 v{V_FA2}, s{S_TMP}, v{V_T0}")
    e(f"v_mov_b32 v{V_ZERO}, 0")
    e(f"s_lshl_b32 s{S_TMP}, s2, 2")
    e(f"s_add_u32 s{S_TMP}, s{S_TMP}, s{S_WV}")
    e(f"s_lshl_b32 s{S_T2}, s{S_TMP}, 6")
    e(f"s_lshl_b32 s{S_X1}, s{S_TMP}, 13")
    e("s_waitcnt lgkmcnt(0)")
    srd(S_A, 18, WS_BYTES)
    srd(S_B, 16, 256)
    srd(S_C, 14, 1 << 20)
    DRY = opt("dry", "0") == "1"
    if DRY:
        e(f"s_mov_b32 s{S_DRY}, 1")
        e(f"s_mov_b32 s{S_SK0}, 6")
        e("s_mov_b32 s36, 0x40000000")
        e(f"v_mov_b32 v{V_T1}, 0")
        e(f"s_mov_b32 s{S_J}, 6")
        e("s_mov_b64 exec, 0")
        e(f"s_cmp_eq_u32 s{S_WV}, 0")
        e("s_cbranch_scc1 F_ATT")
        e(f"s_cmp_eq_u32 s{S_WV}, 1")
        e("s_cbranch_scc1 F_SEG1")
        e(f"s_cmp_eq_u32 s{S_WV}, 2")
        e("s_cbranch_scc1 F_SEG2")
        e("s_branch P2_L")
        e("F_REAL:")
        e("s_mov_b64 exec, -1")
        e("s_waitcnt lgkmcnt(0)")
        e("s_nop 7")
        e("s_nop 7")
    e(f"s_mov_b32 s{S_DRY}, 0")
    e(f"s_mov_b32 s{S_SK0}, 0")
    for i in range(64):
        e(f"v_mov_b32 v{V_ACC+i}, 0")

    def rd_x(s, buf):
        e(f"ds_read_b128 v[{V_FX+4*buf}:{V_FX+4*buf+3}], v{V_AX+s}")
    def rd_w(p, buf, T):
        off = p * 4096
        r = V_FW + 16 * buf + 4 * T
        e(f"ds_read_b64_tr_b16 v[{r}:{r+1}], v{V_AW+T} offset:{off}")
        e(f"ds_read_b64_tr_b16 v[{r+2}:{r+3}], v{V_AW+T} offset:{off + 1024}")

    bar(True)
    rd_x(0, 0)
    for T in range(4):
        rd_w(0, 0, T)
    e(f"s_mov_b32 s{S_CNT}, 0")
    e(f"s_mov_b32 s{S_LO}, 0")
    e("s_mov_b32 s60, -32768")
    e("s_mov_b32 s61, 16384")
    if STAMPS:
        e("v_mov_b32 v231, 0")
        e("s_mov_b32 s96, 0")
    e("QP_L:")
    if STAMPS:
        e(f"s_mov_b32 m0, s{S_CNT}")
        e("s_nop 0")
        e(f"v_writelane_b32 v231, s96, m0")
        e("s_memtime s[96:97]")
    e(f"s_add_u32 s{S_LO}, s{S_LO}, 16384")
    e(f"s_cmp_eq_u32 s{S_LO}, 49152")
    e(f"s_cselect_b32 s{S_DEL}, s60, s61")
    e(f"s_cselect_b32 s{S_LO}, 0, s{S_LO}")
    for p in range(4):
        buf = p & 1
        nb = buf ^ 1
        if p & 1:
            e("s_barrier")
        for T in range(4):
            nxt = 0 if T == 0 else 1 + 2 * T
            e(f"s_waitcnt lgkmcnt({2*(3-T) + nxt})")
            a = V_FW + 16 * buf + 4 * T
            b = V_FX + 4 * buf
            acc = V_ACC + 16 * T
            e(f"v_mfma_f32_32x32x16_bf16 v[{acc}:{acc+15}], v[{a}:{a+3}], v[{b}:{b+3}], v[{acc}:{acc+15}]")
            if T == 0:
                rd_x((p + 1) & 3, nb)
            rd_w((p + 1) & 3, nb, T)
            if p == 2:
                e(f"v_add_u32 v{V_AW+T}, s{S_DEL}, v{V_AW+T}")
            if p == 0 and T == 1:
                e(f"v_add_u32 v{V_AX}, s{S_DEL}, v{V_AX}")
            if p == 3 and T >= 1:
                e(f"v_add_u32 v{V_AX+T}, s{S_DEL}, v{V_AX+T}")
    e(f"s_add_u32 s{S_CNT}, s{S_CNT}, 1")
    e(f"s_cmp_lt_u32 s{S_CNT}, 8")
    e("s_cbranch_scc1 QP_L")
    e("s_waitcnt lgkmcnt(0)")
    bar(True)

    e("F_ATT:")
    def dry_exit():
        if DRY:
            e(f"s_cmp_eq_u32 s{S_DRY}, 1")
            e("s_cbranch_scc1 F_REAL")
    def rd_k(i):
        t, s_ = i // 8, i % 8
        r = V_KF + 4 * (i % 4)
        e(f"ds_read_b128 v[{r}:{r+3}], v{V_AK+s_} offset:{8192*t}")
    def cvt_q(s_, lo, hi):
        for qq in range(lo, hi):
            a = V_ACC + 8 * s_ + 2 * qq
            e(f"v_cvt_pk_bf16_f32 v{V_QB + 4*s_ + qq}, v{a}, v{a+1}")
    for i in range(4):
        rd_k(i)
    e(f"s_mov_b32 s{S_TMP}, 0x3e0293ee")
    e(f"s_mov_b32 s{S_TMP+1}, 0x3e0293ee")
    e("s_nop 7")
    cvt_q(0, 0, 4)
    cvt_q(1, 0, 2)
    for i in range(16):
        t, s_ = i // 8, i % 8
        r = V_KF + 4 * (i % 4)
        rem = min(3, 15 - i)
        e(f"s_waitcnt lgkmcnt({rem})")
        acc = V_S + 16 * t
        cc = "0" if s_ == 0 else f"v[{acc}:{acc+15}]"
        b = V_QB + 4 * s_
        e(f"v_mfma_f32_32x32x16_bf16 v[{acc}:{acc+15}], v[{r}:{r+3}], v[{b}:{b+3}], {cc}")
        if i + 4 < 16:
            rd_k(i + 4)
        if i < 7:
            cvt_q(i + 1, 2, 4)
            if i + 2 < 8:
                cvt_q(i + 2, 0, 2)
            else:
                e("s_nop 1")
        if i == 12:
            e(f"v_max3_f32 v{V_M}, v{V_S}, v{V_S+1}, v{V_S+2}")
            e(f"v_max3_f32 v{V_M2}, v{V_S+3}, v{V_S+4}, v{V_S+5}")
        if i == 13:
            e(f"v_max3_f32 v{V_M}, v{V_M}, v{V_S+6}, v{V_S+7}")
            e(f"v_max3_f32 v{V_M2}, v{V_M2}, v{V_S+8}, v{V_S+9}")
        if i == 14:
            e(f"v_max3_f32 v{V_M}, v{V_M}, v{V_S+10}, v{V_S+11}")
            e(f"v_max3_f32 v{V_M2}, v{V_M2}, v{V_S+12}, v{V_S+13}")
        if i == 15:
            e(f"v_max3_f32 v{V_M}, v{V_M}, v{V_S+14}, v{V_S+15}")
    dry_exit()
    stamp()
    e("F_SEG1:")
    def rd_v(u, buf):
        for T in range(4):
            r = V_VF + 16 * buf + 4 * T
            e(f"ds_read_b64_tr_b16 v[{r}:{r+1}], v{V_AV+T} offset:{u*4096}")
            e(f"ds_read_b64_tr_b16 v[{r+2}:{r+3}], v{V_AV+T} offset:{u*4096+2048}")
    if opt("tmaj", "0") == "1":
        for u in range(4):
            r = V_VF + 4 * u
            e(f"ds_read_b64_tr_b16 v[{r}:{r+1}], v{V_AV} offset:{u*4096}")
            e(f"ds_read_b64_tr_b16 v[{r+2}:{r+3}], v{V_AV} offset:{u*4096+2048}")
    else:
        rd_v(0, 0)
    e("s_nop 5")
    for i in range(16, 32, 4):
        e(f"v_max3_f32 v{V_M}, v{V_M}, v{V_S+i}, v{V_S+i+1}")
        e(f"v_max3_f32 v{V_M2}, v{V_M2}, v{V_S+i+2}, v{V_S+i+3}")
    e(f"v_max_f32 v{V_M}, v{V_M}, v{V_M2}")
    e(f"v_mov_b32 v{V_M2}, v{V_M}")
    e("s_nop 1")
    e(f"v_permlane32_swap_b32 v{V_M}, v{V_M2}")
    e("s_nop 1")
    e(f"v_max_f32 v{V_M}, v{V_M}, v{V_M2}")
    e(f"v_mul_f32 v{V_M}, s{S_TMP}, v{V_M}")
    def sm_group(u):
        o = []
        for i in range(8 * u, 8 * u + 8):
            o.append(f"v_fma_f32 v{V_S+i}, v{V_S+i}, s{S_TMP}, -v{V_M}")
        for i in range(8 * u, 8 * u + 8):
            o.append(f"v_exp_f32 v{V_S+i}, v{V_S+i}")
        o.append("s_nop 0")
        for i in range(4):
            o.append(f"v_cvt_pk_bf16_f32 v{V_PB+4*u+i}, v{V_S+8*u+2*i}, v{V_S+8*u+2*i+1}")
        return o
    def sum_group(u):
        o = []
        b = V_S + 8 * u
        if u == 0:
            o.append(f"v_add_f32 v{V_SUM}, v{b}, v{b+1}")
            o.append(f"v_add_f32 v{V_SUM2}, v{b+2}, v{b+3}")
            rest = range(4, 8, 2)
        else:
            rest = range(0, 8, 2)
        for i in rest:
            o.append(f"v_add_f32 v{V_SUM}, v{V_SUM}, v{b+i}")
            o.append(f"v_add_f32 v{V_SUM2}, v{V_SUM2}, v{b+i+1}")
        return o
    if opt("tmaj", "0") == "1":
        def rd_vT(T, buf):
            for u in range(4):
                r = V_VF + 16 * buf + 4 * u
                e(f"ds_read_b64_tr_b16 v[{r}:{r+1}], v{V_AV+T} offset:{u*4096}")
                e(f"ds_read_b64_tr_b16 v[{r+2}:{r+3}], v{V_AV+T} offset:{u*4096+2048}")
        for u in range(4):
            for x in sm_group(u): e(x)
            for x in sum_group(u): e(x)
        for x in [f"v_add_f32 v{V_SUM}, v{V_SUM}, v{V_SUM2}", f"v_mov_b32 v{V_SUM2}, v{V_SUM}", "s_nop 1",
                  f"v_permlane32_swap_b32 v{V_SUM}, v{V_SUM2}", "s_nop 1",
                  f"v_add_f32 v{V_SUM}, v{V_SUM}, v{V_SUM2}", f"v_rcp_f32 v{V_RS}, v{V_SUM}", "s_nop 0",
                  f"v_mov_b32 v{V_RS+1}, v{V_RS}"]:
            e(x)
        e(f"s_add_u32 s{S_TMP+1}, s{S_X1}, 4096")
        def fin_tile(T):
            o = []
            for ks in (2 * T, 2 * T + 1):
                a = V_ACC + 8 * ks
                d = V_BX + 4 * ks
                for i in range(4):
                    o.append(f"v_pk_mul_f32 v[{a+2*i}:{a+2*i+1}], v[{a+2*i}:{a+2*i+1}], v[{V_RS}:{V_RS+1}]")
                for i in range(4):
                    o.append(f"v_cvt_pk_bf16_f32 v{d+i}, v{a+2*i}, v{a+2*i+1}")
                so = S_X1 if ks < 4 else S_TMP + 1
                o.append(f"buffer_store_dwordx4 v[{d}:{d+3}], v{V_ST}, s[{S_A}:{S_A+3}], s{so} offen offset:{1024*(ks&3)} sc1")
            return o
        for T in range(4):
            buf = T & 1
            e("s_waitcnt lgkmcnt(0)")
            fill = fin_tile(T - 1) if T >= 1 else []
            for u in range(4):
                a = V_VF + 16 * buf + 4 * u
                b = V_PB + 4 * u
                acc = V_ACC + 16 * T
                cc = "0" if u == 0 else f"v[{acc}:{acc+15}]"
                e(f"v_mfma_f32_32x32x16_bf16 v[{acc}:{acc+15}], v[{a}:{a+3}], v[{b}:{b+3}], {cc}")
                if u == 0:
                    if T + 1 < 4:
                        rd_vT(T + 1, buf ^ 1)
                    else:
                        e("s_nop 7")
                    e("s_nop 1")
                elif fill:
                    n = 6
                    for x in fill[(u - 1) * n:u * n]:
                        e(x)
        e("s_nop 7")
        e("s_nop 3")
        for x in fin_tile(3): e(x)
        for i in range(8):
            e(f"v_mov_b32 v{V_ACC2+24+i}, 0")
        stamp()
    else:
        for x in sm_group(0): e(x)
        e("s_nop 0")
        for u in range(4):
            buf = u & 1
            if u == 2:
                dry_exit()
                e("F_SEG2:")
            e("s_waitcnt lgkmcnt(0)")
            fill = []
            if u + 1 < 4:
                fill = sm_group(u + 1) + sum_group(u)
            else:
                fill = sum_group(u) + [f"v_add_f32 v{V_SUM}, v{V_SUM}, v{V_SUM2}", f"v_mov_b32 v{V_SUM2}, v{V_SUM}", "s_nop 1",
                                       f"v_permlane32_swap_b32 v{V_SUM}, v{V_SUM2}", "s_nop 1",
                                       f"v_add_f32 v{V_SUM}, v{V_SUM}, v{V_SUM2}", f"v_rcp_f32 v{V_RS}, v{V_SUM}", "s_nop 0",
                                       f"v_mov_b32 v{V_RS+1}, v{V_RS}"]
            per = (len(fill) + 3) // 4
            for T in range(4):
                a = V_VF + 16 * buf + 4 * T
                b = V_PB + 4 * u
                acc = V_ACC + 16 * T
                cc = "0" if u == 0 else f"v[{acc}:{acc+15}]"
                e(f"v_mfma_f32_32x32x16_bf16 v[{acc}:{acc+15}], v[{a}:{a+3}], v[{b}:{b+3}], {cc}")
                if T == 0 and u + 1 < 4:
                    rd_v(u + 1, buf ^ 1)
                for x in fill[T * per:(T + 1) * per]:
                    e(x)
            if u + 1 < 4:
                e("s_nop 1")
        e("s_nop 3")
        for i in range(8):
            e(f"v_mov_b32 v{V_ACC2+24+i}, 0")
        for ks in range(8):
            a = V_ACC + 8 * ks
            d = V_BX + 4 * ks
            for i in range(4):
                e(f"v_pk_mul_f32 v[{a+2*i}:{a+2*i+1}], v[{a+2*i}:{a+2*i+1}], v[{V_RS}:{V_RS+1}]")
            for i in range(4):
                e(f"v_cvt_pk_bf16_f32 v{d+i}, v{a+2*i}, v{a+2*i+1}")
        dry_exit()
        stamp()
        if int(opt("xdel", "0")):
            nd = int(opt("xdel", "0"))
            e(f"s_lshr_b32 s{S_TMP}, s2, {opt('xsh', '7')}")
            e(f"s_mul_i32 s{S_TMP}, s{S_TMP}, {nd}")
            e("XD_L:")
            e(f"s_cmp_eq_u32 s{S_TMP}, 0")
            e("s_cbranch_scc1 XD_X")
            e("s_sleep 2")
            e(f"s_sub_u32 s{S_TMP}, s{S_TMP}, 1")
            e("s_branch XD_L")
            e("XD_X:")
        e(f"s_add_u32 s{S_TMP+1}, s{S_X1}, 4096")
        for ks in range(8):
            d = V_BX + 4 * ks
            so = S_X1 if ks < 4 else S_TMP + 1
            e(f"buffer_store_dwordx4 v[{d}:{d+3}], v{V_ST}, s[{S_A}:{S_A+3}], s{so} offen offset:{1024*(ks&3)} sc1")
    e(f"s_mov_b32 s{S_CNT}, 0")
    bar()
    for i in range(24):
        e(f"v_mov_b32 v{V_ACC2+i}, 0")
    e("s_mov_b64 exec, 1")
    e("F_TOKL:")
    e(f"buffer_load_dwordx2 v[{V_TOK}:{V_TOK+1}], v{V_ZERO}, s[{S_B}:{S_B+3}], 0 offen sc0 sc1")
    e("s_waitcnt vmcnt(0)")
    e(f"v_readfirstlane_b32 s{S_TOK}, v{V_TOK}")
    e(f"v_readfirstlane_b32 s{S_TOK+1}, v{V_TOK+1}")
    e(f"s_add_u32 s{S_CNT}, s{S_CNT}, 1")
    e(f"s_cmp_gt_u32 s{S_CNT}, {SPIN}")
    e("s_cbranch_scc1 F_TOKX")
    e(f"s_cmp_eq_u32 s{S_TOK}, 0")
    e("s_cbranch_scc1 F_TOKL")
    e("F_TOKX:")
    stamp()
    e(f"s_add_u32 s{S_TMP}, s{S_T2}, {F1_OFF}")
    e(f"s_add_u32 s{S_TMP+1}, s{S_T2}, {F1A_OFF}")
    e("s_mov_b64 exec, 1")
    e(f"buffer_store_dwordx2 v[{V_TOK}:{V_TOK+1}], v{V_ZERO}, s[{S_A}:{S_A+3}], s{S_TMP+1} offen")
    e(f"buffer_store_dwordx2 v[{V_TOK}:{V_TOK+1}], v{V_ZERO}, s[{S_A}:{S_A+3}], s{S_TMP} offen sc1")
    e("s_mov_b64 exec, -1")
    if opt("opf", "0") == "1":
        e(f"v_lshlrev_b32 v{V_T2}, 7, v{V_LANE}")
        e(f"buffer_load_dword v{V_T3}, v{V_T2}, s[{S_A}:{S_A+3}], s{S_X1} offen {opt('opfflags', '')}")
    bar()
    poll_loop("F_P1", V_FA1A, S_A, "sc1", V_FA1)
    stamp()

    D = int(opt("p2d", "12"))
    def slot_reg(sl):
        return (V_BX if sl < 8 else V_BY) + 4 * (sl & 7)
    def blk_base(sreg, jadd):
        e(f"s_add_u32 s{sreg}, s{S_HL}, s{S_J}")
        e(f"s_add_u32 s{sreg}, s{sreg}, {jadd}")
        e(f"s_and_b32 s{sreg}, s{sreg}, 7")
        e(f"s_lshl_b32 s{sreg}, s{sreg}, 18")
        e(f"s_add_u32 s{sreg}, s{sreg}, s{S_X0}")
        if jadd >= 2:
            e(f"s_cmp_ge_u32 s{S_J}, 6")
            e(f"s_cselect_b32 s{sreg}, 0x40000000, s{sreg}")
    def ld(sl, sreg, ks):
        b = slot_reg(sl)
        vo = V_ST if ks < 4 else V_T1
        e(f"buffer_load_dwordx4 v[{b}:{b+3}], v{vo}, s[{S_A}:{S_A+3}], s{sreg} offen offset:{1024*(ks&3)} {SIBF}")
    def rd_o(step, buf):
        off = step * 2048
        for T in range(2):
            r = V_FO + 8 * buf + 4 * T
            e(f"ds_read_b64_tr_b16 v[{r}:{r+1}], v{V_AO+T} offset:{off}")
            e(f"ds_read_b64_tr_b16 v[{r+2}:{r+3}], v{V_AO+T} offset:{off + 512}")
    SB = (36, 37, 38)
    e(f"s_mov_b32 s{S_J}, 0")
    e(f"v_add_u32 v{V_T1}, 4096, v{V_ST}")
    blk_base(SB[0], 1)
    for ks in range(D - 8):
        ld(8 + ks, SB[0], ks)
    PD = int(opt("pd", "3"))
    for i in range(PD):
        rd_o(i, i)
    e("P2_L:")
    blk_base(SB[1], 2)
    blk_base(SB[2], 3)
    LA = D
    def rd_o1(step, buf, T):
        off = step * 2048
        r = V_FO + 8 * buf + 4 * T
        e(f"ds_read_b64_tr_b16 v[{r}:{r+1}], v{V_AO+T} offset:{off}")
        e(f"ds_read_b64_tr_b16 v[{r+2}:{r+3}], v{V_AO+T} offset:{off + 512}")
    for l in range(16):
        buf = l & 3
        e(f"s_waitcnt vmcnt({LA - 1}) lgkmcnt({4 * (PD - 1)})")
        for T in range(2):
            a = V_FO + 8 * buf + 4 * T
            b = slot_reg(l)
            acc = V_ACC2 + 16 * T
            e(f"v_mfma_f32_32x32x16_bf16 v[{acc}:{acc+15}], v[{a}:{a+3}], v[{b}:{b+3}], v[{acc}:{acc+15}]")
            rd_o1(l + PD, (l + PD) & 3, T)
            if T == 0:
                e(f"__LOAD{l}__")
    e(f"v_add_u32 v{V_AO}, 0x8000, v{V_AO}")
    e(f"v_add_u32 v{V_AO+1}, 0x8000, v{V_AO+1}")
    e(f"s_mov_b32 s{SB[0]}, s{SB[2]}")
    e(f"s_add_u32 s{S_J}, s{S_J}, 2")
    e(f"s_cmp_lt_u32 s{S_J}, 8")
    e("s_cbranch_scc1 P2_L")
    if DRY:
        e(f"s_cmp_eq_u32 s{S_DRY}, 0")
        e("s_cbranch_scc1 F_X2")
        e(f"v_subrev_u32 v{V_AO}, 0x8000, v{V_AO}")
        e(f"v_subrev_u32 v{V_AO+1}, 0x8000, v{V_AO+1}")
        e("s_branch F_REAL")
        e("F_X2:")
    e("s_waitcnt lgkmcnt(0)")
    e("s_nop 7")
    e("s_nop 3")
    stamp()
    out = []
    for line in L:
        t = line.strip()
        if t.startswith("__LOAD"):
            l = int(t[6:-2])
            tgt = l + LA
            sl = tgt & 15
            blk = tgt >> 3
            sreg = SB[blk - 1]
            ks = tgt & 7
            b = slot_reg(sl)
            vo = V_ST if ks < 4 else V_T1
            ins = f"    buffer_load_dwordx4 v[{b}:{b+3}], v{vo}, s[{S_A}:{S_A+3}], s{sreg} offen offset:{1024*(ks&3)} {SIBF}"
            out.append(ins)
        elif t.startswith("__WAITB"):
            out += [f"    s_waitcnt vmcnt({LA - 1})"]
        else:
            out.append(line)
    L[:] = out
    V_ENC = 136
    V_CK = 96
    V_RC = 152
    V_DA, V_RA, V_LA, V_RR = 164, 165, 166, 167
    VX = 124
    S_SCL = 32
    S_MK = 36
    A2 = V_ACC2
    D3 = ["quad_perm:[1,0,3,2]", "quad_perm:[2,3,0,1]", "row_half_mirror"]
    e("s_waitcnt vmcnt(0)")
    e(f"v_max3_f32 v{V_M}, |v{A2}|, |v{A2+1}|, |v{A2+2}|")
    e(f"v_max3_f32 v{V_M2}, |v{A2+3}|, |v{A2+4}|, |v{A2+5}|")
    for i in range(6, 30, 4):
        e(f"v_max3_f32 v{V_M}, v{V_M}, |v{A2+i}|, |v{A2+i+1}|")
        e(f"v_max3_f32 v{V_M2}, v{V_M2}, |v{A2+i+2}|, |v{A2+i+3}|")
    e(f"v_max3_f32 v{V_M}, v{V_M}, |v{A2+30}|, |v{A2+31}|")
    e(f"v_max_f32 v{V_M}, v{V_M}, v{V_M2}")
    fill = [f"v_bfe_u32 v{V_T0}, v{V_LANE}, 3, 2", f"v_and_b32 v{V_T1}, 7, v{V_LANE}",
            f"v_lshrrev_b32 v{V_T2}, 5, v{V_LANE}", f"v_lshl_add_u32 v{V_T1}, v{V_T2}, 3, v{V_T1}",
            f"v_lshlrev_b32 v{V_DA}, 14, v{V_T0}", f"v_lshl_add_u32 v{V_DA}, v{V_T1}, 4, v{V_DA}",
            f"v_lshlrev_b32 v{V_RA}, 11, v{V_T0}", f"v_lshl_add_u32 v{V_RA}, v{V_T2}, 6, v{V_RA}"]
    for i, d in enumerate(D3 + ["row_mirror"]):
        e(fill[2 * i]); e(fill[2 * i + 1])
        e(f"v_max_u32_dpp v{V_M}, v{V_M}, v{V_M} {d} row_mask:0xf bank_mask:0xf")
    e(f"v_cmp_eq_u32 s[{S_MK+2}:{S_MK+3}], s{S_G4}, v{V_T0}")
    e(f"v_lshlrev_b32 v{V_LA}, 5, v{V_T1}")
    for i in range(4):
        e(f"v_readlane_b32 s{S_SCL+i}, v{V_M}, {16*i}")
    e(f"s_lshl_b32 s{S_TMP}, s{S_WV}, 11")
    e(f"s_add_u32 s{S_TMP}, s{S_TMP}, {V_BASE}")
    e(f"v_add_u32 v{V_LA}, s{S_TMP}, v{V_LA}")
    e(f"s_not_b64 s[{S_MK}:{S_MK+1}], s[{S_MK+2}:{S_MK+3}]")
    e(f"s_max_u32 s{S_SCL}, s{S_SCL}, s{S_SCL+1}")
    e(f"s_max_u32 s{S_SCL+2}, s{S_SCL+2}, s{S_SCL+3}")
    e(f"s_max_u32 s{S_SCL}, s{S_SCL}, s{S_SCL+2}")
    e(f"s_lshr_b32 s{S_SCL}, s{S_SCL}, 23")
    e(f"s_max_u32 s{S_SCL}, s{S_SCL}, 15")
    e(f"s_sub_u32 s{S_SCL+2}, s{S_SCL}, 14")
    e(f"s_lshl_b32 s{S_SCL+2}, s{S_SCL+2}, 23")
    e(f"s_sub_u32 s{S_SCL}, 0x10c, s{S_SCL}")
    e(f"s_lshl_b32 s{S_SCL}, s{S_SCL}, 23")
    e(f"s_mov_b32 s{S_SCL+1}, s{S_SCL}")
    e(f"s_andn2_b32 s{S_BASE}, s2, 3")
    e(f"s_lshl_b32 s{S_BASE}, s{S_BASE}, 2")
    e(f"s_add_u32 s{S_BASE}, s{S_BASE}, s{S_G4}")
    e(f"s_lshl_b32 s{S_BASE}, s{S_BASE}, 2")
    e(f"s_add_u32 s{S_BASE}, s{S_BASE}, s{S_WV}")
    e(f"s_lshl_b32 s{S_LO}, s{S_BASE}, 7")
    e(f"s_add_u32 s{S_LO}, s{S_LO}, {CK_OFF}")
    e(f"s_lshl_b32 s{S_BASE}, s{S_BASE}, 10")
    e(f"s_add_u32 s{S_BASE}, s{S_BASE}, {PX_OFF}")
    TMPR = 72
    for k in range(4):
        a = A2 + 8 * k
        h = V_ENC + 4 * k
        t = TMPR + 8 * (k & 1)
        for i in range(4):
            e(f"v_pk_mul_f32 v[{t+2*i}:{t+2*i+1}], v[{a+2*i}:{a+2*i+1}], s[{S_SCL}:{S_SCL+1}]")
        for i in range(4):
            e(f"v_cvt_pk_f16_f32 v{h+i}, v{t+2*i}, v{t+2*i+1}")
        e(f"s_mov_b64 exec, s[{S_MK}:{S_MK+1}]")
        e(f"buffer_store_dwordx4 v[{h}:{h+3}], v{V_DA}, s[{S_A}:{S_A+3}], s{S_BASE} offen offset:{256*k} sc1")
        e("s_mov_b64 exec, -1")
    for k in range(4):
        h = V_ENC + 4 * k
        c = V_CK + 4 + k
        e(f"v_bitop3_b32 v{c}, v{h}, v{h+1}, v{h+2} bitop3:0x96")
        e(f"v_xor_b32 v{c}, v{c}, v{h+3}")
    e(f"v_and_b32 v{V_T3}, 3, v{V_LANE}")
    e(f"v_lshl_add_u32 v{V_RA}, v{V_T3}, 4, v{V_RA}")
    for d in D3:
        for k in range(4):
            c = V_CK + 4 + k
            e(f"v_xor_b32_dpp v{c}, v{c}, v{c} {d} row_mask:0xf bank_mask:0xf")
    e("s_mov_b32 s56, 0xaaaaaaaa")
    e("s_mov_b32 s57, 0xaaaaaaaa")
    e("s_mov_b32 s60, 0xcccccccc")
    e("s_mov_b32 s61, 0xcccccccc")
    e(f"v_cndmask_b32 v{V_CK+4}, v{V_CK+4}, v{V_CK+5}, s[56:57]")
    e(f"v_cndmask_b32 v{V_CK+6}, v{V_CK+6}, v{V_CK+7}, s[56:57]")
    e(f"v_mov_b32 v{V_CK+1}, s{S_TOK}")
    e(f"v_cndmask_b32 v{V_CK}, v{V_CK+4}, v{V_CK+6}, s[60:61]")
    e(f"v_mov_b32 v{V_CK+2}, s{S_SCL+2}")
    e(f"v_mov_b32 v{V_CK+3}, 0")
    e(f"v_bitop3_b32 v{V_CK}, v{V_CK}, v{V_CK+2}, s{S_TOK+1} bitop3:0x96")
    e("s_mov_b32 exec_lo, 0x0f0f0f0f")
    e("s_mov_b32 exec_hi, 0x0f0f0f0f")
    e(f"buffer_store_dwordx4 v[{V_CK}:{V_CK+3}], v{V_RA}, s[{S_A}:{S_A+3}], s{S_LO} offen sc1")
    stamp()
    e(f"s_mov_b64 exec, s[{S_MK+2}:{S_MK+3}]")
    for k in range(4):
        a = A2 + 8 * k
        e(f"ds_write_b128 v{V_LA}, v[{a}:{a+3}] offset:{512*k}")
        e(f"ds_write_b128 v{V_LA}, v[{a+4}:{a+7}] offset:{512*k+16}")
    e("s_mov_b64 exec, -1")
    e(f"v_lshlrev_b32 v{V_LA}, 5, v{V_LANE}")
    e(f"v_add_u32 v{V_LA}, s{S_TMP}, v{V_LA}")
    e(f"s_lshl_b32 s{S_BASE}, s2, 4")
    e(f"s_add_u32 s{S_BASE}, s{S_BASE}, s{S_WV}")
    e(f"s_lshl_b32 s{S_LO}, s{S_BASE}, 7")
    e(f"s_add_u32 s{S_LO}, s{S_LO}, {CK_OFF}")
    e(f"s_lshl_b32 s{S_BASE}, s{S_BASE}, 10")
    e(f"s_add_u32 s{S_BASE}, s{S_BASE}, {PX_OFF}")
    SD = (32, 33, 34); SC = (36, 37, 38)
    for n in range(3):
        e(f"s_add_u32 s{S_TMP}, s{S_G4}, {n+1}")
        e(f"s_and_b32 s{S_TMP}, s{S_TMP}, 3")
        e(f"s_lshl_b32 s{SC[n]}, s{S_TMP}, 9")
        e(f"s_add_u32 s{SC[n]}, s{SC[n]}, s{S_LO}")
        e(f"s_lshl_b32 s{SD[n]}, s{S_TMP}, 12")
        e(f"s_add_u32 s{SD[n]}, s{SD[n]}, s{S_BASE}")
    e("s_waitcnt lgkmcnt(0)")
    e(f"ds_read_b128 v[{V_FIN}:{V_FIN+3}], v{V_LA}")
    e(f"ds_read_b128 v[{V_FIN+4}:{V_FIN+7}], v{V_LA} offset:16")
    e(f"v_lshrrev_b32 v{V_RR}, 3, v{V_LANE}")
    e(f"v_lshlrev_b32 v{V_RR}, 4, v{V_RR}")
    e(f"v_and_b32 v{V_OUT}, 7, v{V_LANE}")
    e(f"v_lshl_add_u32 v{V_OUT}, v{V_OUT}, 10, v{V_RR}")
    e(f"v_bfe_u32 v{V_RR}, v{V_LANE}, 3, 1")
    e(f"v_lshlrev_b32 v{V_RR}, 6, v{V_RR}")
    e(f"v_lshrrev_b32 v{V_T3}, 4, v{V_LANE}")
    e(f"v_lshl_add_u32 v{V_RR}, v{V_T3}, 4, v{V_RR}")
    e(f"v_add_u32 v{V_T3}, s{S_G4}, v{V_LANE}")
    e(f"v_add_u32 v{V_T3}, 1, v{V_T3}")
    e(f"v_and_b32 v{V_T3}, 3, v{V_T3}")
    e(f"v_lshlrev_b32 v{V_T3}, 9, v{V_T3}")
    e(f"s_mov_b32 s{S_CNT}, 0")
    e("s_mov_b64 exec, 7")
    e("F_P2:")
    e(f"buffer_load_dword v{V_FV}, v{V_T3}, s[{S_A}:{S_A+3}], s{S_LO} offen offset:116 sc0 sc1")
    e(f"s_add_u32 s{S_CNT}, s{S_CNT}, 1")
    e("s_waitcnt vmcnt(0)")
    e(f"v_cmp_ne_u32 vcc, s{S_TOK}, v{V_FV}")
    e(f"s_cmp_gt_u32 s{S_CNT}, {SPIN}")
    e("s_cbranch_scc1 F_P2X")
    e("s_nop 2")
    e("s_cbranch_vccnz F_P2")
    e("F_P2X:")
    e("s_mov_b64 exec, -1")
    stamp()
    if STAMPS: e(f"v_writelane_b32 v231, s{S_CNT}, 12")
    def rx_all(rf):
        for n in range(3):
            b = V_PR + 4 * n
            e(f"buffer_load_dwordx4 v[{b}:{b+3}], v{V_ST}, s[{S_A}:{S_A+3}], s{SD[n]} offen {rf}")
            e(f"buffer_load_dwordx3 v[{V_RC+4*n}:{V_RC+4*n+2}], v{V_RR}, s[{S_A}:{S_A+3}], s{SC[n]} offen {rf}")
    rx_all(opt("rxflags", "sc1"))
    e("s_branch F_RV")
    e("F_RX:")
    rx_all("sc0 sc1")
    e("F_RV:")
    e(f"s_add_u32 s{S_CNT}, s{S_CNT}, 1")
    for n in range(3):
        e(f"s_waitcnt vmcnt({2*(2-n)})")
        b = V_PR + 4 * n
        c = VX + n
        e(f"v_bitop3_b32 v{c}, v{b}, v{b+1}, v{b+2} bitop3:0x96")
        e(f"v_xor_b32 v{c}, v{c}, v{b+3}")
    e("s_nop 1")
    for d in D3:
        for n in range(3):
            c = VX + n
            e(f"v_xor_b32_dpp v{c}, v{c}, v{c} {d} row_mask:0xf bank_mask:0xf")
    for n in range(3):
        c = VX + n
        r = V_RC + 4 * n
        e(f"v_bitop3_b32 v{c}, v{c}, v{r}, s{S_TOK+1} bitop3:0x96")
        e(f"v_xor_b32 v{c}, v{c}, v{r+2}")
        e(f"v_xor_b32 v{r+1}, s{S_TOK}, v{r+1}")
    e(f"v_or3_b32 v{V_T3}, v{VX}, v{VX+1}, v{VX+2}")
    e(f"v_or3_b32 v{V_T3}, v{V_T3}, v{V_RC+1}, v{V_RC+5}")
    e(f"v_or_b32 v{V_T3}, v{V_T3}, v{V_RC+9}")
    e(f"v_cmp_ne_u32 vcc, 0, v{V_T3}")
    e(f"s_cmp_gt_u32 s{S_CNT}, {SPIN}")
    e("s_cbranch_scc1 F_RXX")
    e("s_nop 2")
    e("s_cbranch_vccnz F_RX")
    e("F_RXX:")
    if STAMPS:
        e(f"v_writelane_b32 v231, s{S_CNT}, 13")
        stamp()
    e(f"s_lshl_b32 s{S_TMP}, s{S_RB}, 2")
    e(f"s_add_u32 s{S_TMP}, s{S_TMP}, s{S_WV}")
    e(f"s_lshl_b32 s{S_TMP}, s{S_TMP}, 2")
    e(f"s_add_u32 s{S_TMP}, s{S_TMP}, s{S_G4}")
    e(f"s_lshl_b32 s{S_TMP}, s{S_TMP}, 13")
    e(f"s_lshl_b32 s{S_TMP+1}, s{S_HL}, 7")
    e(f"s_add_u32 s{S_TMP}, s{S_TMP}, s{S_TMP+1}")
    e("s_waitcnt lgkmcnt(0)")
    for n in range(3):
        b = V_PR + 4 * n
        inv = V_RC + 4 * n + 2
        for i in range(4):
            e(f"v_fma_mix_f32 v{V_FIN+2*i}, v{b+i}, v{inv}, v{V_FIN+2*i} op_sel_hi:[1,0,0]")
            e(f"v_fma_mix_f32 v{V_FIN+2*i+1}, v{b+i}, v{inv}, v{V_FIN+2*i+1} op_sel:[1,0,0] op_sel_hi:[1,0,0]")
    for i in range(4):
        e(f"v_cvt_pk_bf16_f32 v{V_FIN+8+i}, v{V_FIN+2*i}, v{V_FIN+2*i+1}")
    e(f"buffer_store_dwordx4 v[{V_FIN+8}:{V_FIN+11}], v{V_OUT}, s[{S_C}:{S_C+3}], s{S_TMP} offen")
    stamp_flush()
    e("F_DONE:")
    e("s_endpgm")
    L.append(kd(name, NVGPR))


DESC = """; ---------------------------------------------------------------------------------------------
; ---------------------------------------------------------------------------------------------
"""

def main():
    out = sys.argv[1]
    hdr = HEADER
    hdr += "; @launch grid=(256,1,1) block=(512,1,1) lds=163840\n"
    hdr += '.amdgcn_target "amdgcn-amd-amdhsa--gfx950"\n'
    hdr += DESC
    fused()
    open(out, "w").write(hdr + "\n".join(L) + "\n")

main()
```
